```python
import torch

def _softmax(x, axis=-1):
    return torch.softmax(x, dim=axis)
def _gelu(x):
    return torch.nn.functional.gelu(x, approximate="tanh")
def _silu(x):
    return torch.nn.functional.silu(x)
def _sigmoid(x):
    return torch.sigmoid(x)
def _layernorm(x, axis=-1, eps=1e-5):
    m = x.mean(dim=axis, keepdim=True)
    v = x.var(dim=axis, keepdim=True, unbiased=False)
    return (x - m) / torch.sqrt(v + eps)
def _scatter_add(tgt, idx, src, axis=0):
    return tgt.clone().index_add_(axis, idx, src)
def _segment_sum(src, seg, n):
    out = torch.zeros((n,) + src.shape[1:], dtype=src.dtype)
    return out.index_add_(0, seg, src)
def _pad(x, pw):
    flat = tuple(v for pair in reversed(pw) for v in pair)
    return torch.nn.functional.pad(x, flat)

kernel_name = 'concat_heads__ssm_conv_h3__compressed_kv_cla__prompt'

def setup_inputs():

    _w = (lambda a: (lambda t: t.to(torch.bfloat16) if t.is_floating_point() else t)(torch.as_tensor(a)))
    def _A_setup():
        B, S, D = 1, 2048, 576
        ks = 4
        return {
            "q": _w((lambda *s: torch.randn(*s, dtype=torch.bfloat16) * 0.05)(B, S, D)),
            "k": _w((lambda *s: torch.randn(*s, dtype=torch.bfloat16) * 0.1)(B, S, D)),
            "v": _w((lambda *s: torch.randn(*s, dtype=torch.bfloat16) * 0.1)(B, S, D)),
            "shift_k": _w((lambda *s: torch.randn(*s, dtype=torch.bfloat16) * 0.1)(D, ks) * 0.5),
            "ssm_k": _w((lambda *s: torch.randn(*s, dtype=torch.bfloat16) * 0.1)(D, S) * (1.0 / S ** 0.5)),
            "ssm_D": _w((lambda *s: torch.randn(*s, dtype=torch.bfloat16) * 0.1)(D)),
        }
    _A_in = _A_setup()

    def _B_setup():
        B, H, Sq, Sk, D, M = 1, 32, 2048, 2048, 128, 576
        Dc = 4 * D
        return {
            "x": _w((lambda *s: torch.randn(*s, dtype=torch.bfloat16) * 3.2)(B, Sq, M)),
            "c_kv": _w((lambda *s: torch.randn(*s, dtype=torch.bfloat16) * 0.05)(B, Sk, Dc)),
            "w_q": _w((lambda *s: torch.randn(*s, dtype=torch.bfloat16) * 3.2)(M, H, D) * (M ** -0.5)),
            "w_uk": _w((lambda *s: torch.randn(*s, dtype=torch.bfloat16) * 3.2)(Dc, H, D) * (Dc ** -0.5)),
            "w_uv": _w((lambda *s: torch.randn(*s, dtype=torch.bfloat16) * 0.05)(Dc, H, D) * (Dc ** -0.5)),
            "w_o": _w((lambda *s: torch.randn(*s, dtype=torch.bfloat16) * 0.05)(H, D, M) * ((H * D) ** -0.5)),
        }
    _B_in = _B_setup()

    return {
        "A_q": _A_in["q"],
        "A_k": _A_in["k"],
        "A_v": _A_in["v"],
        "A_shift_k": _A_in["shift_k"],
        "A_ssm_k": _A_in["ssm_k"],
        "A_ssm_D": _A_in["ssm_D"],
        "B_x": _B_in["x"],
        "B_c_kv": _B_in["c_kv"],
        "B_w_q": _B_in["w_q"],
        "B_w_uk": _B_in["w_uk"],
        "B_w_uv": _B_in["w_uv"],
        "B_w_o": _B_in["w_o"],
    }

def reference(A_q, A_k, A_v, A_shift_k, A_ssm_k, A_ssm_D, B_x, B_c_kv, B_w_q, B_w_uk, B_w_uv, B_w_o):
    def _A_ref(q, k, v, shift_k, ssm_k, ssm_D):
        B, S, D = q.shape
        ks = shift_k.shape[-1]
        k_pad = _pad(k, ((0, 0), (ks - 1, 0), (0, 0)))
        k_shift = torch.zeros_like(k)
        for t in range(ks):
            k_shift = k_shift + k_pad[:, t:t + S, :] * shift_k[:, ks - 1 - t][None, None, :]
        kv = k_shift * v
        L = 2 * S
        kv_pad = _pad(kv, ((0, 0), (0, S), (0, 0)))
        kf_pad = _pad(ssm_k, ((0, 0), (0, S)))
        kv_f = (lambda x, axes=(-2,-1): torch.fft.rfft2(x.float(), dim=axes))(kv_pad[:, None, :, :], axes=(1, 2))
        kf_f = (lambda x, axes=(-2,-1): torch.fft.rfft2(x.float(), dim=axes))(kf_pad[:, None, :], axes=(1, 2))
        kf_f = (lambda x, *d: x.permute(*d))(kf_f, 1, 2, 0)
        y_f = kv_f * kf_f[None, :, :, :]
        y = (lambda x, s, axes=(-2,-1): torch.fft.irfft2(x, s=s, dim=axes).to(torch.bfloat16))(y_f, (1, L), axes=(1, 2))[:, 0, :S, :]
        y = y + kv * ssm_D[None, None, :]
        return q * y

    def _B_ref(x, c_kv, w_q, w_uk, w_uv, w_o):
        B, Sq, M = x.shape[0], x.shape[1], x.shape[2]
        Sk = c_kv.shape[1]
        H, D = w_q.shape[1], w_q.shape[2]
        q = torch.einsum("bqm,mhd->bhqd", x, w_q)
        k = torch.einsum("bkc,chd->bhkd", c_kv, w_uk)
        v = torch.einsum("bkc,chd->bhkd", c_kv, w_uv)
        scores = torch.einsum("bhqd,bhkd->bhqk", q, k) * (D ** -0.5)
        off = Sk - Sq
        qi = torch.arange(Sq)[:, None]
        kj = torch.arange(Sk)[None, :]
        cmask = kj <= (qi + off)
        scores = torch.where(cmask[None, None], scores, -1e9)
        p = _softmax(scores, axis=-1)
        ctx = torch.einsum("bhqk,bhkd->bhqd", p, v)
        return torch.einsum("bhqd,hdm->bqm", ctx, w_o)

    a = _A_ref(A_q, A_k, A_v, A_shift_k, A_ssm_k, A_ssm_D)
    b = _B_ref(B_x, B_c_kv, B_w_q, B_w_uk, B_w_uv, B_w_o)
    return torch.concatenate([a, b], axis=-1)
```

```python
class Asm:
    def __init__(self):
        self.L = []
    def __call__(self, s):
        for line in s.split("\n"):
            line = line.strip()
            if line:
                self.L.append(line if line.endswith(":") or line.startswith(".") else "  " + line)
    def ext(self, lst):
        for s in lst: self(s)
    def text(self):
        return "\n".join(self.L) + "\n"

def vr(b, n=1):
    return f"v{b}" if n == 1 else f"v[{b}:{b+n-1}]"
def ar(b, n=1):
    return f"a{b}" if n == 1 else f"a[{b}:{b+n-1}]"
def sr(b, n=1):
    return f"s{b}" if n == 1 else f"s[{b}:{b+n-1}]"

def mfma32(d, a, b, c=None):
    return f"v_mfma_f32_32x32x16_bf16 {d}, {a}, {b}, {c if c is not None else d}"

def kd(name, vgpr, accum, sgpr=102):
    return f""".section .rodata,"a"
.p2align 6
.amdhsa_kernel {name}
  .amdhsa_next_free_vgpr {vgpr}
  .amdhsa_next_free_sgpr {sgpr}
  .amdhsa_accum_offset {accum}
  .amdhsa_group_segment_fixed_size 0
  .amdhsa_kernarg_size 120
  .amdhsa_user_sgpr_count 2
  .amdhsa_user_sgpr_kernarg_segment_ptr 1
  .amdhsa_system_sgpr_workgroup_id_x 1
.end_amdhsa_kernel
.text
"""

def khead(name):
    return f""".globl {name}
.p2align 8
.type {name},@function
{name}:
"""

def weave(main, fill, start=0, per=None):
    out = []
    n = len(main) - start
    k = 0
    for i, m in enumerate(main):
        out.append(m)
        if i >= start:
            if per is not None:
                cnt = per[i - start] if i - start < len(per) else 0
            else:
                j = i - start + 1
                cnt = (len(fill) * j + n - 1) // n - k
            for _ in range(cnt):
                if k < len(fill):
                    f = fill[k]; k += 1
                    if isinstance(f, list): out.extend(f)
                    else: out.append(f)
    while k < len(fill):
        f = fill[k]; k += 1
        if isinstance(f, list): out.extend(f)
        else: out.append(f)
    return out

WS_STAMP = 192 << 20
class Stamps:
    def __init__(self, A, on, base=64, srd=24, wave="s28"):
        self.A, self.on, self.base, self.n, self.srd, self.wave = A, on, base, 0, srd, wave
        self.names = []
    def __call__(self, name, real=False):
        if not self.on: return
        b = self.base + 2 * self.n
        assert b + 1 <= 101
        self.A(f"{'s_memrealtime' if real else 's_memtime'} s[{b}:{b+1}]")
        self.n += 1; self.names.append(name)
    def dump(self, vt=12, st=34, kidx=0):
        if not self.on: return
        A = self.A
        A("s_waitcnt lgkmcnt(0)")
        A(f"s_lshl_b32 s{st}, s2, 3")
        A(f"s_add_u32 s{st}, s{st}, {self.wave}")
        A(f"s_lshl_b32 s{st}, s{st}, 7")
        A(f"s_add_u32 s{st}, s{st}, {WS_STAMP + kidx * (1 << 20)}")
        A(f"v_mov_b32 v{vt+1}, 0")
        for i in range(self.n):
            A(f"v_mov_b32 v{vt}, s{self.base + 2*i}")
            A(f"buffer_store_dword v{vt}, v{vt+1}, s[{self.srd}:{self.srd+3}], s{st} offen offset:{4*i}")
            A("s_nop 1")
```

```python
from asmlib import *
WS_KV = 0
WS_Q = 32 << 20
WS_CTX = 48 << 20
WS_PART = 64 << 20
QSCALE = 0x3e029422
import struct, math
def f32bits(x): return struct.unpack("<I", struct.pack("<f", x))[0]
QSCALE = f32bits(128 ** -0.5 * math.log2(math.e))

def srd(A, d, base, nbytes):
    A(f"s_mov_b32 s{d}, s{base}")
    A(f"s_mov_b32 s{d+1}, s{base+1}")
    A(f"s_mov_b32 s{d+2}, {nbytes}")
    A(f"s_mov_b32 s{d+3}, 0x20000")

def k1(A, name="k1_kernel", st_flags="", stamps=False, nodma=False, nomf=False, nost=False):
    A(khead(name))
    ST = Stamps(A, stamps)
    A("s_cmp_ge_u32 s2, 256")
    A("s_cbranch_scc1 K1_END")
    ST("start_rt", real=True)
    ST("start")
    A("s_load_dwordx4 s[44:47], s[0:1], 48")
    A("s_load_dwordx4 s[48:51], s[0:1], 64")
    A("s_load_dwordx2 s[52:53], s[0:1], 80")
    A("s_load_dwordx2 s[54:55], s[0:1], 112")
    A("v_lshrrev_b32 v12, 6, v0")
    A("v_and_b32 v1, 63, v0")
    A("v_readfirstlane_b32 s28, v12")
    A("s_and_b32 s34, s2, 1")
    A("s_lshl_b32 s34, s34, 2")
    A("s_lshr_b32 s35, s2, 3")
    A("s_and_b32 s36, s35, 3")
    A("s_add_u32 s29, s34, s36")
    A("s_and_b32 s34, s2, 6")
    A("s_lshl_b32 s34, s34, 2")
    A("s_lshr_b32 s35, s35, 2")
    A("s_add_u32 s30, s34, s35")
    A("v_lshrrev_b32 v12, 3, v1")
    A("s_lshl_b32 s34, s28, 3")
    A("v_add_u32 v12, s34, v12")
    A("v_lshrrev_b32 v13, 4, v1")
    A("s_and_b32 s34, s28, 1")
    A("s_lshl_b32 s34, s34, 2")
    A("v_add_u32 v14, s34, v13")
    A("v_and_b32 v15, 7, v1")
    A("v_xor_b32 v14, v14, v15")
    A("v_lshlrev_b32 v14, 4, v14")
    A("v_lshl_add_u32 v2, v12, 10, v14")
    A("v_mul_u32_u24 v3, 1152, v12")
    A("v_add_u32 v3, v3, v14")
    A("s_lshl_b32 s34, s28, 2")
    A("v_add_u32 v12, s34, v13")
    A("v_lshlrev_b32 v12, 13, v12")
    A("v_lshlrev_b32 v14, 2, v13")
    A("v_and_b32 v15, 15, v1")
    A("v_xor_b32 v14, v14, v15")
    A("v_lshl_add_u32 v4, v14, 4, v12")
    A("s_lshl_b32 s34, s30, 8")
    A("v_add_u32 v4, s34, v4")
    A("v_and_b32 v12, 31, v1")
    A("v_lshlrev_b32 v12, 7, v12")
    A("s_lshr_b32 s34, s28, 2")
    A("s_lshl_b32 s34, s34, 14")
    A("v_add_u32 v12, s34, v12")
    A("v_lshrrev_b32 v13, 5, v1")
    A("v_bfe_u32 v14, v1, 1, 3")
    A("v_xor_b32 v14, v14, v13")
    for ks in range(4):
        A(f"v_xor_b32 v15, {2*ks}, v14")
        A(f"v_lshl_add_u32 v{5+ks}, v15, 4, v12")
    def addrW(dst, nb_sgpr):
        A("v_bfe_u32 v12, v1, 2, 2")
        A("v_lshl_add_u32 v14, v13, 3, v12")
        A("v_lshlrev_b32 v14, 8, v14")
        A(f"v_xor_b32 v12, {nb_sgpr}, v12")
        A("v_lshl_add_u32 v14, v12, 6, v14")
        A("v_bfe_u32 v12, v1, 4, 1")
        A("v_lshl_add_u32 v14, v12, 5, v14")
        A("v_and_b32 v12, 3, v1")
        A(f"v_lshl_add_u32 v{dst}, v12, 3, v14")
    A("s_and_b32 s37, s28, 3")
    addrW(9, "s37")
    A("v_lshlrev_b32 v11, 4, v1")
    A("s_waitcnt lgkmcnt(0)")
    srd(A, 4, 46, 2048*512*2)
    srd(A, 8, 44, 2048*576*2)
    srd(A, 12, 50, 512*4096*2)
    srd(A, 16, 52, 512*4096*2)
    srd(A, 20, 48, 576*4096*2)
    srd(A, 24, 54, 1 << 28)
    A("s_lshl_b32 s31, s28, 10")
    A("s_lshl_b32 s32, s29, 18")
    A("s_mov_b32 s33, 0")

    def dma_kv():
        g = []
        for i in range(4):
            g.append([f"s_add_u32 m0, s31, {i*8192}", f"s_add_u32 s34, s32, {i*65536}",
                      "buffer_load_dwordx4 v2, s[4:7], s34 offen lds"])
        for i in range(2):
            g.append([f"s_add_u32 m0, s31, {32768+i*8192}", f"s_add_u32 s34, s33, {i*32*8192}",
                      "buffer_load_dwordx4 v4, s[12:15], s34 offen lds"])
            g.append([f"s_add_u32 m0, s31, {49152+i*8192}", "s_nop 0",
                      "buffer_load_dwordx4 v4, s[16:19], s34 offen lds"])
        g[-1] = g[-1] + ["s_add_u32 s32, s32, 128", f"s_add_u32 s33, s33, {64*8192}", "s_xor_b32 s31, s31, 0x10000"]
        if nodma: g = [[x for x in y if "buffer_load" not in x] for y in g]
        return g
    def dma_q():
        g = []
        for i in range(4):
            g.append([f"s_add_u32 m0, s31, {i*8192}", f"s_add_u32 s34, s32, {i*64*1152}",
                      "buffer_load_dwordx4 v3, s[8:11], s34 offen lds"])
        for i in range(2):
            g.append([f"s_add_u32 m0, s31, {32768+i*8192}", f"s_add_u32 s34, s33, {i*32*8192}",
                      "buffer_load_dwordx4 v4, s[20:23], s34 offen lds"])
        g[-1] = g[-1] + ["s_add_u32 s32, s32, 128", f"s_add_u32 s33, s33, {64*8192}", "s_xor_b32 s31, s31, 0x10000"]
        if nodma: g = [[x for x in y if "buffer_load" not in x] for y in g]
        return g
    for g in dma_kv(): A.ext(g)
    for r in range(64, 256): A(f"v_mov_b32 v{r}, 0")
    for r in range(40, 64): A(f"v_mov_b32 v{r}, 0")
    F = [16, 40]
    def reads_kv(ks, f):
        b = F[f]; o = []
        o.append(f"ds_read_b64_tr_b16 {vr(b+16,2)}, v9 offset:{32768+(16*ks)*256}")
        o.append(f"ds_read_b64_tr_b16 {vr(b+18,2)}, v9 offset:{32768+(16*ks+4)*256}")
        o.append(f"ds_read_b128 {vr(b,4)}, v{5+ks}")
        o.append(f"ds_read_b64_tr_b16 {vr(b+20,2)}, v9 offset:{49152+(16*ks)*256}")
        o.append(f"ds_read_b64_tr_b16 {vr(b+22,2)}, v9 offset:{49152+(16*ks+4)*256}")
        for kb in range(1, 4):
            o.append(f"ds_read_b128 {vr(b+4*kb,4)}, v{5+ks} offset:{kb*4096}")
        return o
    def mf_kv(f):
        b = F[f]; o = []
        for kb in range(4):
            o.append(mfma32(vr(64+16*kb,16), vr(b+16,4), vr(b+4*kb,4)))
            o.append(mfma32(vr(128+16*kb,16), vr(b+4*kb,4), vr(b+20,4)))
        return o
    toggle = [f"v_xor_b32 v{r}, 0x10000, v{r}" for r in (5,6,7,8,9)]
    def kv_step(dma):
        A("s_waitcnt vmcnt(0) lgkmcnt(0)")
        A("s_barrier")
        A.ext(reads_kv(0, 0))
        A.ext(weave(mf_kv(1), dma))
        A.ext(reads_kv(1, 1))
        A("s_waitcnt lgkmcnt(8)")
        A.ext(mf_kv(0))
        A.ext(reads_kv(2, 0))
        A("s_waitcnt lgkmcnt(8)")
        A.ext(mf_kv(1))
        A.ext(reads_kv(3, 1))
        A("s_waitcnt lgkmcnt(8)")
        A.ext(weave(mf_kv(0), toggle, start=2))
    A("s_waitcnt vmcnt(0)")
    ST("first_landed")
    A("s_mov_b32 s41, 0")
    A("K1_KVLOOP:")
    kv_step(dma_kv())
    A("s_add_u32 s41, s41, 1")
    A("s_cmp_lt_u32 s41, 7")
    A("s_cbranch_scc1 K1_KVLOOP")
    A("s_mul_i32 s32, s29, %d" % (256*1152))
    A("s_mov_b32 s33, 0")
    kv_step(dma_q())
    ST("kv_done")
    A("s_lshr_b32 s34, s28, 1")
    A("s_lshl_b32 s34, s34, 13")
    A("s_lshr_b32 s35, s28, 2")
    A("s_lshl_b32 s35, s35, 14")
    A("s_sub_u32 s34, s34, s35")
    for r in range(5, 9): A(f"v_add_u32 v{r}, s34, v{r}")
    A("s_and_b32 s38, s28, 1")
    A("s_lshl_b32 s38, s38, 1")
    A("v_lshrrev_b32 v13, 5, v1")
    addrW(9, "s38")
    A("v_xor_b32 v10, 64, v9")
    A("s_lshl_b32 s40, s30, 20")
    A("s_lshl_b32 s34, s29, 17")
    A("s_add_u32 s40, s40, s34")
    A("s_lshr_b32 s34, s28, 2")
    A("s_lshl_b32 s34, s34, 16")
    A("s_add_u32 s40, s40, s34")
    A("s_lshl_b32 s34, s37, 11")
    A("s_add_u32 s42, s40, s34")
    A("s_lshl_b32 s34, s37, 10")
    A("s_add_u32 s43, s40, s34")
    A("s_add_u32 s43, s43, 16384")
    FQ = [16, 32]
    def reads_q(ks, f):
        b = FQ[f]; o = []
        o.append(f"ds_read_b64_tr_b16 {vr(b+8,2)}, v9 offset:{32768+(16*ks)*256}")
        o.append(f"ds_read_b64_tr_b16 {vr(b+10,2)}, v9 offset:{32768+(16*ks+4)*256}")
        o.append(f"ds_read_b128 {vr(b,4)}, v{5+ks}")
        o.append(f"ds_read_b64_tr_b16 {vr(b+12,2)}, v10 offset:{32768+(16*ks)*256}")
        o.append(f"ds_read_b64_tr_b16 {vr(b+14,2)}, v10 offset:{32768+(16*ks+4)*256}")
        o.append(f"ds_read_b128 {vr(b+4,4)}, v{5+ks} offset:4096")
        return o
    def mf_q(f):
        b = FQ[f]; o = []
        for qb in range(2):
            for nb in range(2):
                o.append(mfma32(vr(192+32*qb+16*nb,16), vr(b+8+4*nb,4), vr(b+4*qb,4)))
        return o
    def kv_store(idx):
        kind = idx & 1; t = (idx >> 1) & 1; kb = idx >> 2
        src = (64 if kind == 0 else 128) + 16*kb + 8*t
        tmp = 48 + 4*(idx % 4)
        o = [f"v_cvt_pk_bf16_f32 v{tmp+j}, v{src+2*j}, v{src+2*j+1}" for j in range(4)]
        if kind == 0:
            off = (kb >> 1)*32768 + (kb & 1)*8192 + t*1024
            o.append(f"s_add_u32 s34, s42, {off}")
        else:
            off = (kb >> 1)*32768 + ((kb & 1)*2 + t)*4096
            o.append(f"s_add_u32 s34, s43, {off}")
        if not nost: o.append(f"buffer_store_dwordx4 {vr(tmp,4)}, v11, s[24:27], s34 offen {st_flags}")
        return o
    toggle_q = [f"v_xor_b32 v{r}, 0x10000, v{r}" for r in (5,6,7,8,9,10)]
    for j in range(9):
        nst_prev = 2 if (1 <= j <= 8 and not nost) else 0
        A(f"s_waitcnt vmcnt({nst_prev}) lgkmcnt(0)")
        A("s_barrier")
        A.ext(reads_q(0, 0))
        dma = dma_q() if j < 8 else []
        prev = mf_kv(1) if j == 0 else mf_q(1)
        A.ext(weave(prev, dma))
        A.ext(reads_q(1, 1))
        A("s_waitcnt lgkmcnt(6)")
        A.ext(mf_q(0))
        A.ext(reads_q(2, 0))
        A("s_waitcnt lgkmcnt(6)")
        if j < 8:
            A.ext(weave(mf_q(1), kv_store(2*j)))
        else:
            A.ext(mf_q(1))
        A.ext(reads_q(3, 1))
        A("s_waitcnt lgkmcnt(6)")
        if j < 8:
            A.ext(weave(mf_q(0), kv_store(2*j+1) + toggle_q))
        else:
            A.ext(mf_q(0))
    A("s_waitcnt lgkmcnt(0)")
    A.ext(mf_q(1))
    ST("q_done")
    A(f"s_mov_b32 s36, {QSCALE}")
    A("s_lshl_b32 s40, s30, 19")
    A(f"s_add_u32 s40, s40, {WS_Q}")
    A("s_lshl_b32 s34, s29, 16")
    A("s_add_u32 s40, s40, s34")
    A("s_lshr_b32 s34, s28, 1")
    A("s_lshl_b32 s34, s34, 14")
    A("s_add_u32 s40, s40, s34")
    A("s_lshl_b32 s34, s38, 11")
    A("s_add_u32 s40, s40, s34")
    A("s_nop 7")
    A("s_nop 3")
    i = 0
    for qb in range(2):
        for nb in range(2):
            for t in range(2):
                src = 192+32*qb+16*nb+8*t
                tmp = 48 + 4*(i % 4); i += 1
                for j in range(8): A(f"v_mul_f32 v{src+j}, s36, v{src+j}")
                for j in range(4): A(f"v_cvt_pk_bf16_f32 v{tmp+j}, v{src+2*j}, v{src+2*j+1}")
                A(f"s_add_u32 s34, s40, {qb*8192 + (2*nb+t)*1024}")
                A(f"buffer_store_dwordx4 {vr(tmp,4)}, v11, s[24:27], s34 offen {st_flags}")
    ST("st_issued")
    if stamps: A("s_waitcnt vmcnt(0)")
    ST("end")
    ST("end_rt", real=True)
    ST.dump()
    A("K1_END:")
    A("s_endpgm")
    A(kd(name, 256, 256))
    if nomf:
        A.L[:] = [l for l in A.L if not ('v_mfma' in l or 'ds_read' in l)]
    return ST.names
```

```python
from asmlib import *
from k1 import srd, WS_KV, WS_Q, WS_CTX, f32bits, QSCALE
def m16(d, a, b, c=None): return f"v_mfma_f32_16x16x32_bf16 {d}, {a}, {b}, {c if c else d}"

def k1(A, name="k1_kernel", st_flags="", stamps=False, nodma=False, nomf=False, nost=False, pf=False):
    A(khead(name))
    ST = Stamps(A, stamps)
    A("s_cmp_ge_u32 s2, 256")
    A("s_cbranch_scc1 K1_END")
    ST("start_rt", real=True); ST("start")
    A("s_load_dwordx4 s[44:47], s[0:1], 48")
    A("s_load_dwordx4 s[48:51], s[0:1], 64")
    A("s_load_dwordx2 s[52:53], s[0:1], 80")
    A("s_load_dwordx2 s[54:55], s[0:1], 112")
    A("v_lshrrev_b32 v12, 6, v0")
    A("v_and_b32 v1, 63, v0")
    A("v_readfirstlane_b32 s28, v12")
    A("s_and_b32 s34, s2, 1")
    A("s_lshl_b32 s34, s34, 2")
    A("s_lshr_b32 s35, s2, 3")
    A("s_and_b32 s36, s35, 3")
    A("s_add_u32 s29, s34, s36")
    A("s_and_b32 s34, s2, 6")
    A("s_lshl_b32 s34, s34, 2")
    A("s_lshr_b32 s35, s35, 2")
    A("s_add_u32 s30, s34, s35")
    A("v_lshrrev_b32 v12, 3, v1")
    A("s_lshl_b32 s34, s28, 3")
    A("v_add_u32 v12, s34, v12")
    A("v_lshrrev_b32 v13, 4, v1")
    A("s_and_b32 s34, s28, 1")
    A("s_lshl_b32 s34, s34, 2")
    A("v_add_u32 v14, s34, v13")
    A("v_and_b32 v15, 7, v1")
    A("v_xor_b32 v14, v14, v15")
    A("v_lshlrev_b32 v14, 4, v14")
    A("v_lshl_add_u32 v2, v12, 10, v14")
    A("v_mul_u32_u24 v3, 1152, v12")
    A("v_add_u32 v3, v3, v14")
    A("s_lshl_b32 s34, s28, 2")
    A("v_add_u32 v12, s34, v13")
    A("v_lshlrev_b32 v12, 13, v12")
    A("s_and_b32 s34, s28, 2")
    A("s_lshl_b32 s34, s34, 1")
    A("v_add_u32 v14, s34, v13")
    A("v_lshlrev_b32 v14, 1, v14")
    A("v_and_b32 v15, 15, v1")
    A("v_xor_b32 v14, v14, v15")
    A("v_lshl_add_u32 v4, v14, 4, v12")
    A("s_lshl_b32 s34, s30, 8")
    A("v_add_u32 v4, s34, v4")
    A("v_and_b32 v12, 15, v1")
    A("v_lshlrev_b32 v12, 7, v12")
    A("s_lshr_b32 s34, s28, 2")
    A("s_lshl_b32 s34, s34, 14")
    A("v_add_u32 v12, s34, v12")
    A("v_bfe_u32 v14, v1, 1, 3")
    A("v_xor_b32 v14, v14, v13")
    for ks in range(2):
        A(f"v_xor_b32 v15, {4*ks}, v14")
        A(f"v_lshl_add_u32 v{5+ks}, v15, 4, v12")
    def addrW(dst, nb_sgpr2):
        A("v_bfe_u32 v12, v1, 2, 2")
        A("v_lshl_add_u32 v14, v13, 3, v12")
        A("v_lshlrev_b32 v14, 8, v14")
        A("v_and_b32 v15, 1, v13")
        A("v_lshl_add_u32 v12, v15, 2, v12")
        A("v_lshlrev_b32 v12, 1, v12")
        A(f"v_xor_b32 v12, {nb_sgpr2}, v12")
        A("v_lshl_add_u32 v14, v12, 4, v14")
        A("v_and_b32 v12, 3, v1")
        A(f"v_lshl_add_u32 v{dst}, v12, 3, v14")
    A("s_and_b32 s37, s28, 3")
    A("s_lshl_b32 s38, s37, 2")
    addrW(7, "s38")
    A("v_xor_b32 v8, 32, v7")
    A("v_lshlrev_b32 v11, 4, v1")
    A("s_waitcnt lgkmcnt(0)")
    srd(A, 4, 46, 2048*512*2); srd(A, 8, 44, 2048*576*2); srd(A, 12, 50, 512*4096*2)
    srd(A, 16, 52, 512*4096*2); srd(A, 20, 48, 576*4096*2); srd(A, 24, 54, 1 << 28)
    A("s_lshl_b32 s31, s28, 10")
    A("s_lshl_b32 s32, s29, 18")
    A("s_mov_b32 s33, 0")
    adv = ["s_add_u32 s32, s32, 128", f"s_add_u32 s33, s33, {64*8192}", "s_xor_b32 s31, s31, 0x10000"]
    def fin(g):
        g[-1] = g[-1] + adv
        if nodma: g = [[x for x in y if "buffer_load" not in x] for y in g]
        return g
    def dma_kv():
        g = []
        for i in range(2):
            g.append([f"s_add_u32 m0, s31, {32768+i*8192}", f"s_add_u32 s34, s33, {i*32*8192}", "buffer_load_dwordx4 v4, s[12:15], s34 offen lds"])
            g.append([f"s_add_u32 m0, s31, {49152+i*8192}", "s_nop 0", "buffer_load_dwordx4 v4, s[16:19], s34 offen lds"])
        for i in range(4):
            g.append([f"s_add_u32 m0, s31, {i*8192}", f"s_add_u32 s34, s32, {i*65536}", "buffer_load_dwordx4 v2, s[4:7], s34 offen lds"])
        return fin(g)
    def dma_q():
        g = []
        for i in range(2):
            g.append([f"s_add_u32 m0, s31, {32768+i*8192}", f"s_add_u32 s34, s33, {i*32*8192}", "buffer_load_dwordx4 v4, s[20:23], s34 offen lds"])
        for i in range(4):
            g.append([f"s_add_u32 m0, s31, {i*8192}", f"s_add_u32 s34, s32, {i*64*1152}", "buffer_load_dwordx4 v3, s[8:11], s34 offen lds"])
        return fin(g)
    for g in dma_kv(): A.ext(g)
    npf = 0
    if pf:
        A("s_lshr_b32 s35, s2, 3")
        A("s_and_b32 s34, s2, 1")
        A("s_lshl_b32 s34, s34, 20")
        A("s_lshl_b32 s36, s35, 15")
        A("s_add_u32 s34, s34, s36")
        A("v_lshlrev_b32 v12, 7, v0")
        A("s_cmp_lt_u32 s28, 4")
        A("s_cbranch_scc0 K1_PF1")
        A("buffer_load_dword v192, v12, s[4:7], s34 offen")
        A("K1_PF1:")
        A("v_lshrrev_b32 v13, 4, v0")
        A("v_and_b32 v13, 15, v13")
        A("v_lshlrev_b32 v13, 13, v13")
        A("v_and_b32 v14, 15, v0")
        A("v_lshl_add_u32 v13, v14, 7, v13")
        A("s_lshl_b32 s34, s35, 17")
        A("s_and_b32 s36, s2, 6")
        A("s_lshl_b32 s36, s36, 10")
        A("s_add_u32 s34, s34, s36")
        A("s_cmp_lt_u32 s28, 4")
        A("s_cbranch_scc0 K1_PF2")
        A("buffer_load_dword v193, v13, s[12:15], s34 offen")
        A("s_branch K1_PF3")
        A("K1_PF2:")
        A("buffer_load_dword v193, v13, s[16:19], s34 offen")
        A("K1_PF3:")
        A("v_lshrrev_b32 v13, 4, v1")
    for r in range(64, 192): A(f"v_mov_b32 v{r}, 0")
    for r in range(16, 64): A(f"v_mov_b32 v{r}, 0")
    WS_ = [16, 32]; RING = 48; R = 4
    def accK(T, kb): return 64 + 32*T + 4*kb
    def accV(T, kb): return 128 + 4*(2*kb + T)
    def wreads_kv(ks):
        b = WS_[ks]; o = []
        for mat in range(2):
            for nb in range(2):
                for half in range(2):
                    o.append(f"ds_read_b64_tr_b16 {vr(b+8*mat+4*nb+2*half,2)}, v{7+nb} offset:{32768+16384*mat+(32*ks+4*half)*256}")
        return o
    def c_read(i):
        ks, kb = divmod(i, 8)
        return f"ds_read_b128 {vr(RING+4*(i%R),4)}, v{5+ks} offset:{kb*2048}"
    def c_mf(i):
        ks, kb = divmod(i, 8); b = WS_[ks]; f = vr(RING+4*(i%R),4)
        return [m16(vr(accK(0,kb),4), vr(b,4), f), m16(vr(accK(1,kb),4), vr(b+4,4), f),
                m16(vr(accV(0,kb),4), f, vr(b+8,4)), m16(vr(accV(1,kb),4), f, vr(b+12,4))]
    TAIL = 2
    def step(nitems, per_ks, wreads, rdf, mff, prev_tail, dma, extra, toggle, first_wait):
        A(first_wait)
        A("s_barrier")
        q = []
        def issue(instrs, tag):
            for x in instrs: A(x); q.append(tag)
        def wait_for(tags):
            last = max(i for i, t in enumerate(q) if t in tags)
            n = len(q) - 1 - last
            A(f"s_waitcnt lgkmcnt({min(n,15)})")
        issue(wreads(0), "w0")
        nxt = 0
        while nxt < R - TAIL:
            issue([rdf(nxt)], nxt); nxt += 1
        half = len(prev_tail) // TAIL
        dq = list(dma)
        for t in range(TAIL):
            mm = prev_tail[t*half:(t+1)*half]
            take = dq[:(len(dma)+TAIL-1)//TAIL]; dq = dq[len(take):]
            A.ext(weave(mm, take))
            issue([rdf(nxt)], nxt); nxt += 1
        ex = list(extra)
        for i in range(nitems - TAIL):
            ks = i // per_ks
            wait_for({i, f"w{ks}"})
            mm = mff(i)
            fill = []
            if i == 1: pass
            A.ext(mm)
            if nxt < nitems:
                issue([rdf(nxt)], nxt); nxt += 1
            if i == 1 and nitems > per_ks:
                issue(wreads(1), "w1")
            if ex and i >= 2:
                A.ext(ex.pop(0))
        for e in ex: A.ext(e)
        A.ext(toggle)
        return [m for i in range(nitems-TAIL, nitems) for m in mff(i)]
    tog = [f"v_xor_b32 v{r}, 0x10000, v{r}" for r in (5,6,7,8)]
    kv_tail = [m for i in range(16-TAIL, 16) for m in c_mf(i)]
    if stamps: A("s_waitcnt vmcnt(0)" if not pf else "s_waitcnt vmcnt(1)")
    ST("first_landed")
    if pf:
        step(16, 8, wreads_kv, c_read, c_mf, kv_tail, dma_kv(), [], tog, "s_waitcnt vmcnt(1) lgkmcnt(0)")
    A(f"s_mov_b32 s41, {1 if pf else 0}")
    A("K1_KVLOOP:")
    step(16, 8, wreads_kv, c_read, c_mf, kv_tail, dma_kv(), [], tog, "s_waitcnt vmcnt(0) lgkmcnt(0)")
    A("s_add_u32 s41, s41, 1")
    A("s_cmp_lt_u32 s41, 7")
    A("s_cbranch_scc1 K1_KVLOOP")
    A("s_mul_i32 s32, s29, %d" % (256*1152))
    A("s_mov_b32 s33, 0")
    step(16, 8, wreads_kv, c_read, c_mf, kv_tail, dma_q(), [], tog, "s_waitcnt vmcnt(0) lgkmcnt(0)")
    ST("kv_done")
    for r in range(192, 256): A(f"v_mov_b32 v{r}, 0")
    A("s_lshr_b32 s34, s28, 1")
    A("s_lshl_b32 s34, s34, 13")
    A("s_lshr_b32 s35, s28, 2")
    A("s_lshl_b32 s35, s35, 14")
    A("s_sub_u32 s34, s34, s35")
    for r in (5, 6): A(f"v_add_u32 v{r}, s34, v{r}")
    A("s_and_b32 s39, s28, 1")
    A("s_lshl_b32 s38, s39, 3")
    addrW(7, "s38")
    A("v_xor_b32 v8, 32, v7"); A("v_xor_b32 v9, 64, v7"); A("v_xor_b32 v10, 96, v7")
    A("s_lshl_b32 s40, s30, 20")
    A("s_lshl_b32 s34, s29, 17")
    A("s_add_u32 s40, s40, s34")
    A("s_lshr_b32 s34, s28, 2")
    A("s_lshl_b32 s34, s34, 16")
    A("s_add_u32 s40, s40, s34")
    A("s_lshl_b32 s34, s37, 10")
    A("s_add_u32 s42, s40, s34")
    A("s_lshl_b32 s34, s37, 11")
    A("s_add_u32 s43, s40, s34")
    A("s_add_u32 s43, s43, 16384")
    def accQ(nb, qb): return 192 + 16*qb + 4*nb
    def wreads_q(ks):
        b = WS_[ks]; o = []
        for nb in range(4):
            for half in range(2):
                o.append(f"ds_read_b64_tr_b16 {vr(b+4*nb+2*half,2)}, v{7+nb} offset:{32768+(32*ks+4*half)*256}")
        return o
    def x_read(i):
        ks, qb = divmod(i, 4)
        return f"ds_read_b128 {vr(RING+4*(i%R),4)}, v{5+ks} offset:{qb*2048}"
    def x_mf(i):
        ks, qb = divmod(i, 4); b = WS_[ks]; f = vr(RING+4*(i%R),4)
        return [m16(vr(accQ(nb,qb),4), vr(b+4*nb,4), f) for nb in range(4)]
    def kv_store(idx):
        kind = idx & 1; n = idx >> 1
        tmp = 12 if False else None
        t = [12, 13, 14, 15]
        if kind == 0:
            kb = n; src = [accK(0,kb)+r for r in range(4)] + [accK(1,kb)+r for r in range(4)]
            off = (kb >> 2)*32768 + (kb & 3)*4096; base = "s42"
        else:
            kp, T = n >> 1, n & 1
            src = [accV(T,2*kp)+r for r in range(4)] + [accV(T,2*kp+1)+r for r in range(4)]
            off = (kp >> 1)*32768 + (kp & 1)*8192 + T*1024; base = "s43"
        d = src[0]
        o = [f"v_cvt_pk_bf16_f32 v{d+j}, v{src[2*j]}, v{src[2*j+1]}" for j in range(4)]
        o.append(f"s_add_u32 s34, {base}, {off}")
        if not nost: o.append(f"buffer_store_dwordx4 {vr(d,4)}, v11, s[24:27], s34 offen {st_flags}")
        return o
    togq = [f"v_xor_b32 v{r}, 0x10000, v{r}" for r in (5,6,7,8,9,10)]
    prev = kv_tail
    for j in range(9):
        nst_prev = 2 if (1 <= j <= 8 and not nost) else 0
        ex = [kv_store(2*j), kv_store(2*j+1)] if j < 8 else []
        prev = step(8, 4, wreads_q, x_read, x_mf, prev, dma_q() if j < 8 else [], ex, togq if j < 8 else [], f"s_waitcnt vmcnt({nst_prev}) lgkmcnt(0)")
    A("s_waitcnt lgkmcnt(0)")
    A.ext(prev)
    ST("q_done")
    A(f"s_mov_b32 s36, {QSCALE}")
    A("s_lshl_b32 s40, s30, 19")
    A(f"s_add_u32 s40, s40, {WS_Q}")
    A("s_lshl_b32 s34, s29, 16")
    A("s_add_u32 s40, s40, s34")
    A("s_lshr_b32 s34, s28, 1")
    A("s_lshl_b32 s34, s34, 14")
    A("s_add_u32 s40, s40, s34")
    A("s_lshl_b32 s34, s39, 11")
    A("s_add_u32 s40, s40, s34")
    A("s_nop 7")
    for qb in range(4):
        for j in range(2):
            src = accQ(2*j, qb)
            for r in range(8): A(f"v_mul_f32 v{src+r}, s36, v{src+r}")
            for r in range(4): A(f"v_cvt_pk_bf16_f32 v{src+r}, v{src+2*r}, v{src+2*r+1}")
            A(f"s_add_u32 s34, s40, {(qb>>1)*8192 + ((qb&1)*4 + j)*1024}")
            A(f"buffer_store_dwordx4 {vr(src,4)}, v11, s[24:27], s34 offen {st_flags}")
    ST("st_issued")
    if stamps: A("s_waitcnt vmcnt(0)")
    ST("end"); ST("end_rt", real=True)
    ST.dump()
    A("K1_END:")
    A("s_endpgm")
    A(kd(name, 256, 256))
    if nomf:
        A.L[:] = [l for l in A.L if not ('v_mfma' in l or 'ds_read' in l)]
    return ST.names
```

```python
from asmlib import *
from k1 import srd, WS_KV, WS_Q, WS_CTX, f32bits

def k2(A, name="k2_kernel", SH=32, stamps=False, D=8, prio=True, tail=4, st_flags="", g1dma="sm", nodma=False, nosm=False):
    A(khead(name))
    ST = Stamps(A, stamps, base=64, srd=4, wave="s28")
    V_LANE16, V_KA, V_VA = 2, 3, 4
    V_L = 5
    V_LT = 7
    V_THR = 9
    V_T = 10
    S0, P0, NM0, O0 = 24, 56, 72, 88
    ACC = 152
    AQ, AF, NB = 0, 32, 16
    nq = 1 if SH == 32 else 2
    A("s_cmp_ge_u32 s2, 256")
    A("s_cbranch_scc1 K2_END")
    ST("start_rt", real=True); ST("start")
    A("s_load_dwordx2 s[8:9], s[0:1], 112")
    A("v_lshrrev_b32 v10, 6, v0")
    A("v_and_b32 v1, 63, v0")
    A("v_readfirstlane_b32 s28, v10")
    A("v_lshlrev_b32 v2, 4, v1")
    A("s_and_b32 s34, s2, 7")
    A("s_lshl_b32 s34, s34, 2")
    A("s_lshr_b32 s47, s2, 3")
    A("s_and_b32 s47, s47, 3")
    A("s_add_u32 s30, s34, s47")
    A("s_lshr_b32 s29, s2, 5")
    A("s_lshl_b32 s32, s29, 1")
    A("s_sub_u32 s39, 31, s32")
    A("s_add_u32 s32, s32, 2")
    A("s_lshl_b32 s41, s28, 11")
    A("s_lshl_b32 s40, s30, 20")
    A("s_add_u32 s40, s40, s41")
    A("s_and_b32 s47, s28, 3")
    A("s_lshl_b32 s48, s29, 2")
    A("s_add_u32 s49, s48, s47")
    A("s_sub_u32 s50, 60, s48")
    A("s_add_u32 s50, s50, s47")
    A("s_lshl_b32 s51, s30, 19")
    A(f"s_add_u32 s51, s51, {WS_Q}")
    A("s_lshl_b32 s46, s50, 13")
    A("s_add_u32 s46, s46, s51")
    A("s_cmp_lt_u32 s28, 4")
    A("s_cselect_b32 s52, s49, s50")
    A("s_lshl_b32 s33, s52, 5")
    A("s_lshl_b32 s53, s52, 13")
    A("s_add_u32 s53, s53, s51")
    A("s_lshl_b32 s54, s30, 13")
    A(f"s_add_u32 s54, s54, {WS_CTX}")
    A("s_lshl_b32 s45, s49, 18")
    A("s_add_u32 s45, s45, s54")
    A("s_lshl_b32 s55, s50, 18")
    A("s_add_u32 s55, s55, s54")
    A(f"s_mov_b32 s44, {f32bits(2.0**24)}")
    A("s_waitcnt lgkmcnt(0)")
    srd(A, 4, 8, 1 << 28)

    def dma_part(kind):
        idx = "s37" if kind == 0 else "s38"
        o = [f"s_and_b32 s34, {idx}, 3", "s_lshl_b32 s34, s34, 14", "s_add_u32 s34, s34, s41"]
        o.append(f"s_add_u32 m0, s34, {65536*kind}")
        o.append(f"s_lshl_b32 s34, {idx}, 15")
        o.append("s_add_u32 s34, s34, s40")
        if kind: o.append("s_add_u32 s34, s34, 16384")
        if not nodma:
            o.append("buffer_load_dwordx4 v2, s[4:7], s34 offen lds")
            o.append("buffer_load_dwordx4 v2, s[4:7], s34 offen offset:1024 lds")
        o.append(f"s_add_u32 {idx}, {idx}, 1")
        return o
    def qload(base):
        o = []
        for i in range(8):
            if i == 4: o.append(f"s_add_u32 s34, {base}, 4096")
            o.append(f"buffer_load_dwordx4 {ar(AQ+4*i,4)}, v2, s[4:7], {base if i < 4 else 's34'} offen offset:{(i%4)*1024}")
        return o
    uid = [0]
    def dma_step(g):
        uid[0] += 1; u = f"{g}_{uid[0]}"
        A("s_cmp_gt_u32 s37, s39"); A(f"s_cbranch_scc1 K2_NK_{u}")
        A.ext(dma_part(0))
        A("s_add_u32 s47, s31, 1"); A("s_cmp_lt_u32 s47, s32"); A(f"s_cbranch_scc1 K2_NK_{u}")
        A("s_cmp_gt_u32 s37, s39"); A(f"s_cbranch_scc1 K2_NK_{u}")
        A.ext(dma_part(0))
        A(f"K2_NK_{u}:")
        A("s_cmp_gt_u32 s38, s39"); A(f"s_cbranch_scc1 K2_NV_{u}")
        A.ext(dma_part(1))
        A("s_cmp_lt_u32 s31, s32"); A(f"s_cbranch_scc1 K2_NV_{u}")
        A("s_cmp_gt_u32 s38, s39"); A(f"s_cbranch_scc1 K2_NV_{u}")
        A.ext(dma_part(1))
        A(f"K2_NV_{u}:")

    def m16(d, a, b, c): return f"v_mfma_f32_16x16x32_bf16 {d}, {a}, {b}, {c}"
    def Sreg(qs, kT): return S0 + 16*qs + 4*kT
    def Oreg(qs, d16): return O0 + (d16//4)*32 + qs*16 + (d16 % 4)*4
    def qk_items():
        it = []
        if SH == 32:
            for kb in range(2):
                for ds in range(8):
                    d = vr(S0+16*kb, 16); c = vr(NM0, 16) if ds == 0 else d
                    it.append((V_KA, (kb*8+ds)*1024, (lambda f, d=d, c=c, ds=ds: [mfma32(d, f, ar(AQ+4*ds,4), c)])))
        else:
            for kT in range(4):
                for ds in range(4):
                    def fn(f, kT=kT, ds=ds):
                        return [m16(vr(Sreg(qs,kT),4), f, ar(AQ+16*qs+4*ds,4), vr(NM0+4*qs,4) if ds == 0 else vr(Sreg(qs,kT),4)) for qs in range(2)]
                    it.append((V_KA, (kT*4+ds)*1024, fn))
        return it
    def pv_items():
        it = []
        if SH == 32:
            for t in range(4):
                for db in range(4):
                    d = vr(O0+16*db, 16)
                    it.append((V_VA, (t*4+db)*1024, (lambda f, d=d, t=t: [mfma32(d, f, vr(P0+4*t,4), d)])))
        else:
            for ks in range(2):
                for d16 in range(8):
                    def fn(f, ks=ks, d16=d16):
                        return [m16(vr(Oreg(qs,d16),4), f, vr(P0+8*qs+4*ks,4), vr(Oreg(qs,d16),4)) for qs in range(2)]
                    it.append((V_VA, (ks*8+d16)*1024, fn))
        return it
    def rd(items, i):
        a, off, _ = items[i]
        return f"ds_read_b128 {ar(AF+4*(i % NB),4)}, v{a} offset:{off}"
    def mphase(items, pre_issued, defer=0, extra=None):
        n = len(items); issued = pre_issued
        while issued < min(D, n):
            A(rd(items, issued)); issued += 1
        for i in range(n - defer):
            A(f"s_waitcnt lgkmcnt({issued - (i+1)})")
            A.ext(items[i][2](ar(AF+4*(i % NB),4)))
            if issued < n:
                A(rd(items, issued)); issued += 1
            if extra and i in extra: A.ext(extra[i])
        while issued < n:
            A(rd(items, issued)); issued += 1
        return [m for i in range(n - defer, n) for m in items[i][2](ar(AF+4*(i % NB),4))]

    def pairs():
        o = []
        if SH == 32:
            for k in range(16): o.append((S0+2*k, S0+2*k+1, P0+k, 0))
        else:
            for ks in range(2):
                for qs in range(2):
                    for half in range(2):
                        for k in range(2):
                            s = Sreg(qs, 2*ks+half) + 2*k
                            o.append((s, s+1, P0+8*qs+4*ks+2*half+k, qs))
        return o
    def sm_common():
        o = []
        pr = pairs()
        NT = 4
        seen = set()
        def fin(k):
            a, b, p, qs = pr[k]; t = V_T + 2*(k % NT)
            if SH == 32:
                la, lb = V_LT, V_LT+1
                r = []
                r.append(f"v_mov_b32 v{la}, v{t}" if k == 0 else f"v_add_f32 v{la}, v{la}, v{t}")
                r.append(f"v_mov_b32 v{lb}, v{t+1}" if k == 0 else f"v_add_f32 v{lb}, v{lb}, v{t+1}")
            else:
                la = V_LT + qs
                r = []
                if qs not in seen:
                    seen.add(qs); r.append(f"v_add_f32 v{la}, v{t}, v{t+1}")
                else:
                    r.append(f"v_add_f32 v{la}, v{la}, v{t}"); r.append(f"v_add_f32 v{la}, v{la}, v{t+1}")
            r.append(f"v_cvt_pk_bf16_f32 v{p}, v{t}, v{t+1}")
            return r
        for k in range(16):
            a, b, p, qs = pr[k]; t = V_T + 2*(k % NT)
            o.append(f"v_exp_f32 v{t}, v{a}")
            o.append(f"v_exp_f32 v{t+1}, v{b}")
            if k >= 1: o.extend(fin(k-1))
        o.append("s_nop 0")
        o.extend(fin(15))
        return o
    def xlane(op, v, t1, t2):
        o = [f"v_mov_b32 v{t1}, v{v}", f"v_mov_b32 v{t2}, v{v}", "s_nop 1", f"v_permlane32_swap_b32 v{t1}, v{t2}", "s_nop 1", f"{op} v{v}, v{t1}, v{t2}"]
        if SH == 16:
            o += [f"v_mov_b32 v{t1}, v{v}", f"v_mov_b32 v{t2}, v{v}", "s_nop 1", f"v_permlane16_swap_b32 v{t1}, v{t2}", "s_nop 1", f"{op} v{v}, v{t1}, v{t2}"]
        return o
    def sregs(qs): return list(range(S0, S0+32)) if SH == 32 else list(range(S0+16*qs, S0+16*qs+16))
    def oregs(qs): return list(range(O0, O0+64)) if SH == 32 else [Oreg(qs, d)+r for d in range(8) for r in range(4)]
    def nmregs(qs): return list(range(NM0, NM0+16)) if SH == 32 else list(range(NM0+4*qs, NM0+4*qs+4))
    def rare(g):
        A(f"K2_CHK_{g}:")
        A("s_cmp_eq_u32 s42, 2")
        A(f"s_cbranch_scc1 K2_CHKRET_{g}")
        A(f"K2_RARE_{g}:")
        A("s_nop 7"); A("s_nop 3")
        for qs in range(nq):
            s = sregs(qs); m = V_T + qs
            A(f"v_max3_f32 v{m}, v{s[0]}, v{s[1]}, v{s[2]}")
            for i in range(3, len(s)-1, 2): A(f"v_max3_f32 v{m}, v{m}, v{s[i]}, v{s[i+1]}")
            A(f"v_max_f32 v{m}, v{m}, v{s[-1]}")
            A.ext(xlane("v_max_f32", m, V_T+2, V_T+3))
            A(f"v_max_f32 v{m}, s43, v{m}")
            for r in s: A(f"v_sub_f32 v{r}, v{r}, v{m}")
            for r in nmregs(qs): A(f"v_sub_f32 v{r}, v{r}, v{m}")
        A("s_cmp_lg_u32 s42, 0")
        A(f"s_cbranch_scc1 K2_RARE_F_{g}")
        for qs in range(nq):
            m = V_T + qs
            A(f"v_sub_f32 v{V_T+4}, 0, v{m}")
            A(f"v_exp_f32 v{V_T+4}, v{V_T+4}")
            A("s_nop 0")
            A(f"v_mul_f32 v{V_L+qs}, v{V_L+qs}, v{V_T+4}")
            for r in oregs(qs): A(f"v_mul_f32 v{r}, v{r}, v{V_T+4}")
        A(f"K2_RARE_F_{g}:")
        A("s_mov_b32 s42, 2")
        A("s_mov_b32 s43, 0")
        A(f"s_branch K2_SM_{g}")
    def maskblk(g):
        A(f"K2_MASK_{g}:")
        A("s_lshl_b32 s34, s35, 6")
        A("s_sub_u32 s34, s33, s34")
        if SH == 32:
            A(f"v_and_b32 v{V_THR}, 31, v1"); A(f"v_lshrrev_b32 v{V_T}, 5, v1")
        else:
            A(f"v_and_b32 v{V_THR}, 15, v1"); A(f"v_lshrrev_b32 v{V_T}, 4, v1")
        A(f"v_lshlrev_b32 v{V_T}, 2, v{V_T}")
        A(f"v_sub_u32 v{V_THR}, v{V_THR}, v{V_T}")
        A(f"v_add_u32 v{V_THR}, s34, v{V_THR}")
        A(f"v_mov_b32 v{V_T}, 0xff800000")
        A("s_nop 7")
        el = []
        if SH == 32:
            for kb in range(2):
                for r in range(16): el.append((S0+16*kb+r, 32*kb + 8*(r//4) + r % 4))
        else:
            for qs in range(2):
                for kT in range(4):
                    for r in range(4): el.append((Sreg(qs,kT)+r, 16*kT + r - 16*qs))
        for i0 in range(0, 32, 4):
            for k in range(4):
                A(f"v_cmp_gt_i32 s[{56+2*k}:{57+2*k}], {el[i0+k][1]}, v{V_THR}")
            for k in range(4):
                if k == 0: A("s_nop 0")
                A(f"v_cndmask_b32 v{el[i0+k][0]}, v{el[i0+k][0]}, v{V_T}, s[{56+2*k}:{57+2*k}]")
        A(f"s_branch K2_MASKRET_{g}")
    def softmax(g, fill=None):
        A("s_lshl_b32 s34, s35, 6")
        A("s_add_u32 s34, s34, 63")
        A("s_cmp_gt_u32 s34, s33")
        A(f"s_cbranch_scc1 K2_MASK_{g}")
        A(f"K2_MASKRET_{g}:")
        A("s_cmp_lg_u32 s42, 0")
        A(f"s_cbranch_scc1 K2_RARE_{g}")
        A(f"K2_SM_{g}:")
        body = sm_common()
        if nosm: body = body[-6:]
        A.ext(body)
        if SH == 32:
            A(f"v_add_f32 v{V_LT}, v{V_LT}, v{V_LT+1}")
            A(f"v_cmp_nle_f32 vcc, v{V_LT}, v{V_THR+0}" if False else f"v_cmp_nge_f32 vcc, s44, v{V_LT}")
        else:
            A(f"v_max_f32 v{V_T}, v{V_LT}, v{V_LT+1}")
            A(f"v_add_f32 v{V_T+1}, v{V_LT}, v{V_LT+1}")
            A(f"v_cmp_nge_f32 vcc, s44, v{V_T+1}")
        A(f"s_cbranch_vccnz K2_CHK_{g}")
        A(f"K2_CHKRET_{g}:")
        A("s_mov_b32 s42, 0")
        for qs in range(nq): A(f"v_add_f32 v{V_L+qs}, v{V_L+qs}, v{V_LT+qs}")
    def set_addr(v, tile, base):
        A(f"s_and_b32 s34, {tile}, 3"); A("s_lshl_b32 s34, s34, 14")
        if base: A(f"s_add_u32 s34, s34, {base}")
        A(f"v_add_u32 v{v}, s34, v2")
    def ctx_frags(regs_fn):
        pass
    def pack_src(i):
        if SH == 32:
            return [O0 + 8*i + k for k in range(8)], 0, i // 4
        qs, j = i // 4, i % 4
        return [Oreg(qs, 2*j)+k for k in range(4)] + [Oreg(qs, 2*j+1)+k for k in range(4)], qs, j // 2

    A("s_mov_b32 s37, 0"); A("s_mov_b32 s38, 0")
    A.ext(dma_part(0))
    A.ext(qload("s53"))
    A.ext(dma_part(0)); A.ext(dma_part(1))
    for r in range(NM0, O0+64): A(f"v_mov_b32 v{r}, 0")
    A(f"v_mov_b32 v{V_L}, 0"); A(f"v_mov_b32 v{V_L+1}, 0")
    A("s_mov_b32 s42, 1"); A("s_mov_b32 s43, 0xff800000")
    A("s_mov_b32 s31, 0"); A("s_mov_b32 s35, 0")
    A("s_waitcnt vmcnt(4)")
    A("s_barrier")
    ST("k0_landed")
    A("s_cmp_ge_u32 s28, 4")
    A("s_cbranch_scc1 K2_G1")
    set_addr(V_KA, "s35", 0)
    qk = qk_items(); pv = pv_items()
    tl = mphase(qk, 0, defer=tail)
    A("s_branch K2_G0_BAR")
    A("K2_G0_LOOP:")
    A.ext(tl)
    if prio: A("s_setprio 0")
    A("s_add_u32 s47, s31, 1"); A("s_cmp_eq_u32 s47, s32"); A("s_cbranch_scc0 K2_G0_NOQ")
    A.ext(qload("s46"))
    A("K2_G0_NOQ:")
    dma_step("g0")
    A("s_cmp_eq_u32 s31, s32"); A("s_cbranch_scc1 K2_EPI_A")
    A("K2_EPI_A_RET:")
    set_addr(V_VA, "s35", 65536)
    A("s_add_u32 s47, s31, 1"); A("s_cmp_gt_u32 s47, s32"); A("s_cselect_b32 s36, 2, 1"); A("s_add_u32 s36, s36, s35")
    set_addr(V_KA, "s36", 0)
    pre = min(D, 8)
    for i in range(pre): A(rd(pv + qk, i))
    softmax("g0")
    if prio: A("s_setprio 1")
    A("s_cmp_eq_u32 s31, 16"); A("s_cbranch_scc1 K2_G0_LAST")
    A("s_add_u32 s47, s31, 1"); A("s_cmp_eq_u32 s47, s32"); A("s_cbranch_scc1 K2_SWITCH")
    A("K2_SWITCH_RET:")
    tl2 = mphase(pv + qk, pre, defer=tail)
    assert tl2 == tl or NB != 16, (tl, tl2)
    A("s_mov_b32 s35, s36")
    A("s_add_u32 s31, s31, 1")
    A("K2_G0_BAR:")
    A("s_waitcnt vmcnt(0) lgkmcnt(0)")
    A("s_barrier")
    A("s_branch K2_G0_LOOP")
    A("K2_SWITCH:")
    A("s_waitcnt vmcnt(0)")
    for qs in range(nq):
        for r in nmregs(qs): A(f"v_mov_b32 v{r}, 0")
    A("s_branch K2_SWITCH_RET")
    A("K2_EPI_A:")
    for qs in range(nq):
        A.ext(xlane("v_add_f32", V_L+qs, V_T, V_T+1))
        A(f"v_rcp_f32 v{V_L+qs}, v{V_L+qs}")
    A("s_nop 0")
    for i in range(8):
        src, qs, _ = pack_src(i); t = V_T + 4 + 4*(i % 2)
        for r in src: A(f"v_mul_f32 v{r}, v{r}, v{V_L+qs}")
        for k in range(4): A(f"v_cvt_pk_bf16_f32 v{t+k}, v{src[2*k]}, v{src[2*k+1]}")
        if i == 4: A("s_add_u32 s45, s45, 4096")
        A(f"buffer_store_dwordx4 {vr(t,4)}, v2, s[4:7], s45 offen offset:{(i%4)*1024} {st_flags}")
        for r in src: A(f"v_mov_b32 v{r}, 0")
    A(f"v_mov_b32 v{V_L}, 0"); A(f"v_mov_b32 v{V_L+1}, 0")
    A("s_mov_b32 s42, 1"); A("s_mov_b32 s43, 0xff800000")
    A("s_lshl_b32 s33, s50, 5")
    A("s_branch K2_EPI_A_RET")
    rare("g0"); maskblk("g0")
    A("K2_G0_LAST:")
    mphase(pv, pre)
    if prio: A("s_setprio 0")
    A("s_waitcnt vmcnt(0) lgkmcnt(0)")
    A("s_barrier")
    A("s_branch K2_MERGE")
    A("K2_G1:")
    A("s_waitcnt vmcnt(0)")
    A("s_barrier")
    if prio: A("s_setprio 1")
    set_addr(V_KA, "s35", 0)
    mphase(qk, 0)
    A("s_branch K2_G1_V")
    A("K2_G1_LOOP:")
    if prio: A("s_setprio 1")
    mphase(pv + qk, 0)
    A("K2_G1_V:")
    if prio: A("s_setprio 0")
    dma_step("g1")
    softmax("g1")
    set_addr(V_VA, "s35", 65536)
    A("s_add_u32 s31, s31, 1")
    A("s_cmp_ge_u32 s31, s32"); A("s_cselect_b32 s36, 2, 1"); A("s_add_u32 s35, s35, s36")
    set_addr(V_KA, "s35", 0)
    A("s_waitcnt vmcnt(0)")
    A("s_barrier")
    A("s_cmp_lt_u32 s31, 17")
    A("s_cbranch_scc1 K2_G1_LOOP")
    mphase(pv, 0)
    A("s_branch K2_MERGE")
    rare("g1"); maskblk("g1")
    A("K2_MERGE:")
    ST("loop_done")
    for qs in range(nq): A.ext(xlane("v_add_f32", V_L+qs, V_T, V_T+1))
    A("s_lshl_b32 s34, s28, 13")
    A(f"v_add_u32 v{V_KA}, s34, v2")
    A("s_xor_b32 s47, s34, 0x8000")
    A(f"v_add_u32 v{V_VA}, s47, v2")
    A("s_lshl_b32 s34, s28, 10")
    A("s_add_u32 s34, s34, 0x20000")
    A(f"v_add_u32 v{V_T+8}, s34, v2")
    A(f"v_xor_b32 v{V_T+9}, 0x1000, v{V_T+8}")
    A(f"v_mov_b32 v{V_T+4}, v{NM0}")
    A(f"v_mov_b32 v{V_T+5}, v{NM0+4}")
    A(f"v_mov_b32 v{V_T+6}, v{V_L}")
    A(f"v_mov_b32 v{V_T+7}, v{V_L+1}")
    A(f"ds_write_b128 v{V_T+8}, {vr(V_T+4,4)}")
    A("s_cmp_ge_u32 s28, 4")
    A("s_cbranch_scc1 K2_MG1")
    for half, lab in ((0, "K2_MG0"), (1, "K2_MG1")):
        if half == 1: A(f"{lab}:")
        send = O0 + 32*(1-half); keep = O0 + 32*half
        A("s_nop 7")
        for i in range(8): A(f"ds_write_b128 v{V_KA}, {vr(send+4*i,4)} offset:{i*1024}")
        A("s_waitcnt lgkmcnt(0)")
        A("s_barrier")
        A(f"ds_read_b128 {vr(S0,4)}, v{V_T+9}")
        for i in range(8): A(f"ds_read_b128 {vr(send+4*i,4)}, v{V_VA} offset:{i*1024}")
        A("s_waitcnt lgkmcnt(8)")
        for qs in range(nq):
            own_nm = V_T+4+qs; oth_nm = S0+qs; fo = S0+4+2*qs; fp = S0+5+2*qs; mn = S0+8
            A(f"v_min_f32 v{mn}, v{own_nm}, v{oth_nm}")
            A(f"v_sub_f32 v{fo}, v{mn}, v{own_nm}")
            A(f"v_sub_f32 v{fp}, v{mn}, v{oth_nm}")
            A(f"v_exp_f32 v{fo}, v{fo}")
            A(f"v_exp_f32 v{fp}, v{fp}")
            A("s_nop 0")
            A(f"v_mul_f32 v{mn}, v{fo}, v{V_L+qs}")
            A(f"v_fma_f32 v{mn}, v{fp}, v{S0+2+qs}, v{mn}")
            A(f"v_rcp_f32 v{mn}, v{mn}")
            A("s_nop 0")
            A(f"v_mul_f32 v{fo}, v{fo}, v{mn}")
            A(f"v_mul_f32 v{fp}, v{fp}, v{mn}")
        A("s_waitcnt lgkmcnt(0)")
        n = 0
        for i in range(8):
            src, qs, dh = pack_src(i)
            if dh != half: continue
            t = V_T + 4*(n % 2); n += 1
            for r in src:
                other = r - keep + send
                A(f"v_mul_f32 v{r}, v{r}, v{S0+4+2*qs}")
                A(f"v_fma_f32 v{r}, v{other}, v{S0+5+2*qs}, v{r}")
            for k in range(4): A(f"v_cvt_pk_bf16_f32 v{t+k}, v{src[2*k]}, v{src[2*k+1]}")
            A(f"s_add_u32 s34, s55, {(i//4)*4096}")
            A(f"buffer_store_dwordx4 {vr(t,4)}, v2, s[4:7], s34 offen offset:{(i%4)*1024} {st_flags}")
        if half == 0: A("s_branch K2_FIN")
    A("K2_FIN:")
    ST("st_issued")
    if stamps: A("s_waitcnt vmcnt(0)")
    ST("end"); ST("end_rt", real=True)
    ST.dump(vt=10, st=34, kidx=1)
    A("K2_END:")
    A("s_endpgm")
    A(kd(name, ACC+96, ACC))
    return ST.names
```

```python
from asmlib import *
from k1 import srd, WS_CTX, WS_PART
from k1b import m16
STG = 36864
def k3(A, name="k3_kernel", stamps=False, st_flags=""):
    A(khead(name))
    ST = Stamps(A, stamps, base=64, srd=4, wave="s28")
    A("s_cmp_ge_u32 s2, 256")
    A("s_cbranch_scc1 K3_END")
    ST("start_rt", real=True); ST("start")
    A("s_load_dwordx2 s[12:13], s[0:1], 112")
    A("s_load_dwordx2 s[14:15], s[0:1], 88")
    A("v_lshrrev_b32 v10, 6, v0")
    A("v_and_b32 v1, 63, v0")
    A("v_readfirstlane_b32 s28, v10")
    A("v_lshlrev_b32 v2, 4, v1")
    A("s_and_b32 s29, s2, 3")
    A("s_lshr_b32 s34, s2, 3")
    A("s_and_b32 s30, s34, 7")
    A("s_and_b32 s35, s2, 4")
    A("s_lshl_b32 s35, s35, 1")
    A("s_add_u32 s30, s30, s35")
    A("s_lshr_b32 s31, s34, 3")
    A("s_mov_b32 s36, 3641")
    for i in range(5):
        A(f"s_lshl_b32 s34, s28, 6")
        A(f"s_add_u32 s34, s34, {i*512}")
        A(f"v_add_u32 v10, s34, v1")
        A(f"v_mul_u32_u24 v11, s36, v10")
        A(f"v_lshrrev_b32 v11, 16, v11")
        A(f"v_mul_u32_u24 v12, 18, v11")
        A(f"v_sub_u32 v12, v10, v12")
        A(f"v_mul_u32_u24 v11, 1152, v11")
        A(f"v_lshl_add_u32 v{3+i}, v12, 4, v11")
    A("v_lshrrev_b32 v10, 2, v1")
    A("v_mul_u32_u24 v10, 288, v10")
    A("v_and_b32 v11, 3, v1")
    A("v_lshl_add_u32 v8, v11, 3, v10")
    A("s_lshr_b32 s34, s28, 2")
    A("s_mul_i32 s34, s34, 160")
    A("v_add_u32 v8, s34, v8")
    A(f"s_mul_i32 s32, s29, {1024*1152}")
    A("s_mul_i32 s34, s31, 288")
    A("s_add_u32 s32, s32, s34")
    A("s_and_b32 s37, s28, 3")
    A("s_lshl_b32 s34, s30, 2")
    A("s_add_u32 s34, s34, s37")
    A("s_lshl_b32 s33, s34, 18")
    A("s_lshl_b32 s34, s29, 16")
    A("s_add_u32 s33, s33, s34")
    A(f"s_add_u32 s33, s33, {WS_CTX}")
    A("s_lshl_b32 s38, s28, 10")
    A("s_lshl_b32 s34, s30, 2"); A("s_add_u32 s34, s34, s31"); A("s_lshl_b32 s34, s34, 2"); A("s_add_u32 s34, s34, s29")
    A("s_mul_i32 s34, s34, 72"); A("s_mul_i32 s35, s37, 18"); A("s_add_u32 s34, s34, s35"); A("s_lshl_b32 s39, s34, 10")
    A(f"s_add_u32 s39, s39, {WS_PART}")
    A("s_waitcnt lgkmcnt(0)")
    srd(A, 4, 12, 1 << 28); srd(A, 8, 14, 4096*576*2)
    A("s_cmp_ge_u32 s28, 4")
    A("s_cbranch_scc1 K3_H1")
    CT = [64, 96, 128]; WSET = [16, 36]; ACC = 160
    for nh in range(2):
        if nh: A("K3_H1:")
        ntl = 5 - nh; nd = 5 - nh
        def dma(j):
            g = []
            for i in range(nd):
                g.append([f"s_add_u32 m0, s38, {(j%3)*STG + i*8192}", f"s_add_u32 s34, s32, {j*128*1152}" if i == 0 else "s_nop 0",
                          f"buffer_load_dwordx4 v{3+i}, s[8:11], s34 offen lds"])
            return g
        def cload(j):
            g = []
            for i in range(8):
                pre = [f"s_add_u32 s35, s33, {j*8192 + (i//4)*4096}"] if i % 4 == 0 else []
                g.append(pre + [f"buffer_load_dwordx4 {vr(CT[j%3]+4*i,4)}, v2, s[4:7], s35 offen offset:{(i%4)*1024}"])
            return g
        def wr(j, k):
            return [f"ds_read_b64_tr_b16 {vr(WSET[k%2]+4*nt+2*half,2)}, v9 offset:{(32*k+16*half)*288+nt*32}" for nt in range(ntl) for half in range(2)]
        def mf(j, k):
            return [m16(vr(ACC+20*qs+4*nt,4), vr(WSET[k%2]+4*nt,4), vr(CT[j%3]+16*qs+4*k,4)) for nt in range(ntl) for qs in range(2)]
        for j in range(2):
            for g in dma(j) + cload(j): A.ext(g)
        for r in range(ACC, ACC+40): A(f"v_mov_b32 v{r}, 0")
        tail = []
        nr = 2*ntl
        for j in range(8):
            young = (nd + 8) if j < 7 else 0
            A(f"s_waitcnt vmcnt({young}) lgkmcnt(0)")
            A("s_barrier")
            if j == 0 and nh == 0: ST("landed")
            if j == 0 and nh == 1 and stamps: A("s_memtime s[68:69]")
            A(f"v_add_u32 v9, {(j%3)*STG}, v8")
            A.ext(wr(j, 0))
            fill = (dma(j+2) if j+2 < 8 else [])
            if tail: A.ext(weave(tail, fill))
            else:
                for g in fill: A.ext(g)
            fill2 = cload(j+2) if j+2 < 8 else []
            for k in range(3):
                A.ext(wr(j, k+1))
                A(f"s_waitcnt lgkmcnt({nr})")
                A.ext(weave(mf(j, k), fill2) if k == 0 else mf(j, k))
            tail = mf(j, 3)
        A("s_waitcnt lgkmcnt(0)")
        A.ext(tail)
        A("s_nop 7")
        for qs in range(2):
            for nt in range(ntl):
                A(f"s_add_u32 s34, s39, {(qs*9 + nh*5 + nt)*1024}")
                A(f"buffer_store_dwordx4 {vr(ACC+20*qs+4*nt,4)}, v2, s[4:7], s34 offen {st_flags}")
        if nh == 0: A("s_branch K3_FIN")
    A("K3_FIN:")
    ST("st_issued")
    if stamps: A("s_waitcnt vmcnt(0)")
    ST("end"); ST("end_rt", real=True)
    ST.dump(vt=10, st=34, kidx=2)
    A("K3_END:")
    A("s_endpgm")
    A(kd(name, 200, 200))
    return ST.names

def k4(A, name="k4_kernel"):
    A(khead(name))
    A("s_cmp_ge_u32 s2, 256")
    A("s_cbranch_scc1 K4_END")
    A("s_load_dwordx2 s[12:13], s[0:1], 112")
    A("s_load_dwordx2 s[14:15], s[0:1], 96")
    A("v_lshrrev_b32 v10, 6, v0")
    A("v_and_b32 v1, 63, v0")
    A("v_readfirstlane_b32 s28, v10")
    A("v_lshlrev_b32 v2, 4, v1")
    A("s_lshr_b32 s29, s2, 2")
    A("s_and_b32 s30, s2, 3")
    A("s_mul_i32 s34, s29, 288"); A("s_mul_i32 s35, s30, 18"); A("s_add_u32 s34, s34, s35"); A("s_lshl_b32 s39, s34, 10")
    A(f"s_add_u32 s39, s39, {WS_PART}")
    A("v_and_b32 v10, 15, v1"); A("v_mul_u32_u24 v10, 2304, v10"); A("v_lshrrev_b32 v11, 4, v1"); A("v_lshl_add_u32 v3, v11, 3, v10")
    A("s_lshr_b32 s34, s29, 2"); A("s_lshl_b32 s34, s34, 2"); A("s_add_u32 s34, s34, s30"); A(f"s_mul_i32 s40, s34, {32*2304}")
    A("s_and_b32 s34, s29, 3"); A("s_mul_i32 s34, s34, 288"); A("s_add_u32 s40, s40, s34"); A("s_add_u32 s40, s40, 1152")
    A("s_waitcnt lgkmcnt(0)")
    srd(A, 4, 12, 1 << 28); srd(A, 8, 14, 2048*1152*2)
    A("s_mov_b32 s31, s28")
    A("K4_LOOP:")
    A("s_lshl_b32 s34, s31, 10"); A("s_add_u32 s34, s34, s39")
    for ks in range(4):
        A(f"buffer_load_dwordx4 {vr(16+4*ks,4)}, v2, s[4:7], s34 offen")
        if ks < 3: A(f"s_add_u32 s34, s34, {72*1024}")
    A("s_cmp_ge_u32 s31, 9"); A(f"s_cselect_b32 s35, {16*2304 - 9*32}, 0"); A("s_lshl_b32 s36, s31, 5"); A("s_add_u32 s35, s35, s36"); A("s_add_u32 s35, s35, s40")
    A("s_waitcnt vmcnt(0)")
    for r in range(4):
        A(f"v_add_f32 v{16+r}, v{16+r}, v{20+r}"); A(f"v_add_f32 v{24+r}, v{24+r}, v{28+r}")
    for r in range(4): A(f"v_add_f32 v{16+r}, v{16+r}, v{24+r}")
    A("v_cvt_pk_bf16_f32 v12, v16, v17"); A("v_cvt_pk_bf16_f32 v13, v18, v19")
    A("buffer_store_dwordx2 v[12:13], v3, s[8:11], s35 offen")
    A("s_add_u32 s31, s31, 8"); A("s_cmp_lt_u32 s31, 18"); A("s_cbranch_scc1 K4_LOOP")
    A("K4_END:")
    A("s_endpgm")
    A(kd(name, 32, 32))
```

```python
from asmlib import *
from k1 import srd
from k1b import m16
WS_XR = 96 << 20
WS_QT = 100 << 20
NB_IN = 2048*576*2

def ka1_body(A, wsel, tag, srds=(4, 8, 12, 16, 20), vb=4, st=34):
    sk, sv, sq, ss, sw = [f"s[{x}:{x+3}]" for x in srds]
    T = vb
    A(f"s_mul_i32 s{st}, {wsel}, 7282"); A(f"s_lshr_b32 s{st}, s{st}, 16")
    A(f"s_mul_i32 s{st+1}, s{st}, 9"); A(f"s_sub_u32 s{st+1}, {wsel}, s{st+1}")
    A(f"v_and_b32 v{T}, 7, v1"); A(f"s_lshl_b32 s{st+1}, s{st+1}, 3"); A(f"v_add_u32 v{T}, s{st+1}, v{T}")
    A(f"v_lshrrev_b32 v{T+1}, 3, v1"); A(f"s_lshl_b32 s{st}, s{st}, 3"); A(f"v_add_u32 v{T+1}, s{st}, v{T+1}")
    A(f"v_mul_u32_u24 v{T+2}, {8*1152}, v{T+1}")
    A(f"v_lshl_add_u32 v{T+2}, v{T}, 4, v{T+2}")
    A(f"v_subrev_u32 v{T+3}, {3*1152}, v{T+2}")
    A(f"v_lshlrev_b32 v{T+4}, 6, v{T}")
    A(f"v_lshlrev_b32 v{T+5}, 15, v{T}")
    A(f"v_lshl_add_u32 v{T+6}, v{T+1}, 4, v{T+5}")
    A(f"v_lshlrev_b32 v{T+7}, 4, v{T+1}")
    A(f"v_sub_u32 v{T+5}, v{T+5}, v{T+7}")
    A(f"v_add_u32 v{T+5}, 4080, v{T+5}")
    A(f"s_mov_b32 s{st}, 4608")
    K, Vv, Q, SKR, SK, KF, VF, R = T+8, T+52, T+84, T+116, T+132, T+164-32+0, 0, 0
    K = T+8; Vv = K+44; Q = Vv+32; SKR = Q+32; W = SKR+16; KF = W+8; O = KF+12
    for i in range(4): A(f"buffer_load_dwordx4 {vr(SKR+4*i,4)}, v{T+4}, {ss}, 0 offen offset:{16*i}")
    for r in range(3): A(f"buffer_load_dwordx4 {vr(K+4*r,4)}, v{T+3}, {sk}, 0 offen offset:{r*1152}")
    for (base, s_) in ((K+12, sk), (Vv, sv), (Q, sq)):
        for r in range(8):
            A(f"buffer_load_dwordx4 {vr(base+4*r,4)}, v{T+2}, {s_}, {'0' if r < 4 else 's%d' % st} offen offset:{(r%4)*1152}")
    A(f"s_mov_b32 s{st+2}, 0xffff0000")
    A(f"s_mov_b32 s{st+3}, 0x05040100"); A(f"s_mov_b32 s{st+4}, 0x07060302")
    A("s_waitcnt vmcnt(8)")
    def unp(dst, src, hi):
        return f"v_and_b32 v{dst}, s{st+2}, v{src}" if hi else f"v_lshlrev_b32 v{dst}, 16, v{src}"
    for c in range(8):
        d, hi = c // 2, c % 2
        for u in range(4): A(unp(W+u, SKR+2*c+u//2, u % 2))
        for r in range(11): A(unp(KF+r, K+4*r+d, hi))
        for p in range(8):
            A(f"v_mul_f32 v{O+p}, v{KF+p+3}, v{W}")
            for u in range(1, 4): A(f"v_fmac_f32 v{O+p}, v{KF+p+3-u}, v{W+u}")
        for p in range(8): A(unp(KF+p, Vv+4*p+d, hi))
        for p in range(8): A(f"v_mul_f32 v{O+p}, v{O+p}, v{KF+p}")
        t = O + 8 + 4*(c % 2)
        for j in range(4): A(f"v_cvt_pk_bf16_f32 v{t+j}, v{O+7-2*j}, v{O+6-2*j}")
        A(f"s_mov_b32 s{st+1}, {WS_XR + c*4096}")
        A(f"buffer_store_dwordx4 {vr(t,4)}, v{T+5}, {sw}, s{st+1} offen")
    A("s_waitcnt vmcnt(8)")
    for c in range(8):
        d, hi = c // 2, c % 2
        t = K + 4*c
        for j in range(4): A(f"v_perm_b32 v{t+j}, v{Q+4*(2*j+1)+d}, v{Q+4*(2*j)+d}, s{st+3+hi}")
        A(f"s_mov_b32 s{st+1}, {WS_QT + c*4096}")
        A(f"buffer_store_dwordx4 {vr(t,4)}, v{T+6}, {sw}, s{st+1} offen")
    return O + 16

def ka1(A, name="ka1_kernel"):
    A(khead(name))
    A("s_cmp_ge_u32 s2, 72"); A("s_cbranch_scc1 KA1_END")
    A("s_load_dwordx4 s[44:47], s[0:1], 0"); A("s_load_dwordx4 s[48:51], s[0:1], 16"); A("s_load_dwordx2 s[52:53], s[0:1], 112")
    A("v_lshrrev_b32 v2, 6, v0"); A("v_and_b32 v1, 63, v0"); A("v_readfirstlane_b32 s28, v2")
    A("s_lshl_b32 s29, s2, 2"); A("s_nop 2"); A("s_add_u32 s29, s29, s28")
    A("s_waitcnt lgkmcnt(0)")
    srd(A, 4, 46, NB_IN); srd(A, 8, 48, NB_IN); srd(A, 12, 44, NB_IN); srd(A, 16, 50, 576*8); srd(A, 20, 52, 1 << 28)
    n = ka1_body(A, "s29", "a")
    A("KA1_END:"); A("s_endpgm")
    n = (n + 3)//4*4
    A(kd(name, n, n))

CS = 12992; XR0 = 0; C0 = 4608; C1 = 4608 + 4160
def ka2(A, name="ka2_kernel", stamps=False):
    A(khead(name))
    ST = Stamps(A, stamps, base=64, srd=4, wave="s28")
    A("s_cmp_ge_u32 s2, 72"); A("s_cbranch_scc1 KA2_END")
    ST("start_rt", real=True); ST("start")
    A("s_load_dwordx4 s[44:47], s[0:1], 32"); A("s_load_dwordx2 s[48:49], s[0:1], 96"); A("s_load_dwordx2 s[52:53], s[0:1], 112")
    A("v_lshrrev_b32 v2, 6, v0"); A("v_and_b32 v1, 63, v0"); A("v_readfirstlane_b32 s28, v2")
    A("v_lshlrev_b32 v2, 4, v1")
    A("s_and_b32 s34, s2, 7"); A("s_mul_i32 s34, s34, 9"); A("s_lshr_b32 s35, s2, 3"); A("s_add_u32 s29, s34, s35")
    A("s_lshl_b32 s30, s29, 3"); A("s_add_u32 s30, s30, s28")
    A(f"s_mul_i32 s31, s28, {CS}")
    A("s_lshl_b32 s32, s30, 12")
    A("s_waitcnt lgkmcnt(0)")
    srd(A, 4, 52, 1 << 28); srd(A, 8, 44, NB_IN); srd(A, 12, 46, 1152); srd(A, 16, 48, 2048*1152*2)
    A(f"s_add_u32 s33, s32, {WS_XR}")
    A("s_mov_b32 m0, s31"); A("v_add_u32 v3, 2, v2")
    for i in range(4): A(f"buffer_load_dwordx4 v2, s[4:7], s33 offen offset:{i*1024} lds")
    A(f"s_add_u32 m0, s31, {C0+32}"); A("s_nop 0")
    for i in range(4): A(f"buffer_load_dwordx4 v2, s[8:11], s32 offen offset:{i*1024} lds")
    A(f"s_add_u32 m0, s31, {C1+32}"); A("s_nop 0")
    for i in range(4): A(f"buffer_load_dwordx4 v3, s[8:11], s32 offen offset:{i*1024} lds")
    A("v_mov_b32 v4, 0"); A("s_lshl_b32 s34, s30, 1")
    A("buffer_load_ushort v5, v4, s[12:15], s34 offen")
    A("buffer_load_ushort v6, v4, s[8:11], s32 offen")
    A("buffer_load_ushort v7, v4, s[8:11], s32 offen offset:4094")
    A("v_and_b32 v8, 15, v1"); A("v_lshrrev_b32 v9, 4, v1")
    A("v_lshlrev_b32 v10, 5, v8"); A("v_lshl_add_u32 v10, v9, 3, v10")
    A(f"s_add_u32 s33, s32, {WS_QT}")
    QR = 24; ACC = 40; FS = [72, 136]; AD = 200
    for w in range(8): A(f"buffer_load_dwordx2 {vr(QR+2*w,2)}, v10, s[4:7], s33 offen offset:{w*512}")
    A("v_mov_b32 v12, 0"); A("v_mov_b32 v13, 0")
    A("v_lshlrev_b32 v11, 3, v1"); A("v_add_u32 v11, s31, v11")
    A("ds_write_b64 v11, v[12:13] offset:4096")
    A("v_cmp_gt_u32 vcc, 4, v1"); A("s_and_saveexec_b64 s[36:37], vcc")
    A(f"ds_write_b64 v11, v[12:13] offset:{C0}"); A(f"ds_write_b64 v11, v[12:13] offset:{C1}")
    A("s_mov_b64 exec, s[36:37]")
    for r in range(ACC, ACC+32): A(f"v_mov_b32 v{r}, 0")
    A("v_and_b32 v12, 1, v8")
    A("v_add_u32 v13, v8, v12"); A("v_lshl_add_u32 v13, v9, 3, v13"); A("v_lshlrev_b32 v13, 1, v13")
    A(f"v_mul_u32_u24 v12, {C1-C0}, v12"); A("v_sub_u32 v13, v13, v12")
    A(f"s_add_u32 s34, s31, {C1}"); A("v_add_u32 v14, s34, v13")
    for i in range(1, 4): A(f"v_add_u32 v{14+i}, {1024*i}, v14")
    A("v_lshlrev_b32 v12, 5, v8"); A("v_lshlrev_b32 v13, 4, v9"); A("v_sub_u32 v13, v13, v12")
    A(f"s_add_u32 s34, s31, {4064-3584}"); A("v_add_u32 v18, s34, v13")
    A("v_lshl_add_u32 v19, v9, 3, v8"); A("v_sub_u32 v19, 15, v19")
    A("s_waitcnt vmcnt(8)")
    A("v_mov_b32 v20, s31")
    A(f"ds_write_b16 v20, v6 offset:{C1+30}"); A(f"ds_write_b16 v20, v7 offset:{C1+4124}")
    A("v_lshlrev_b32 v21, 16, v5")
    for k in range(4):
        A(f"v_cmp_eq_u32 s[36:37], {2*k}, v19"); A(f"v_cmp_eq_u32 s[38:39], {2*k+1}, v19"); A("s_nop 1")
        A(f"v_cndmask_b32 v{AD+k}, 0, v5, s[36:37]"); A(f"v_cndmask_b32 v{AD+k}, v{AD+k}, v21, s[38:39]")
    ST("landed")
    def rds(r):
        b = FS[r % 2]; o = []
        for i in range(8):
            o.append(f"ds_read_b128 {vr(b+32+4*i,4)}, v18 offset:{(7-i)*512+64*r}")
            for hh in range(2):
                of = 16*r + 128*(i % 2) + 2*hh
                o.append(f"ds_read2_b32 {vr(b+4*i+2*hh,2)}, v{14+i//2} offset0:{of} offset1:{of+1}")
        return o
    def mfs(r):
        b = FS[r % 2]; o = []
        for k in range(8):
            for i in range(8-k):
                o.append(m16(vr(ACC+4*(i+k),4), vr(b+4*i,4), vr(b+32+4*k,4)))
            if r == 0: o.append(m16(vr(ACC+4*k,4), vr(AD,4), vr(b+32+4*k,4)))
        return o
    A.ext(rds(0))
    for r in range(8):
        A("s_waitcnt lgkmcnt(0)")
        A.ext(weave(mfs(r), rds(r+1) if r < 7 else []))
    ST("mf_done")
    A("s_waitcnt vmcnt(0)")
    A("s_mov_b32 s34, 0xffff0000")
    A(f"s_add_u32 s35, s31, {C0}"); A("v_add_u32 v11, s35, v10")
    A("s_nop 4")
    for w in range(8):
        a = ACC+4*w
        A(f"v_lshlrev_b32 v12, 16, v{QR+2*w}"); A(f"v_and_b32 v13, s34, v{QR+2*w}")
        A(f"v_lshlrev_b32 v20, 16, v{QR+2*w+1}"); A(f"v_and_b32 v21, s34, v{QR+2*w+1}")
        A(f"v_mul_f32 v{a}, v{a}, v12"); A(f"v_mul_f32 v{a+1}, v{a+1}, v13"); A(f"v_mul_f32 v{a+2}, v{a+2}, v20"); A(f"v_mul_f32 v{a+3}, v{a+3}, v21")
        A(f"v_cvt_pk_bf16_f32 v{a}, v{a}, v{a+1}"); A(f"v_cvt_pk_bf16_f32 v{a+1}, v{a+2}, v{a+3}")
        A(f"ds_write_b64 v11, {vr(a,2)} offset:{w*512}")
    A("v_bfe_u32 v12, v1, 2, 2"); A(f"v_mul_u32_u24 v12, {CS}, v12")
    A("v_lshl_add_u32 v12, v9, 5, v12"); A("v_and_b32 v13, 3, v1"); A("v_lshl_add_u32 v12, v13, 3, v12")
    A("s_lshl_b32 s34, s28, 9"); A(f"s_add_u32 s34, s34, {C0}"); A("v_add_u32 v12, s34, v12")
    A("v_mul_u32_u24 v13, 2304, v1")
    A(f"s_mul_i32 s35, s28, {256*2304}"); A("s_lshl_b32 s34, s29, 4"); A("s_add_u32 s35, s35, s34")
    A("s_waitcnt lgkmcnt(0)"); A("s_barrier")
    for blk in range(4):
        for hf in range(2):
            A(f"ds_read_b64_tr_b16 {vr(72+4*blk+2*hf,2)}, v12 offset:{hf*4*CS+blk*128}")
    for blk in range(4):
        A(f"s_waitcnt lgkmcnt({6-2*blk})")
        A(f"buffer_store_dwordx4 {vr(72+4*blk,4)}, v13, s[16:19], s35 offen")
        A(f"s_add_u32 s35, s35, {64*2304}")
    ST("st_issued")
    if stamps: A("s_waitcnt vmcnt(0)")
    ST("end"); ST("end_rt", real=True)
    ST.dump(vt=10, st=34, kidx=5)
    A("KA2_END:"); A("s_endpgm")
    A(kd(name, 204, 204))
    return ST.names
```

```python
import sys
from asmlib import *
import k1 as K1
import k1b as K1B
import k2 as K2
import k3 as K3
import ka as KA
def header(launches):
    ref = open("concat_heads__ssm_conv_h3__compressed_kv_cla__prompt.s.ref").read().split("\n")
    hdr = []
    for l in ref:
        if l.startswith("; Override") : break
        hdr.append(l)
    return "\n".join(hdr) + "\n" + "\n".join(launches) + '\n.amdgcn_target "amdgcn-amd-amdhsa--gfx950"\n.text\n'
def build(which="all", **opt):
    A = Asm()
    launches = []
    launches.append("; @launch kernel=k1_kernel grid=(256,1,1) block=(512,1,1) lds=131072")
    SH = opt.get("SH", 16)
    (K1B if SH == 16 else K1).k1(A, **opt.get("k1", {}))
    launches.append("; @launch kernel=k2_kernel grid=(256,1,1) block=(512,1,1) lds=139264")
    K2.k2(A, SH=SH, **opt.get("k2", {}))
    launches.append("; @launch kernel=k3_kernel grid=(256,1,1) block=(512,1,1) lds=110592")
    K3.k3(A, **opt.get("k3", {}))
    launches.append("; @launch kernel=k4_kernel grid=(256,1,1) block=(512,1,1) lds=0")
    K3.k4(A)
    launches.append("; @launch kernel=ka1_kernel grid=(72,1,1) block=(256,1,1) lds=0")
    KA.ka1(A)
    launches.append("; @launch kernel=ka2_kernel grid=(72,1,1) block=(512,1,1) lds=103936")
    KA.ka2(A, **opt.get("ka2", {}))
    return header(launches) + A.text()
if __name__ == "__main__":
    out = sys.argv[1] if len(sys.argv) > 1 else "dev.s"
    import json
    opt = json.loads(sys.argv[2]) if len(sys.argv) > 2 else {}
    open(out, "w").write(build(**opt))
```

```python
class Asm:
    def __init__(self):
        self.L = []
    def __call__(self, s):
        for line in s.split("\n"):
            line = line.strip()
            if line:
                self.L.append(line if line.endswith(":") or line.startswith(".") else "  " + line)
    def ext(self, lst):
        for s in lst: self(s)
    def text(self):
        return "\n".join(self.L) + "\n"

def vr(b, n=1):
    return f"v{b}" if n == 1 else f"v[{b}:{b+n-1}]"
def ar(b, n=1):
    return f"a{b}" if n == 1 else f"a[{b}:{b+n-1}]"
def sr(b, n=1):
    return f"s{b}" if n == 1 else f"s[{b}:{b+n-1}]"

def mfma32(d, a, b, c=None):
    return f"v_mfma_f32_32x32x16_bf16 {d}, {a}, {b}, {c if c is not None else d}"

def kd(name, vgpr, accum, sgpr=102):
    return f""".section .rodata,"a"
.p2align 6
.amdhsa_kernel {name}
  .amdhsa_next_free_vgpr {vgpr}
  .amdhsa_next_free_sgpr {sgpr}
  .amdhsa_accum_offset {accum}
  .amdhsa_group_segment_fixed_size 0
  .amdhsa_kernarg_size 120
  .amdhsa_user_sgpr_count 2
  .amdhsa_user_sgpr_kernarg_segment_ptr 1
  .amdhsa_system_sgpr_workgroup_id_x 1
.end_amdhsa_kernel
.text
"""

def khead(name):
    return f""".globl {name}
.p2align 8
.type {name},@function
{name}:
"""

def weave(main, fill, start=0, per=None):
    out = []
    n = len(main) - start
    k = 0
    for i, m in enumerate(main):
        out.append(m)
        if i >= start:
            if per is not None:
                cnt = per[i - start] if i - start < len(per) else 0
            else:
                j = i - start + 1
                cnt = (len(fill) * j + n - 1) // n - k
            for _ in range(cnt):
                if k < len(fill):
                    f = fill[k]; k += 1
                    if isinstance(f, list): out.extend(f)
                    else: out.append(f)
    while k < len(fill):
        f = fill[k]; k += 1
        if isinstance(f, list): out.extend(f)
        else: out.append(f)
    return out

WS_STAMP = 192 << 20
class Stamps:
    def __init__(self, A, on, base=64, srd=24, wave="s28"):
        self.A, self.on, self.base, self.n, self.srd, self.wave = A, on, base, 0, srd, wave
        self.names = []
    def __call__(self, name, real=False):
        if not self.on: return
        b = self.base + 2 * self.n
        assert b + 1 <= 91
        self.A(f"{'s_memrealtime' if real else 's_memtime'} s[{b}:{b+1}]")
        self.n += 1; self.names.append(name)
    def at(self, idx, cond_sgpr, val):
        if not self.on: return
        self._u = getattr(self, "_u", 0) + 1
        b = self.base + 2 * idx
        self.A(f"s_cmp_eq_u32 {cond_sgpr}, {val}")
        self.A(f"s_cbranch_scc0 STSK_{id(self)%9973}_{self._u}")
        self.A(f"s_memtime s[{b}:{b+1}]")
        self.A(f"STSK_{id(self)%9973}_{self._u}:")
    def reserve(self, name):
        if not self.on: return -1
        self.n += 1; self.names.append(name); return self.n - 1
    def dump(self, vt=12, st=34, kidx=0):
        if not self.on: return
        A = self.A
        A("s_waitcnt lgkmcnt(0)")
        A(f"s_lshl_b32 s{st}, s2, 3")
        A(f"s_add_u32 s{st}, s{st}, {self.wave}")
        A(f"s_lshl_b32 s{st}, s{st}, 7")
        A(f"s_add_u32 s{st}, s{st}, {WS_STAMP + kidx * (1 << 20)}")
        A(f"v_mov_b32 v{vt+1}, 0")
        for i in range(self.n):
            A(f"v_mov_b32 v{vt}, s{self.base + 2*i}")
            A(f"buffer_store_dword v{vt}, v{vt+1}, s[{self.srd}:{self.srd+3}], s{st} offen offset:{4*i}")
            A("s_nop 1")
```

```python
from asmlib import *
from k1 import srd, WS_KV, WS_Q, WS_CTX, f32bits, QSCALE
from k1b import m16
import k2c
from ka import WS_XR, WS_QT, NB_IN
WS_FLAG = 120 << 20
WS_EPOCH = 121 << 20

def code_touch(A, lab, nbytes, dst, t0, sp=60):
    n = (nbytes + 127) // 128 if isinstance(nbytes, int) else None
    u = lab + "_ct%d" % t0
    A(f"s_getpc_b64 s[{sp}:{sp+1}]")
    A(f"{u}:")
    A(f"s_add_u32 s{sp}, s{sp}, {lab}-{u}")
    A(f"s_addc_u32 s{sp+1}, s{sp+1}, 0")
    A(f"v_lshlrev_b32 v{t0}, 7, v0")
    A(f"v_min_u32 v{t0}, {nbytes}, v{t0}")
    A(f"v_mov_b32 v{t0+1}, s{sp+1}")
    A(f"v_add_co_u32 v{t0}, vcc, s{sp}, v{t0}")
    A("s_nop 1")
    A(f"v_addc_co_u32 v{t0+1}, vcc, 0, v{t0+1}, vcc")
    A(f"global_load_dword v{dst}, v[{t0}:{t0+1}], off")

def f1(A, name="f1_kernel", st_flags="sc1", stamps=False, pf=3, cpf=3, sleep=2, attn_kw={}, ctx_flags="sc1", ahead=3, xn=6, kvpf=3, tfl="sc1", inv=False, sched=1, gtrace=False, kvfront=8, late_pf=True, s1=True, s1pf=True):
    A(khead(name))
    ST = Stamps(A, stamps, base=64, srd=4, wave="s28")
    A("s_cmp_ge_u32 s2, 256")
    A("s_cbranch_scc1 F1_END")
    ST("start_rt", real=True); ST("start")
    A("s_load_dwordx4 s[44:47], s[0:1], 48")
    A("s_load_dwordx4 s[48:51], s[0:1], 64")
    A("s_load_dwordx2 s[52:53], s[0:1], 80")
    A("s_load_dwordx4 s[56:59], s[0:1], 104")
    A("s_mov_b32 s90, s0"); A("s_mov_b32 s91, s1")
    A("v_lshrrev_b32 v12, 6, v0")
    A("v_and_b32 v1, 63, v0")
    A("v_readfirstlane_b32 s28, v12")
    npre = 0
    if cpf:
        code_touch(A, "F1_CODE0", "F1_END-F1_CODE0", 15, 12); npre = 0
    A("s_lshr_b32 s29, s2, 3"); A("s_and_b32 s29, s29, 7")
    A("s_and_b32 s34, s2, 7"); A("s_lshl_b32 s34, s34, 2"); A("s_lshr_b32 s35, s2, 6"); A("s_add_u32 s30, s34, s35")
    A("s_and_b32 s37, s28, 3")
    A("v_lshrrev_b32 v12, 3, v1")
    A("s_lshl_b32 s34, s37, 3")
    A("v_add_u32 v12, s34, v12")
    A("v_lshrrev_b32 v13, 4, v1")
    A("s_and_b32 s34, s28, 1")
    A("s_lshl_b32 s34, s34, 2")
    A("v_add_u32 v14, s34, v13")
    A("v_and_b32 v10, 7, v1")
    A("v_xor_b32 v14, v14, v10")
    A("v_lshlrev_b32 v14, 4, v14")
    A("v_lshl_add_u32 v2, v12, 10, v14")
    A("v_mul_u32_u24 v3, 1152, v12")
    A("v_add_u32 v3, v3, v14")
    A("s_lshl_b32 s34, s37, 2")
    A("v_add_u32 v12, s34, v13")
    A("v_lshlrev_b32 v12, 13, v12")
    A("s_and_b32 s34, s28, 2")
    A("s_lshl_b32 s34, s34, 1")
    A("v_add_u32 v14, s34, v13")
    A("v_lshlrev_b32 v14, 1, v14")
    A("v_and_b32 v10, 15, v1")
    A("v_xor_b32 v14, v14, v10")
    A("v_lshl_add_u32 v4, v14, 4, v12")
    A("s_lshl_b32 s34, s30, 8")
    A("v_add_u32 v4, s34, v4")
    A("s_lshl_b32 s31, s37, 10")
    A("s_lshl_b32 s32, s29, 18")
    A("s_mov_b32 s33, 0")
    A("s_waitcnt lgkmcnt(0)")
    C, X, UK, UV, WQ, WSS = "s[8:11]", "s[12:15]", "s[16:19]", "s[20:23]", "s[24:27]", "s[4:7]"
    srd(A, 8, 46, 2048*512*2); srd(A, 16, 50, 512*4096*2); srd(A, 20, 52, 512*4096*2)
    adv = ["s_add_u32 s32, s32, 128", f"s_add_u32 s33, s33, {64*8192}", "s_xor_b32 s31, s31, 0x10000"]
    def dma_kv(part=None):
        g = []
        for i in range(4):
            g.append([f"s_add_u32 m0, s31, {32768+i*4096}", f"s_add_u32 s34, s33, {i*16*8192}", f"buffer_load_dwordx4 v4, {UK}, s34 offen lds"])
            g.append([f"s_add_u32 m0, s31, {49152+i*4096}", "s_nop 0", f"buffer_load_dwordx4 v4, {UV}, s34 offen lds"])
        for i in range(8):
            g.append([f"s_add_u32 m0, s31, {i*4096}", f"s_add_u32 s34, s32, {i*32768}", f"buffer_load_dwordx4 v2, {C}, s34 offen lds"])
        if part is not None: return g[8*part:8*part+8]
        g[-1] = g[-1] + adv
        return g
    SA = [0, 0x20000, 0x10000]; SW = [0x8000, 0xC000, 0x18000]
    def dma_q(j):
        g = []
        for i in range(4):
            g.append([f"s_add_u32 m0, s31, {SW[j%3]+i*4096}", f"s_mov_b32 s34, {(j*64+i*16)*8192}", f"buffer_load_dwordx4 v4, {WQ}, s34 offen lds"])
        for i in range(8):
            g.append([f"s_add_u32 m0, s31, {SA[j%3]+i*4096}", f"s_add_u32 s34, {'s32' if i < 4 else 's36'}, {(i%4)*32*1152 + j*128}", f"buffer_load_dwordx4 v3, {X}, s34 offen lds"])
        return g
    A("s_cmp_ge_u32 s28, 4"); A("s_cbranch_scc1 F1_I1")
    for g in dma_kv(0): A.ext(g)
    A("s_branch F1_I2")
    A("F1_I1:")
    for g in dma_kv(1): A.ext(g)
    A("F1_I2:")
    A.ext(adv)
    srd(A, 12, 44, 2048*576*2); srd(A, 24, 48, 576*4096*2); srd(A, 4, 58, 1 << 28)
    A("s_or_b32 s34, s2, s28"); A("s_cmp_lg_u32 s34, 0"); A("s_cbranch_scc1 F1_NOEP")
    A("s_memrealtime s[98:99]")
    srd(A, 60, 56, 256)
    A("s_waitcnt lgkmcnt(0)")
    A("s_or_b32 s98, s98, 1")
    A("v_mov_b32 v12, s98"); A("v_mov_b32 v13, s99"); A("v_mov_b32 v14, 0"); A(f"s_mov_b32 s34, {WS_EPOCH}")
    A("s_mov_b64 exec, 1")
    A("buffer_store_dwordx2 v[12:13], v14, s[60:63], 0 offen sc0 sc1")
    A("buffer_store_dwordx2 v[12:13], v14, s[4:7], s34 offen")
    A("s_mov_b64 exec, -1")
    A("v_lshrrev_b32 v13, 4, v1")
    A("F1_NOEP:")
    npf = 0
    touch = []
    if pf == 2:
        A("s_cmp_lt_u32 s28, 4"); A("s_cbranch_scc1 F1_PFD")
        A("v_lshlrev_b32 v9, 7, v1")
        plan = [[(C, 8192, 0), (X, 9216, 0), (X, 9216, 1)], [(UK, 16384, 0), (UK, 16384, 1), (WQ, 18432, 2)],
                [(UV, 16384, 0), (UV, 16384, 1), (UV, 16384, 1)], [(WQ, 18432, 0), (WQ, 18432, 1), (WQ, 18432, 1)]]
        for w in range(4):
            if w < 3: A(f"s_cmp_lg_u32 s37, {w}"); A(f"s_cbranch_scc1 F1_PF{w+1}")
            for (sd, share, k) in plan[w]:
                A(f"s_mul_i32 s34, s2, {share}"); A(f"s_add_u32 s34, s34, {k*8192}")
                A(f"buffer_load_dword v15, v9, {sd}, s34 offen {tfl}")
            A("s_branch F1_PFE")
            if w < 3: A(f"F1_PF{w+1}:")
        A("F1_PFD:")
        A("s_nop 0")
        A("F1_PFE:")
        npf = 3
    elif pf == 3:
        TS = 92
        A(f"s_mov_b32 s{TS+3}, 0x20000")
        A("s_cmp_eq_u32 s37, 3"); A("s_cbranch_scc1 F1_PFQ")
        A("s_cmp_eq_u32 s37, 0"); A("s_cbranch_scc0 F1_PFW")
        A("v_lshlrev_b32 v9, 7, v1"); A("s_lshl_b32 s34, s2, 13")
        A("s_cmp_lt_u32 s28, 4"); A("s_cbranch_scc1 F1_PFC")
        A(f"buffer_load_dword v15, v9, {C}, s34 offen {tfl}")
        A("F1_PFC:")
        A(f"s_mov_b32 s{TS}, s44"); A(f"s_mov_b32 s{TS+1}, s45"); A(f"s_mov_b32 s{TS+2}, {2048*576*2}")
        A(f"v_min_u32 v9, {72//xn - 1}, v1"); A("v_lshlrev_b32 v9, 7, v9"); A("s_mul_i32 s96, s2, 9216"); A(f"s_mov_b32 s97, {9216//xn}")
        A("s_branch F1_PFD")
        A("F1_PFW:")
        A("s_cmp_eq_u32 s37, 1"); A(f"s_cselect_b32 s{TS}, s50, s52"); A(f"s_cselect_b32 s{TS+1}, s51, s53"); A(f"s_mov_b32 s{TS+2}, {512*4096*2}")
        A(f"v_min_u32 v9, {16*(ahead-1)-1}, v1"); A("v_lshlrev_b32 v9, 7, v9"); A(f"s_mul_i32 s34, s2, {2048*(ahead-1)}"); A(f"s_add_u32 s34, s34, {64*8192}")
        A("s_cmp_lt_u32 s28, 4"); A("s_cbranch_scc1 F1_PFW2")
        A(f"buffer_load_dword v15, v9, s[{TS}:{TS+3}], s34 offen {tfl}")
        A("F1_PFW2:")
        A("v_min_u32 v9, 15, v1"); A("v_lshlrev_b32 v9, 7, v9"); A("s_lshl_b32 s96, s2, 11"); A(f"s_add_u32 s96, s96, {64*8192*ahead}"); A(f"s_mov_b32 s97, {64*8192}")
        A("s_branch F1_PFD")
        A("F1_PFQ:")
        A(f"s_mov_b32 s{TS}, s48"); A(f"s_mov_b32 s{TS+1}, s49"); A(f"s_mov_b32 s{TS+2}, {576*4096*2}")
        A(f"v_min_u32 v9, {144//xn//16*16//16*16//16 if False else 0}, v1") if False else None
        A(f"v_min_u32 v9, {144//xn - 1}, v1"); A("v_lshlrev_b32 v9, 7, v9"); A(f"s_mul_i32 s96, s2, {18432//xn}"); A(f"s_mov_b32 s97, {576*8192//xn}")
        A("s_cmp_lt_u32 s28, 4"); A("s_cbranch_scc1 F1_PFD")
        A(f"buffer_load_dword v15, v9, s[{TS}:{TS+3}], s96 offen {tfl}")
        A("F1_PFD:")
        touch = [[f"buffer_load_dword v15, v9, s[{TS}:{TS+3}], s96 offen {tfl}", "s_add_u32 s96, s96, s97"]]
        npf = 1
    A("v_and_b32 v12, 15, v1"); A("v_lshlrev_b32 v12, 7, v12")
    A("s_lshr_b32 s34, s28, 2"); A("s_lshl_b32 s34, s34, 14"); A("v_add_u32 v12, s34, v12")
    A("v_bfe_u32 v14, v1, 1, 3"); A("v_xor_b32 v14, v14, v13")
    for ks in range(2):
        A(f"v_xor_b32 v11, {4*ks}, v14"); A(f"v_lshl_add_u32 v{5+ks}, v11, 4, v12")
    def addrW(dst, nb_sgpr2):
        A("v_bfe_u32 v12, v1, 2, 2"); A("v_lshl_add_u32 v14, v13, 3, v12"); A("v_lshlrev_b32 v14, 8, v14")
        A("v_and_b32 v8, 1, v13"); A("v_lshl_add_u32 v12, v8, 2, v12"); A("v_lshlrev_b32 v12, 1, v12")
        A(f"v_xor_b32 v12, {nb_sgpr2}, v12"); A("v_lshl_add_u32 v14, v12, 4, v14")
        A("v_and_b32 v12, 3, v1"); A(f"v_lshl_add_u32 v{dst}, v12, 3, v14")
    A("s_lshl_b32 s38, s37, 2")
    addrW(7, "s38")
    A("v_xor_b32 v8, 32, v7")
    A("v_lshlrev_b32 v11, 4, v1")
    for r in range(16, 144): A(f"v_mov_b32 v{r}, 0")
    for r in range(0, 112): A(f"v_accvgpr_write_b32 a{r}, 0")
    WS_ = [64, 80]; RING = 96; R = 4
    def accK(T, kb): return 32*T + 4*kb
    def accV(T, kb): return 16 + 4*(2*kb + T)
    def accQ(nb, qb): return 80 + 16*qb + 4*nb
    def wreads_kv(ks):
        b = WS_[ks]
        return [f"ds_read_b64_tr_b16 {ar(b+8*mat+4*nb+2*half,2)}, v{7+nb} offset:{32768+16384*mat+(32*ks+4*half)*256}"
                for mat in range(2) for nb in range(2) for half in range(2)]
    def c_read(i):
        ks, kb = divmod(i, 8)
        return f"ds_read_b128 {ar(RING+4*(i%R),4)}, v{5+ks} offset:{kb*2048}"
    def c_mf(i):
        ks, kb = divmod(i, 8); b = WS_[ks]; f = ar(RING+4*(i%R),4)
        return [m16(ar(accK(0,kb),4), ar(b,4), f), m16(ar(accK(1,kb),4), ar(b+4,4), f),
                m16(vr(accV(0,kb),4), f, ar(b+8,4)), m16(vr(accV(1,kb),4), f, ar(b+12,4))]
    TAIL = 2
    def step(nitems, per_ks, wreads, rdf, mff, prev_tail, dma, extra, toggle, first_wait, entry=None, front=99):
        A(first_wait)
        if entry: A(entry)
        if gtrace:
            A("s_memtime s[100:101]")
        A("s_barrier")
        if gtrace:
            A("s_memtime s[88:89]"); A("s_waitcnt lgkmcnt(0)"); A("v_mov_b32 v14, 0"); A("v_mov_b32 v12, s100"); A("v_mov_b32 v13, s88")
            A("buffer_store_dwordx2 v[12:13], v14, s[4:7], s87 offen"); A("s_add_u32 s87, s87, 8")
        q = []
        def issue(instrs, tag):
            for x in instrs: A(x); q.append(tag)
        def wait_for(tags):
            last = max(i for i, t in enumerate(q) if t in tags)
            A(f"s_waitcnt lgkmcnt({min(len(q) - 1 - last, 15)})")
        if sched == 0:
            issue(wreads(0), "w0")
            nxt = 0
            while nxt < R - TAIL:
                issue([rdf(nxt)], nxt); nxt += 1
            half = len(prev_tail) // TAIL
            dq = list(dma)
            for t in range(TAIL):
                take = dq[:(len(dma)+TAIL-1)//TAIL]; dq = dq[len(take):]
                A.ext(weave(prev_tail[t*half:(t+1)*half], take))
                issue([rdf(nxt)], nxt); nxt += 1
            fill = []
        else:
            rl = [(x, "w0") for x in wreads(0)]
            rl = rl[:4] + [(rdf(0), 0)] + rl[4:] + [(rdf(1), 1)]
            nxt = 2
            n = len(prev_tail)
            for t, m in enumerate(prev_tail):
                A(m)
                k = 2 if t < 2 else 1
                for _ in range(k):
                    if rl: x, tag = rl.pop(0); issue([x], tag)
                if t == n//2 - 1 or t == n - 1:
                    while t == n - 1 and rl: x, tag = rl.pop(0); issue([x], tag)
                    issue([rdf(nxt)], nxt); nxt += 1
            fill = list(dma)
        ex = fill + list(extra)
        w1 = wreads(1)
        nslots = nitems - TAIL
        for i in range(nitems - TAIL):
            wait_for({i, f"w{i // per_ks}"})
            mm = mff(i)
            if sched == 0:
                A.ext(mm)
                if nxt < nitems:
                    issue([rdf(nxt)], nxt); nxt += 1
                if i == 1: issue(w1, "w1")
                if ex and i >= 2: A.ext(ex.pop(0))
            else:
                nw = min(len(w1), -(-8 // max(per_ks - 2, 1))) if i < per_ks - 1 else len(w1)
                ne = -(-len(ex) // max(min(nslots, front) - i, 1))
                A(mm[0])
                issue(w1[:(nw+1)//2], "w1")
                A(mm[1])
                issue(w1[(nw+1)//2:nw], "w1"); w1 = w1[nw:]
                A(mm[2])
                if ne: A.ext(ex.pop(0))
                A(mm[3])
                if nxt < nitems:
                    issue([rdf(nxt)], nxt); nxt += 1
                for _ in range(ne - 1): A.ext(ex.pop(0))
        for e in ex: A.ext(e)
        A.ext(toggle)
        return [m for i in range(nitems-TAIL, nitems) for m in mff(i)]
    tog = [f"v_xor_b32 v{r}, 0x10000, v{r}" for r in (5,6,7,8)]
    kv_tail = [m for i in range(16-TAIL, 16) for m in c_mf(i)]
    if gtrace:
        A("s_lshl_b32 s87, s2, 3"); A("s_add_u32 s87, s87, s28"); A("s_lshl_b32 s87, s87, 8"); A(f"s_add_u32 s87, s87, {WS_STAMP + (10 << 20)}")
    if s1:
        A("s_load_dwordx2 s[44:45], s[90:91], 8"); A("s_load_dwordx2 s[48:49], s[90:91], 16"); A("s_load_dwordx2 s[52:53], s[90:91], 0")
        for b_ in (46, 50, 54): A(f"s_mov_b32 s{b_}, {NB_IN}"); A(f"s_mov_b32 s{b_+1}, 0x20000")
    A("s_mov_b32 s41, 0")
    A(f"s_waitcnt vmcnt({npf}) lgkmcnt(0)")
    ST("first_landed")
    A("s_cmp_ge_u32 s28, 4"); A("s_cbranch_scc1 F1_KVENTRY1")
    A("s_waitcnt vmcnt(0)")
    A("s_branch F1_KVENTRY0")
    A("F1_CODE0:")
    def qbases():
        A(f"s_mul_i32 s32, s29, {128*1152}"); A(f"s_sub_u32 s36, {15*128*1152}, s32"); A("s_lshl_b32 s31, s37, 10")
    for g in range(2):
        A(f"F1_KVLOOP{g}:")
        step(16, 8, wreads_kv, c_read, c_mf, kv_tail, dma_kv() if g == 0 else touch, [], tog,
             "s_waitcnt vmcnt(0) lgkmcnt(0)" if g == 0 else "s_waitcnt lgkmcnt(0)", entry=f"F1_KVENTRY{g}:", front=kvfront)
        A("s_add_u32 s41, s41, 1"); A("s_cmp_lt_u32 s41, 7"); A(f"s_cbranch_scc1 F1_KVLOOP{g}")
        qbases()
        t2 = []
        if s1 and s1pf:
            t2 = [["v_lshlrev_b32 v9, 7, v1", "s_mul_i32 s34, s2, 9216", "s_cmp_eq_u32 s37, 3", "s_cbranch_scc1 F1_T3",
                   "s_cmp_eq_u32 s37, 1", "s_cbranch_scc1 F1_T1", "s_cmp_eq_u32 s37, 2", "s_cbranch_scc1 F1_T2",
                   "buffer_load_dword v15, v9, s[44:47], s34 offen sc1", "s_branch F1_T4",
                   "F1_T1:", "buffer_load_dword v15, v9, s[48:51], s34 offen sc1", "s_branch F1_T4",
                   "F1_T2:", "buffer_load_dword v15, v9, s[52:55], s34 offen sc1", "s_branch F1_T4",
                   "F1_T3:", "v_min_u32 v9, 896, v9", "s_add_u32 s34, s34, 8192",
                   "buffer_load_dword v15, v9, s[44:47], s34 offen sc1", "buffer_load_dword v15, v9, s[48:51], s34 offen sc1",
                   "buffer_load_dword v15, v9, s[52:55], s34 offen sc1", "F1_T4:"]]
        step(16, 8, wreads_kv, c_read, c_mf, kv_tail, dma_q(0) + dma_q(1) if g == 0 else t2, [], tog,
             "s_waitcnt vmcnt(0) lgkmcnt(0)" if g == 0 else "s_waitcnt lgkmcnt(0)")
        if g == 0: A("s_branch F1_KVDONE")
    A("F1_KVDONE:")
    ST("kv_done")
    A("s_load_dwordx2 s[16:17], s[90:91], 88"); A("s_load_dwordx2 s[20:21], s[90:91], 32")
    A(f"s_mov_b32 s18, {4096*576*2}"); A(f"s_mov_b32 s22, {2048*576*2}")
    if s1:
        A("s_load_dwordx2 s[92:93], s[90:91], 24")
        A("s_mov_b32 s94, 4608"); A("s_mov_b32 s95, 0x20000")
        A("s_lshl_b32 s96, s2, 1"); A("s_add_u32 s96, s96, s28"); A("s_sub_u32 s96, s96, 1")
        A("s_add_u32 s34, s2, 512"); A("s_cmp_eq_u32 s28, 3"); A("s_cselect_b32 s96, s34, s96")
        A("s_sub_u32 s34, s28, 1"); A("s_cmp_lt_u32 s34, 3"); A("s_cselect_b32 s96, s96, 999")
    A("s_mov_b32 s8, s56"); A("s_mov_b32 s9, s57"); A("s_mov_b32 s10, 256")
    A("s_lshr_b32 s34, s28, 1"); A("s_lshl_b32 s34, s34, 13"); A("s_lshr_b32 s35, s28, 2"); A("s_lshl_b32 s35, s35, 14"); A("s_sub_u32 s34, s34, s35")
    for r in (5, 6): A(f"v_add_u32 v{r}, s34, v{r}")
    A("s_and_b32 s39, s28, 1"); A("s_lshl_b32 s38, s39, 3")
    A("v_lshrrev_b32 v13, 4, v1")
    addrW(7, "s38")
    A("v_xor_b32 v8, 32, v7"); A("v_xor_b32 v9, 64, v7"); A("v_xor_b32 v10, 96, v7")
    A("s_lshl_b32 s40, s30, 20"); A("s_lshl_b32 s34, s29, 16"); A("s_add_u32 s40, s40, s34")
    A("s_lshr_b32 s34, s28, 2"); A("s_lshl_b32 s34, s34, 15"); A("s_add_u32 s40, s40, s34")
    A("s_lshl_b32 s34, s37, 10"); A("s_add_u32 s42, s40, s34")
    A("s_lshl_b32 s34, s37, 11"); A("s_add_u32 s43, s40, s34"); A("s_add_u32 s43, s43, 0x80000")
    def wreads_q(ks):
        b = WS_[ks]
        return [f"ds_read_b64_tr_b16 {ar(b+4*nb+2*half,2)}, v{7+nb} offset:{32768+(32*ks+4*half)*256}" for nb in range(4) for half in range(2)]
    def x_read(i):
        ks, qb = divmod(i, 4)
        return f"ds_read_b128 {ar(RING+4*(i%R),4)}, v{5+ks} offset:{qb*2048}"
    def x_mf(i):
        ks, qb = divmod(i, 4); b = WS_[ks]; f = ar(RING+4*(i%R),4)
        return [m16(vr(accQ(nb,qb),4), ar(b+4*nb,4), f) for nb in range(4)]
    def kv_store(idx):
        o = []
        if idx < 8:
            kp, T = idx >> 1, idx & 1
            src = [accV(T,2*kp)+r for r in range(4)] + [accV(T,2*kp+1)+r for r in range(4)]
            off = kp*8192 + T*1024; base = "s43"
        else:
            kb = idx - 8
            src = [16 + 8*(kb % 4) + r for r in range(8)]
            for r in range(4): o.append(f"v_accvgpr_read_b32 v{src[r]}, a{accK(0,kb)+r}")
            for r in range(4): o.append(f"v_accvgpr_read_b32 v{src[4+r]}, a{accK(1,kb)+r}")
            off = kb*4096; base = "s42"
        d = src[0]
        o += [f"v_cvt_pk_bf16_f32 v{d+j}, v{src[2*j]}, v{src[2*j+1]}" for j in range(4)]
        o.append(f"s_add_u32 s34, {base}, {off}")
        o.append(f"buffer_store_dwordx4 {vr(d,4)}, v11, {WSS}, s34 offen {st_flags}")
        return o
    def togq(j):
        da = SA[(j+1) % 3] - SA[j % 3]; dw = SW[(j+1) % 3] - SW[j % 3]
        return [f"v_add_u32 v{r}, {da & 0xffffffff}, v{r}" for r in (5, 6)] + [f"v_add_u32 v{r}, {dw & 0xffffffff}, v{r}" for r in (7, 8, 9, 10)]
    A("s_cmp_ge_u32 s28, 4"); A("s_cbranch_scc1 F1_Q1")
    for g in range(2):
        if g: A("F1_Q1:")
        prev = kv_tail
        for j in range(9):
            loader = (j < 4) == (g == 0)
            st0 = 4*(j % 4)
            ex = []
            if loader: ex = dma_q(j+2) if j <= 6 else []
            elif j < 8: ex = [kv_store(st0 + k) for k in range(4)]
            if g == 0 and j == 7 and not gtrace:
                ex.append(["v_mov_b32 v14, 0", "s_cmp_lg_u32 s28, 0", "s_cbranch_scc1 F1_NOEL",
                           "buffer_load_dwordx2 v[2:3], v14, s[8:11], 0 offen sc0 sc1", "F1_NOEL:"])
            if g == 0 and j == 8 and s1:
                blk = ["s_cmp_ge_u32 s96, 576", "s_cbranch_scc1 F1_NOS1L",
                       "s_mul_i32 s34, s96, 3641", "s_lshr_b32 s34, s34, 16", "s_mul_i32 s35, s34, 18", "s_sub_u32 s35, s96, s35",
                       "v_and_b32 v76, 3, v1", "s_lshl_b32 s35, s35, 2", "v_add_u32 v76, s35, v76",
                       "v_lshrrev_b32 v77, 2, v1", "s_lshl_b32 s34, s34, 4", "v_add_u32 v77, s34, v77",
                       f"v_mul_u32_u24 v78, {4*1152}, v77", "v_lshl_add_u32 v78, v76, 4, v78", f"v_subrev_u32 v79, {3*1152}, v78",
                       "v_lshlrev_b32 v4, 6, v76"]
                blk += [f"buffer_load_dwordx4 {ar(32+4*i,4)}, v4, s[92:95], 0 offen offset:{16*i}" for i in range(4)]
                blk += [f"buffer_load_dwordx4 {vr(16+4*r,4)}, v79, s[44:47], 0 offen offset:{r*1152}" for r in range(3)]
                for base, sd in ((28, 44), (44, 48), (60, 52)):
                    blk += [f"buffer_load_dwordx4 {vr(base+4*r,4)}, v78, s[{sd}:{sd+3}], 0 offen offset:{r*1152}" for r in range(4)]
                ex.append(blk + ["F1_NOS1L:"])
            if g == 0: w = "vmcnt(12) " if j <= 4 else ("vmcnt(4) " if j == 5 else "")
            else: w = "" if j <= 5 else ("vmcnt(12) " if j <= 7 else "vmcnt(0) ")
            if gtrace: w = "vmcnt(0) " if w == "vmcnt(0) " else (w.replace("12", "13").replace("t(4", "t(5") if w else "")
            prev = step(8, 4, wreads_q, x_read, x_mf, prev, ex, [], togq(j) if j < 8 else [], f"s_waitcnt {w}lgkmcnt(0)")
        A("s_waitcnt lgkmcnt(0)")
        A.ext(prev)
        if g == 0: A("s_branch F1_QDONE")
    A("F1_QDONE:")
    ST("q_done")
    A(f"s_mov_b32 s36, {QSCALE}")
    A("s_lshr_b32 s34, s28, 1")
    A("s_and_b32 s35, s34, 1"); A("s_lshl_b32 s35, s35, 14")
    A("s_lshr_b32 s34, s34, 1"); A("s_lshl_b32 s34, s34, 17"); A("s_add_u32 s34, s34, s35")
    A("s_lshl_b32 s35, s39, 11"); A("s_add_u32 s34, s34, s35")
    A("v_add_u32 v12, s34, v11")
    if cpf: code_touch(A, "F1_ATTN", "F1_END-F1_ATTN", 15, 8)
    for qb in range(4):
        for j in range(2):
            src = accQ(2*j, qb)
            for r in range(8): A(f"v_mul_f32 v{src+r}, s36, v{src+r}")
            for r in range(4): A(f"v_cvt_pk_bf16_f32 v{src+r}, v{src+2*r}, v{src+2*r+1}")
            A(f"ds_write_b128 v12, {vr(src,4)} offset:{(qb>>1)*8192 + ((qb&1)*4 + j)*1024}")
    A("s_lshl_b32 s60, s30, 10"); A(f"s_add_u32 s60, s60, {WS_FLAG}")
    A("s_lshl_b32 s61, s29, 7"); A("s_add_u32 s61, s61, s60")
    k2c.attn_setup(A)
    A("s_waitcnt vmcnt(0) lgkmcnt(0)")
    A("s_barrier")
    ST("stores_done")
    if gtrace:
        A("s_mov_b32 s98, 0")
    else:
        A("v_readfirstlane_b32 s98, v2"); A("v_readfirstlane_b32 s99, v3")
    A("v_mov_b32 v2, v11")
    A("s_cmp_lg_u32 s28, 0")
    A("s_cbranch_scc1 F1_NOSIG")
    A("s_mov_b32 s63, 0x40000")
    A("v_mov_b32 v14, 0")
    A("F1_EPL:")
    A("s_cmp_lg_u32 s98, 0"); A("s_cbranch_scc1 F1_EPOK")
    A("buffer_load_dwordx2 v[12:13], v14, s[8:11], 0 offen sc0 sc1")
    A("s_waitcnt vmcnt(0)")
    A("v_readfirstlane_b32 s98, v12"); A("v_readfirstlane_b32 s99, v13")
    A("s_sub_u32 s63, s63, 1"); A("s_cmp_lg_u32 s63, 0"); A("s_cbranch_scc1 F1_EPL")
    A("F1_EPOK:")
    A("v_mov_b32 v12, s98"); A("v_mov_b32 v13, s99")
    A("s_mov_b64 exec, 1")
    A("buffer_store_dwordx2 v[12:13], v14, s[4:7], s61 offen sc0 sc1")
    A("s_mov_b64 exec, -1")
    A("F1_NOSIG:")
    A("s_lshr_b32 s34, s28, 2"); A("s_lshl_b32 s34, s34, 17"); A("s_and_b32 s47, s28, 3"); A("s_lshl_b32 s47, s47, 13")
    A("s_add_u32 s34, s34, s47"); A("v_add_u32 v14, s34, v2")
    for i in range(8): A(f"ds_read_b128 {ar(4*i,4)}, v14 offset:{i*1024}")
    if s1:
        A("s_cmp_ge_u32 s96, 576"); A("s_cbranch_scc1 F1_NOS1")
        K_, V_, Q_, W_, KF, O_ = 16, 44, 60, 80, 84, 92
        A("v_lshlrev_b32 v78, 15, v76"); A("v_lshl_add_u32 v79, v77, 3, v78")
        A("v_lshlrev_b32 v77, 3, v77"); A("v_sub_u32 v78, v78, v77"); A("v_add_u32 v78, 4088, v78")
        A("s_mov_b32 s12, 0xffff0000"); A("s_mov_b32 s13, 0x05040100"); A("s_mov_b32 s14, 0x07060302")
        def unp(dst, src, hi): return f"v_and_b32 v{dst}, s12, v{src}" if hi else f"v_lshlrev_b32 v{dst}, 16, v{src}"
        for c in range(8):
            d, hi = c // 2, c % 2
            A(f"v_accvgpr_read_b32 v{W_+1}, a{32+2*c}"); A(f"v_accvgpr_read_b32 v{W_+3}, a{33+2*c}")
            for r in range(7): A(unp(KF+r, K_+4*r+d, hi))
            A(unp(W_, W_+1, 0)); A(unp(W_+1, W_+1, 1)); A(unp(W_+2, W_+3, 0)); A(unp(W_+3, W_+3, 1))
            for p_ in range(4):
                A(f"v_mul_f32 v{O_+p_}, v{KF+p_+3}, v{W_}")
                for u in range(1, 4): A(f"v_fmac_f32 v{O_+p_}, v{KF+p_+3-u}, v{W_+u}")
            for p_ in range(4): A(unp(KF+p_, V_+4*p_+d, hi))
            for p_ in range(4): A(f"v_mul_f32 v{O_+p_}, v{O_+p_}, v{KF+p_}")
            t = 96 + 4*c
            A(f"v_cvt_pk_bf16_f32 v{t}, v{O_+3}, v{O_+2}"); A(f"v_cvt_pk_bf16_f32 v{t+1}, v{O_+1}, v{O_}")
            A(f"v_perm_b32 v{t+2}, v{Q_+4+d}, v{Q_+d}, s{13+hi}"); A(f"v_perm_b32 v{t+3}, v{Q_+12+d}, v{Q_+8+d}, s{13+hi}")
            A(f"s_mov_b32 s34, {WS_XR + c*4096}"); A(f"s_mov_b32 s47, {WS_QT + c*4096}")
            A(f"buffer_store_dwordx2 {vr(t,2)}, v78, s[4:7], s34 offen"); A(f"buffer_store_dwordx2 {vr(t+2,2)}, v79, s[4:7], s47 offen")
        A("s_nop 1")
        A("F1_NOS1:")
    k2c.attn_init(A)
    A("s_cmp_lg_u32 s28, 0")
    A("s_cbranch_scc1 F1_OTHER")
    A("v_and_b32 v14, 7, v1"); A("v_lshlrev_b32 v14, 7, v14")
    A("s_mov_b32 s63, 0x40000")
    A("F1_POLL:")
    A("buffer_load_dwordx2 v[12:13], v14, s[4:7], s60 offen sc0 sc1")
    A("s_waitcnt vmcnt(0)")
    A("v_cmp_ne_u32 vcc, s98, v12")
    A("v_cmp_ne_u32 s[100:101], s99, v13")
    A("s_or_b64 vcc, vcc, s[100:101]")
    A("s_cmp_eq_u64 vcc, 0")
    A("s_cbranch_scc1 F1_GOT")
    A(f"s_sleep {sleep}")
    A("s_sub_u32 s63, s63, 1")
    A("s_cmp_lg_u32 s63, 0")
    A("s_cbranch_scc1 F1_POLL")
    A("F1_GOT:")
    if inv:
        A("buffer_inv sc1")
        A("s_waitcnt vmcnt(0)")
    A("s_branch F1_WAITED")
    A("F1_OTHER:")
    A("F1_WAITED:")
    A("s_waitcnt lgkmcnt(0)")
    A("s_barrier")
    ST("synced")
    qbx = []
    if late_pf:
        qbx = ["v_lshlrev_b32 v22, 7, v1", "s_cmp_eq_u32 s28, 3", "s_cbranch_scc1 F1_LPH",
               "s_mul_i32 s34, s2, 18432", "s_mul_i32 s47, s28, 6144", "s_add_u32 s34, s34, s47",
               "buffer_load_dword v23, v22, s[16:19], s34 offen sc1", "s_branch F1_LPD", "F1_LPH:",
               "s_mul_i32 s34, s2, 9216", "buffer_load_dword v23, v22, s[20:23], s34 offen sc1", "buffer_load_dword v23, v22, s[20:23], s34 offen offset:1024 sc1", "F1_LPD:"]
    A("F1_ATTN:")
    k2c.attn(A, ST, qsrc="lds", pfx="F1A", st_flags=ctx_flags, ld_flags="" if inv else "sc1", qb_extra=qbx, **attn_kw)
    ST("st_issued")
    if stamps: A("s_waitcnt vmcnt(0)")
    ST("end"); ST("end_rt", real=True)
    ST.dump(vt=10, st=34, kidx=0)
    A("F1_END:")
    A("s_endpgm")
    A(kd(name, 256, 144))
    return ST.names
```

```python
from asmlib import *
from k1 import srd, WS_KV, WS_Q, WS_CTX, f32bits, QSCALE
def m16(d, a, b, c=None): return f"v_mfma_f32_16x16x32_bf16 {d}, {a}, {b}, {c if c else d}"

def k1(A, name="k1_kernel", st_flags="", stamps=False, nodma=False, nomf=False, nost=False, pf=False):
    A(khead(name))
    ST = Stamps(A, stamps)
    A("s_cmp_ge_u32 s2, 256")
    A("s_cbranch_scc1 K1_END")
    ST("start_rt", real=True); ST("start")
    A("s_load_dwordx4 s[44:47], s[0:1], 48")
    A("s_load_dwordx4 s[48:51], s[0:1], 64")
    A("s_load_dwordx2 s[52:53], s[0:1], 80")
    A("s_load_dwordx2 s[54:55], s[0:1], 112")
    A("v_lshrrev_b32 v12, 6, v0")
    A("v_and_b32 v1, 63, v0")
    A("v_readfirstlane_b32 s28, v12")
    A("s_and_b32 s34, s2, 1")
    A("s_lshl_b32 s34, s34, 2")
    A("s_lshr_b32 s35, s2, 3")
    A("s_and_b32 s36, s35, 3")
    A("s_add_u32 s29, s34, s36")
    A("s_and_b32 s34, s2, 6")
    A("s_lshl_b32 s34, s34, 2")
    A("s_lshr_b32 s35, s35, 2")
    A("s_add_u32 s30, s34, s35")
    A("v_lshrrev_b32 v12, 3, v1")
    A("s_lshl_b32 s34, s28, 3")
    A("v_add_u32 v12, s34, v12")
    A("v_lshrrev_b32 v13, 4, v1")
    A("s_and_b32 s34, s28, 1")
    A("s_lshl_b32 s34, s34, 2")
    A("v_add_u32 v14, s34, v13")
    A("v_and_b32 v15, 7, v1")
    A("v_xor_b32 v14, v14, v15")
    A("v_lshlrev_b32 v14, 4, v14")
    A("v_lshl_add_u32 v2, v12, 10, v14")
    A("v_mul_u32_u24 v3, 1152, v12")
    A("v_add_u32 v3, v3, v14")
    A("s_lshl_b32 s34, s28, 2")
    A("v_add_u32 v12, s34, v13")
    A("v_lshlrev_b32 v12, 13, v12")
    A("s_and_b32 s34, s28, 2")
    A("s_lshl_b32 s34, s34, 1")
    A("v_add_u32 v14, s34, v13")
    A("v_lshlrev_b32 v14, 1, v14")
    A("v_and_b32 v15, 15, v1")
    A("v_xor_b32 v14, v14, v15")
    A("v_lshl_add_u32 v4, v14, 4, v12")
    A("s_lshl_b32 s34, s30, 8")
    A("v_add_u32 v4, s34, v4")
    A("v_and_b32 v12, 15, v1")
    A("v_lshlrev_b32 v12, 7, v12")
    A("s_lshr_b32 s34, s28, 2")
    A("s_lshl_b32 s34, s34, 14")
    A("v_add_u32 v12, s34, v12")
    A("v_bfe_u32 v14, v1, 1, 3")
    A("v_xor_b32 v14, v14, v13")
    for ks in range(2):
        A(f"v_xor_b32 v15, {4*ks}, v14")
        A(f"v_lshl_add_u32 v{5+ks}, v15, 4, v12")
    def addrW(dst, nb_sgpr2):
        A("v_bfe_u32 v12, v1, 2, 2")
        A("v_lshl_add_u32 v14, v13, 3, v12")
        A("v_lshlrev_b32 v14, 8, v14")
        A("v_and_b32 v15, 1, v13")
        A("v_lshl_add_u32 v12, v15, 2, v12")
        A("v_lshlrev_b32 v12, 1, v12")
        A(f"v_xor_b32 v12, {nb_sgpr2}, v12")
        A("v_lshl_add_u32 v14, v12, 4, v14")
        A("v_and_b32 v12, 3, v1")
        A(f"v_lshl_add_u32 v{dst}, v12, 3, v14")
    A("s_and_b32 s37, s28, 3")
    A("s_lshl_b32 s38, s37, 2")
    addrW(7, "s38")
    A("v_xor_b32 v8, 32, v7")
    A("v_lshlrev_b32 v11, 4, v1")
    A("s_waitcnt lgkmcnt(0)")
    srd(A, 4, 46, 2048*512*2); srd(A, 8, 44, 2048*576*2); srd(A, 12, 50, 512*4096*2)
    srd(A, 16, 52, 512*4096*2); srd(A, 20, 48, 576*4096*2); srd(A, 24, 54, 1 << 28)
    A("s_lshl_b32 s31, s28, 10")
    A("s_lshl_b32 s32, s29, 18")
    A("s_mov_b32 s33, 0")
    adv = ["s_add_u32 s32, s32, 128", f"s_add_u32 s33, s33, {64*8192}", "s_xor_b32 s31, s31, 0x10000"]
    def fin(g):
        g[-1] = g[-1] + adv
        if nodma: g = [[x for x in y if "buffer_load" not in x] for y in g]
        return g
    def dma_kv():
        g = []
        for i in range(2):
            g.append([f"s_add_u32 m0, s31, {32768+i*8192}", f"s_add_u32 s34, s33, {i*32*8192}", "buffer_load_dwordx4 v4, s[12:15], s34 offen lds"])
            g.append([f"s_add_u32 m0, s31, {49152+i*8192}", "s_nop 0", "buffer_load_dwordx4 v4, s[16:19], s34 offen lds"])
        for i in range(4):
            g.append([f"s_add_u32 m0, s31, {i*8192}", f"s_add_u32 s34, s32, {i*65536}", "buffer_load_dwordx4 v2, s[4:7], s34 offen lds"])
        return fin(g)
    def dma_q():
        g = []
        for i in range(2):
            g.append([f"s_add_u32 m0, s31, {32768+i*8192}", f"s_add_u32 s34, s33, {i*32*8192}", "buffer_load_dwordx4 v4, s[20:23], s34 offen lds"])
        for i in range(4):
            g.append([f"s_add_u32 m0, s31, {i*8192}", f"s_add_u32 s34, s32, {i*64*1152}", "buffer_load_dwordx4 v3, s[8:11], s34 offen lds"])
        return fin(g)
    for g in dma_kv(): A.ext(g)
    npf = 0
    if pf:
        A("s_lshr_b32 s35, s2, 3")
        A("s_and_b32 s34, s2, 1")
        A("s_lshl_b32 s34, s34, 20")
        A("s_lshl_b32 s36, s35, 15")
        A("s_add_u32 s34, s34, s36")
        A("v_lshlrev_b32 v12, 7, v0")
        A("s_cmp_lt_u32 s28, 4")
        A("s_cbranch_scc0 K1_PF1")
        A("buffer_load_dword v192, v12, s[4:7], s34 offen")
        A("K1_PF1:")
        A("v_lshrrev_b32 v13, 4, v0")
        A("v_and_b32 v13, 15, v13")
        A("v_lshlrev_b32 v13, 13, v13")
        A("v_and_b32 v14, 15, v0")
        A("v_lshl_add_u32 v13, v14, 7, v13")
        A("s_lshl_b32 s34, s35, 17")
        A("s_and_b32 s36, s2, 6")
        A("s_lshl_b32 s36, s36, 10")
        A("s_add_u32 s34, s34, s36")
        A("s_cmp_lt_u32 s28, 4")
        A("s_cbranch_scc0 K1_PF2")
        A("buffer_load_dword v193, v13, s[12:15], s34 offen")
        A("s_branch K1_PF3")
        A("K1_PF2:")
        A("buffer_load_dword v193, v13, s[16:19], s34 offen")
        A("K1_PF3:")
        A("v_lshrrev_b32 v13, 4, v1")
    for r in range(64, 192): A(f"v_mov_b32 v{r}, 0")
    for r in range(16, 64): A(f"v_mov_b32 v{r}, 0")
    WS_ = [16, 32]; RING = 48; R = 4
    def accK(T, kb): return 64 + 32*T + 4*kb
    def accV(T, kb): return 128 + 4*(2*kb + T)
    def wreads_kv(ks):
        b = WS_[ks]; o = []
        for mat in range(2):
            for nb in range(2):
                for half in range(2):
                    o.append(f"ds_read_b64_tr_b16 {vr(b+8*mat+4*nb+2*half,2)}, v{7+nb} offset:{32768+16384*mat+(32*ks+4*half)*256}")
        return o
    def c_read(i):
        ks, kb = divmod(i, 8)
        return f"ds_read_b128 {vr(RING+4*(i%R),4)}, v{5+ks} offset:{kb*2048}"
    def c_mf(i):
        ks, kb = divmod(i, 8); b = WS_[ks]; f = vr(RING+4*(i%R),4)
        return [m16(vr(accK(0,kb),4), vr(b,4), f), m16(vr(accK(1,kb),4), vr(b+4,4), f),
                m16(vr(accV(0,kb),4), f, vr(b+8,4)), m16(vr(accV(1,kb),4), f, vr(b+12,4))]
    TAIL = 2
    def step(nitems, per_ks, wreads, rdf, mff, prev_tail, dma, extra, toggle, first_wait):
        A(first_wait)
        A("s_barrier")
        q = []
        def issue(instrs, tag):
            for x in instrs: A(x); q.append(tag)
        def wait_for(tags):
            last = max(i for i, t in enumerate(q) if t in tags)
            n = len(q) - 1 - last
            A(f"s_waitcnt lgkmcnt({min(n,15)})")
        issue(wreads(0), "w0")
        nxt = 0
        while nxt < R - TAIL:
            issue([rdf(nxt)], nxt); nxt += 1
        half = len(prev_tail) // TAIL
        dq = list(dma)
        for t in range(TAIL):
            mm = prev_tail[t*half:(t+1)*half]
            take = dq[:(len(dma)+TAIL-1)//TAIL]; dq = dq[len(take):]
            A.ext(weave(mm, take))
            issue([rdf(nxt)], nxt); nxt += 1
        ex = list(extra)
        for i in range(nitems - TAIL):
            ks = i // per_ks
            wait_for({i, f"w{ks}"})
            mm = mff(i)
            fill = []
            if i == 1: pass
            A.ext(mm)
            if nxt < nitems:
                issue([rdf(nxt)], nxt); nxt += 1
            if i == 1 and nitems > per_ks:
                issue(wreads(1), "w1")
            if ex and i >= 2:
                A.ext(ex.pop(0))
        for e in ex: A.ext(e)
        A.ext(toggle)
        return [m for i in range(nitems-TAIL, nitems) for m in mff(i)]
    tog = [f"v_xor_b32 v{r}, 0x10000, v{r}" for r in (5,6,7,8)]
    kv_tail = [m for i in range(16-TAIL, 16) for m in c_mf(i)]
    if stamps: A("s_waitcnt vmcnt(0)" if not pf else "s_waitcnt vmcnt(1)")
    ST("first_landed")
    if pf:
        step(16, 8, wreads_kv, c_read, c_mf, kv_tail, dma_kv(), [], tog, "s_waitcnt vmcnt(1) lgkmcnt(0)")
    A(f"s_mov_b32 s41, {1 if pf else 0}")
    A("K1_KVLOOP:")
    step(16, 8, wreads_kv, c_read, c_mf, kv_tail, dma_kv(), [], tog, "s_waitcnt vmcnt(0) lgkmcnt(0)")
    A("s_add_u32 s41, s41, 1")
    A("s_cmp_lt_u32 s41, 7")
    A("s_cbranch_scc1 K1_KVLOOP")
    A("s_mul_i32 s32, s29, %d" % (256*1152))
    A("s_mov_b32 s33, 0")
    step(16, 8, wreads_kv, c_read, c_mf, kv_tail, dma_q(), [], tog, "s_waitcnt vmcnt(0) lgkmcnt(0)")
    ST("kv_done")
    for r in range(192, 256): A(f"v_mov_b32 v{r}, 0")
    A("s_lshr_b32 s34, s28, 1")
    A("s_lshl_b32 s34, s34, 13")
    A("s_lshr_b32 s35, s28, 2")
    A("s_lshl_b32 s35, s35, 14")
    A("s_sub_u32 s34, s34, s35")
    for r in (5, 6): A(f"v_add_u32 v{r}, s34, v{r}")
    A("s_and_b32 s39, s28, 1")
    A("s_lshl_b32 s38, s39, 3")
    addrW(7, "s38")
    A("v_xor_b32 v8, 32, v7"); A("v_xor_b32 v9, 64, v7"); A("v_xor_b32 v10, 96, v7")
    A("s_lshl_b32 s40, s30, 20")
    A("s_lshl_b32 s34, s29, 16")
    A("s_add_u32 s40, s40, s34")
    A("s_lshr_b32 s34, s28, 2")
    A("s_lshl_b32 s34, s34, 15")
    A("s_add_u32 s40, s40, s34")
    A("s_lshl_b32 s34, s37, 10")
    A("s_add_u32 s42, s40, s34")
    A("s_lshl_b32 s34, s37, 11")
    A("s_add_u32 s43, s40, s34")
    A("s_add_u32 s43, s43, 0x80000")
    def accQ(nb, qb): return 192 + 16*qb + 4*nb
    def wreads_q(ks):
        b = WS_[ks]; o = []
        for nb in range(4):
            for half in range(2):
                o.append(f"ds_read_b64_tr_b16 {vr(b+4*nb+2*half,2)}, v{7+nb} offset:{32768+(32*ks+4*half)*256}")
        return o
    def x_read(i):
        ks, qb = divmod(i, 4)
        return f"ds_read_b128 {vr(RING+4*(i%R),4)}, v{5+ks} offset:{qb*2048}"
    def x_mf(i):
        ks, qb = divmod(i, 4); b = WS_[ks]; f = vr(RING+4*(i%R),4)
        return [m16(vr(accQ(nb,qb),4), vr(b+4*nb,4), f) for nb in range(4)]
    def kv_store(idx):
        kind = idx & 1; n = idx >> 1
        tmp = 12 if False else None
        t = [12, 13, 14, 15]
        if kind == 0:
            kb = n; src = [accK(0,kb)+r for r in range(4)] + [accK(1,kb)+r for r in range(4)]
            off = kb*4096; base = "s42"
        else:
            kp, T = n >> 1, n & 1
            src = [accV(T,2*kp)+r for r in range(4)] + [accV(T,2*kp+1)+r for r in range(4)]
            off = kp*8192 + T*1024; base = "s43"
        d = src[0]
        o = [f"v_cvt_pk_bf16_f32 v{d+j}, v{src[2*j]}, v{src[2*j+1]}" for j in range(4)]
        o.append(f"s_add_u32 s34, {base}, {off}")
        if not nost: o.append(f"buffer_store_dwordx4 {vr(d,4)}, v11, s[24:27], s34 offen {st_flags}")
        return o
    togq = [f"v_xor_b32 v{r}, 0x10000, v{r}" for r in (5,6,7,8,9,10)]
    prev = kv_tail
    for j in range(9):
        nst_prev = 2 if (1 <= j <= 8 and not nost) else 0
        ex = [kv_store(2*j), kv_store(2*j+1)] if j < 8 else []
        prev = step(8, 4, wreads_q, x_read, x_mf, prev, dma_q() if j < 8 else [], ex, togq if j < 8 else [], f"s_waitcnt vmcnt({nst_prev}) lgkmcnt(0)")
    A("s_waitcnt lgkmcnt(0)")
    A.ext(prev)
    ST("q_done")
    A(f"s_mov_b32 s36, {QSCALE}")
    A("s_lshl_b32 s40, s30, 19")
    A(f"s_add_u32 s40, s40, {WS_Q}")
    A("s_lshl_b32 s34, s29, 16")
    A("s_add_u32 s40, s40, s34")
    A("s_lshr_b32 s34, s28, 1")
    A("s_lshl_b32 s34, s34, 14")
    A("s_add_u32 s40, s40, s34")
    A("s_lshl_b32 s34, s39, 11")
    A("s_add_u32 s40, s40, s34")
    A("s_nop 7")
    for qb in range(4):
        for j in range(2):
            src = accQ(2*j, qb)
            for r in range(8): A(f"v_mul_f32 v{src+r}, s36, v{src+r}")
            for r in range(4): A(f"v_cvt_pk_bf16_f32 v{src+r}, v{src+2*r}, v{src+2*r+1}")
            A(f"s_add_u32 s34, s40, {(qb>>1)*8192 + ((qb&1)*4 + j)*1024}")
            A(f"buffer_store_dwordx4 {vr(src,4)}, v11, s[24:27], s34 offen {st_flags}")
    ST("st_issued")
    if stamps: A("s_waitcnt vmcnt(0)")
    ST("end"); ST("end_rt", real=True)
    ST.dump()
    A("K1_END:")
    A("s_endpgm")
    A(kd(name, 256, 256))
    if nomf:
        A.L[:] = [l for l in A.L if not ('v_mfma' in l or 'ds_read' in l)]
    return ST.names
```

```python
from asmlib import *
from k1 import srd, WS_KV, WS_Q, WS_CTX, f32bits
from k1b import m16

V_X, V_Z = 3, 4
V_L, V_THR, V_LT, V_T = 5, 7, 8, 12
S0, P0, NM0, O0, ACC = 24, 56, 72, 80, 144
AQ, AF, NB = 0, 32, 16
def Sreg(qs, kT): return S0 + 16*qs + 4*kT
def Preg(qs, ks): return P0 + 8*qs + 4*ks
def Oreg(qs, d16): return O0 + (d16//4)*32 + qs*16 + (d16 % 4)*4
QB_LDS = 0x20000

def attn_setup(A):
    B = A
    B("s_lshl_b32 s32, s29, 1")
    B("s_sub_u32 s39, 31, s32")
    B("s_add_u32 s32, s32, 2")
    B("s_lshl_b32 s41, s28, 11")
    B("s_lshl_b32 s40, s30, 20")
    B("s_add_u32 s37, s40, s41")
    B("s_add_u32 s38, s37, 0x80000")
    B("s_lshl_b32 s34, s39, 14")
    B("s_add_u32 s56, s37, s34")
    B("s_add_u32 s57, s38, s34")
    B("s_mov_b32 s58, s41")
    B("s_add_u32 s59, s41, 16384")
    B("s_and_b32 s47, s28, 3")
    B("s_lshl_b32 s48, s29, 2")
    B("s_add_u32 s49, s48, s47")
    B("s_sub_u32 s50, 60, s48")
    B("s_add_u32 s50, s50, s47")
    B("s_lshl_b32 s51, s30, 19")
    B(f"s_add_u32 s51, s51, {WS_Q}")
    B("s_lshl_b32 s46, s50, 13")
    B("s_add_u32 s46, s46, s51")
    B("s_cmp_lt_u32 s28, 4")
    B("s_cselect_b32 s52, s49, s50")
    B("s_lshl_b32 s33, s52, 5")
    B("s_lshl_b32 s53, s52, 13")
    B("s_add_u32 s53, s53, s51")
    B("s_lshl_b32 s54, s30, 13")
    B(f"s_add_u32 s54, s54, {WS_CTX}")
    B("s_lshl_b32 s45, s49, 18")
    B("s_add_u32 s45, s45, s54")
    B("s_lshl_b32 s55, s50, 18")
    B("s_add_u32 s55, s55, s54")
    B(f"s_mov_b32 s44, {f32bits(2.0**24)}")
    B("s_sub_u32 s34, s32, 2")
    B("s_cmp_lt_u32 s28, 4")
    B("s_cselect_b32 s36, 7, 2")
    B("s_lshl_b32 s36, s36, s34")
    B("s_or_b32 s36, s36, 0x18001")

def attn_init(B):
    for r in range(NM0, O0+64): B(f"v_mov_b32 v{r}, 0")
    B(f"v_mov_b32 v{V_L}, 0"); B(f"v_mov_b32 v{V_L+1}, 0")
    B(f"v_mov_b32 v{V_Z}, v2"); B(f"v_mov_b32 v{V_X}, v2")
    B("s_mov_b32 s42, 1"); B("s_mov_b32 s31, 0"); B("s_mov_b32 s35, 0"); B("s_mov_b32 s43, 0x8000")

def attn(A, ST, D=8, prio=1, tail=4, st_flags="", pk=False, fine=-1, qsrc="global", wpair=True, pfx="K2", ld_flags="", dma_at=(0, 2, 4, 6), trace=False, g1m=False, g1_at=(2, 6, 10, 14), p0=1, p1=2, pt=3, align=0, smord=1, wgran=2, pre_at=8, qb_extra=()):
    L = lambda s: s.replace("@", pfx + "_")
    def B(s): A(L(s))
    uid = [0]
    def dma(kind):
        off, m = ("s37", "s58") if kind == 0 else ("s38", "s59")
        return [f"s_mov_b32 m0, {m}", f"s_add_u32 {m}, {m}, 0x8000",
                f"buffer_load_dwordx4 v2, s[4:7], {off} offen {ld_flags} lds", f"buffer_load_dwordx4 v2, s[4:7], {off} offen offset:1024 {ld_flags} lds",
                f"s_and_b32 {m}, {m}, 0x1ffff", f"s_add_u32 {off}, {off}, 16384"]
    def guarded(conds, body):
        uid[0] += 1; lab = L(f"@D{uid[0]}")
        o = []
        for c in conds: o += c + [f"s_cbranch_scc1 {lab}"]
        return o + body + [f"{lab}:"]
    def dma_blocks(slow):
        if not slow:
            ph = [["s_cmp_eq_u32 s43, 0x8000"]]
            return [dma(0), dma(1), guarded(ph, dma(0)), guarded(ph, dma(1))]
        lk = ["s_cmp_gt_u32 s37, s56"]; lv = ["s_cmp_gt_u32 s38, s57"]
        return [guarded([lk], dma(0)), guarded([lv], dma(1)),
                guarded([lk, ["s_add_u32 s47, s31, 1", "s_cmp_lt_u32 s47, s32"]], dma(0)),
                guarded([lv, ["s_cmp_lt_u32 s31, s32"]], dma(1))]
    def qload_g(base):
        o = []
        for i in range(8):
            if i == 4: o.append(f"s_add_u32 s34, {base}, 4096")
            o.append(f"buffer_load_dwordx4 {ar(AQ+4*i,4)}, v2, s[4:7], {base if i < 4 else 's34'} offen offset:{(i%4)*1024}")
        return o
    def qload_l(ldsbase):
        o = ["s_and_b32 s34, s28, 3", "s_lshl_b32 s34, s34, 13", f"s_add_u32 s34, s34, {ldsbase}", f"v_add_u32 v{V_T+11}, s34, v2"]
        o += [f"ds_read_b128 {ar(AQ+4*i,4)}, v{V_T+11} offset:{i*1024}" for i in range(8)]
        return o
    def qk_items():
        it = []
        for kT in range(4):
            for ds in range(4):
                def fn(f, kT=kT, ds=ds):
                    return [m16(vr(Sreg(qs,kT),4), f, ar(AQ+16*qs+4*ds,4), vr(NM0+4*qs,4) if ds == 0 else vr(Sreg(qs,kT),4)) for qs in range(2)]
                it.append((V_Z, (kT*4+ds)*1024, fn))
        return it
    def pv_items():
        it = []
        for ks in range(2):
            for d16 in range(8):
                def fn(f, ks=ks, d16=d16):
                    return [m16(vr(Oreg(qs,d16),4), f, vr(Preg(qs,ks),4)) for qs in range(2)]
                it.append((V_X, 16384 + (ks*8+d16)*1024, fn))
        return it
    class Stream:
        def __init__(s, items): s.it = items; s.issued = 0
        def f(s, i): return ar(AF + 4*(i % NB), 4)
        def rds(s, n):
            o = []
            while s.issued < min(n, len(s.it)):
                a, off, _ = s.it[s.issued]
                o.append(f"ds_read_b128 {s.f(s.issued)}, v{a} offset:{off}"); s.issued += 1
            return o
        def run(s, i0, i1, extra=None):
            step = wgran
            while (i1 - i0) % step: step //= 2
            for i in range(i0, i1, step):
                A(f"s_waitcnt lgkmcnt({min(s.issued - (i+step), 15)})")
                if align: A(".p2align 3")
                for k in range(step):
                    A.ext(s.it[i+k][2](s.f(i+k)))
                    A.ext(s.rds(i + k + 1 + D))
                    if extra and (i+k) in extra: A.ext(extra[i+k])
            A.ext(s.rds(len(s.it)))
        def mf(s, i0, i1): return [m for i in range(i0, i1) for m in s.it[i][2](s.f(i))]
    def pairs():
        o = []
        for kT in range(4):
            for qs in range(2):
                for k in range(2):
                    o.append((Sreg(qs, kT) + 2*k, Preg(qs, kT//2) + 2*(kT % 2) + k, qs))
        return o
    def sm_list():
        pr = pairs(); seen = set(); NT = 4
        def fin(k):
            s, p, qs = pr[k]; t = V_T + 2*(k % NT); la = V_LT + 2*qs; r = []
            if pk:
                if qs not in seen: seen.add(qs); r.append(f"v_pk_add_f32 {vr(la,2)}, {vr(t,2)}, 0")
                else: r.append(f"v_pk_add_f32 {vr(la,2)}, {vr(la,2)}, {vr(t,2)}")
            elif qs not in seen:
                seen.add(qs); r.append(f"v_add_f32 v{la}, v{t}, v{t+1}")
            else:
                r.append(f"v_add_f32 v{la}, v{la}, v{t}"); r.append(f"v_add_f32 v{la}, v{la}, v{t+1}")
            r.append(f"v_cvt_pk_bf16_f32 v{p}, v{t}, v{t+1}")
            return r
        g = []
        for k in range(16):
            s, p, qs = pr[k]; t = V_T + 2*(k % NT)
            g.append([f"v_exp_f32 v{t}, v{s}", f"v_exp_f32 v{t+1}, v{s+1}"] + (fin(k-1) if k else []))
        if smord == 1:
            seen.clear(); g = []
            def ex(k):
                s, p, qs = pr[k]; t = V_T + 2*(k % NT)
                return [f"v_exp_f32 v{t}, v{s}", f"v_exp_f32 v{t+1}, v{s+1}"]
            for k in range(0, 16, 2):
                if k:
                    a = fin(k-2); b = fin(k-1)
                    g.append(ex(k) + a[:-1]); g.append(ex(k+1) + b[:-1] + [a[-1], b[-1]])
                else:
                    g.append(ex(0)); g.append(ex(1))
            a = fin(14); b = fin(15)
            g.append(a + b)
            return g
        last = fin(15)
        if pk: last = [last[1], last[0], f"v_add_f32 v{V_LT}, v{V_LT}, v{V_LT+1}", f"v_add_f32 v{V_LT+2}, v{V_LT+2}, v{V_LT+3}"]
        g.append(["s_nop 0"] + last)
        return g
    def softmax(tag, slow, blocks, pre=()):
        if slow:
            B("s_lshl_b32 s34, s35, 6"); B("s_add_u32 s34, s34, 63"); B("s_cmp_gt_u32 s34, s33")
            B(f"s_cbranch_scc1 @MASK_{tag}")
            B(f"@MASKRET_{tag}:")
            B("s_cmp_lg_u32 s42, 0"); B(f"s_cbranch_scc1 @INIT_{tag}")
            B(f"@INITRET_{tag}:")
        g = sm_list()
        at = dict(zip(dma_at, blocks))
        for k, grp in enumerate(g):
            if align >= 2 and (k == 2 or (k-1) in at): A(".p2align 3")
            A.ext(grp)
            if k in at: A.ext(at[k])
            if pre and 0 <= k - pre_at < len(pre): A(pre[k - pre_at])
        B(f"v_add_f32 v{V_T+8}, v{V_LT}, v{V_LT+2}")
        B(f"v_cmp_nge_f32 vcc, s44, v{V_T+8}")
        B(f"s_cbranch_vccnz @FIX_{tag}")
        B(f"@FIXRET_{tag}:")
        for qs in range(2): B(f"v_add_f32 v{V_L+qs}, v{V_L+qs}, v{V_LT+2*qs}")
    def xlane(op, v, t1, t2):
        o = []
        for sw in ("32", "16"):
            o += [f"v_mov_b32 v{t1}, v{v}", f"v_mov_b32 v{t2}, v{v}", "s_nop 1", f"v_permlane{sw}_swap_b32 v{t1}, v{t2}", "s_nop 1", f"{op} v{v}, v{t1}, v{t2}"]
        return o
    def sregs(qs): return list(range(S0+16*qs, S0+16*qs+16))
    def oregs(qs): return [Oreg(qs, d)+r for d in range(8) for r in range(4)]
    def rowmax(qs, m):
        s = sregs(qs)
        B(f"v_max3_f32 v{m}, v{s[0]}, v{s[1]}, v{s[2]}")
        for i in range(3, 15, 2): B(f"v_max3_f32 v{m}, v{m}, v{s[i]}, v{s[i+1]}")
        B(f"v_max_f32 v{m}, v{m}, v{s[15]}")
        A.ext(xlane("v_max_f32", m, V_T+2, V_T+3))
    def init_blk(tag):
        B(f"@INIT_{tag}:")
        B("s_nop 7")
        for qs in range(2):
            m = V_T + qs
            rowmax(qs, m)
            for r in sregs(qs) + list(range(NM0+4*qs, NM0+4*qs+4)): B(f"v_sub_f32 v{r}, v{r}, v{m}")
        B("s_mov_b32 s42, 0")
        B(f"s_branch @INITRET_{tag}")
    def fix_blk(tags):
        for t in tags:
            B(f"@FIX_{t}:")
            B(f"s_getpc_b64 s[62:63]")
            B(f"@FIXPC_{t}:")
            B(f"s_add_u32 s62, s62, @FIXRET_{t}-@FIXPC_{t}")
            B(f"s_addc_u32 s63, s63, -1" if True else "")
            B(f"s_branch @FIXBODY_{tags[0]}")
        B(f"@FIXBODY_{tags[0]}:")
        for qs in range(2):
            m = V_T + 8 + qs
            rowmax(qs, m)
            B(f"v_max_f32 v{m}, 0, v{m}")
            for r in sregs(qs) + list(range(NM0+4*qs, NM0+4*qs+4)): B(f"v_sub_f32 v{r}, v{r}, v{m}")
            B(f"v_sub_f32 v{V_T+4}, 0, v{m}")
            B(f"v_exp_f32 v{V_T+4}, v{V_T+4}")
            B("s_nop 0")
            B(f"v_mul_f32 v{V_L+qs}, v{V_L+qs}, v{V_T+4}")
            for r in oregs(qs): B(f"v_mul_f32 v{r}, v{r}, v{V_T+4}")
        for grp in sm_list(): A.ext(grp)
        B("s_setpc_b64 s[62:63]")
    def mask_blk(tag):
        B(f"@MASK_{tag}:")
        B("s_lshl_b32 s34, s35, 6"); B("s_sub_u32 s34, s33, s34")
        B(f"v_and_b32 v{V_THR}, 15, v1"); B(f"v_lshrrev_b32 v{V_T}, 4, v1"); B(f"v_lshlrev_b32 v{V_T}, 2, v{V_T}")
        B(f"v_sub_u32 v{V_THR}, v{V_THR}, v{V_T}"); B(f"v_add_u32 v{V_THR}, s34, v{V_THR}")
        B(f"v_mov_b32 v{V_T}, 0xff800000")
        B("s_nop 3")
        el = [(Sreg(qs,kT)+r, 16*kT + r - 16*qs) for kT in range(4) for qs in range(2) for r in range(4)]
        for i0 in range(0, 32, 2):
            B(f"v_cmp_gt_i32 s[60:61], {el[i0][1]}, v{V_THR}"); B(f"v_cmp_gt_i32 vcc, {el[i0+1][1]}, v{V_THR}")
            B("s_nop 0")
            B(f"v_cndmask_b32 v{el[i0][0]}, v{el[i0][0]}, v{V_T}, s[60:61]"); B(f"v_cndmask_b32 v{el[i0+1][0]}, v{el[i0+1][0]}, v{V_T}, vcc")
        B(f"s_branch @MASKRET_{tag}")
    def pack_src(i):
        qs, j = i // 4, i % 4
        return [Oreg(qs, 2*j)+k for k in range(4)] + [Oreg(qs, 2*j+1)+k for k in range(4)], qs, j // 2
    def sp(n):
        if prio: B(f"s_setprio {n}")
    adv = [f"v_mov_b32 v{V_X}, v{V_Z}", f"v_add_u32 v{V_Z}, s43, v{V_Z}", f"v_and_b32 v{V_Z}, 0x1ffff, v{V_Z}"]
    A.ext(dma(0))
    if qsrc == "global": A.ext(qload_g("s53"))
    A.ext(dma(0)); A.ext(dma(1))
    if qsrc == "global": attn_init(A)
    B("s_waitcnt vmcnt(4)")
    B("s_barrier")
    ST("k0_landed")
    F = [ST.reserve(f"f{i}") for i in range(6)] if fine >= 0 else None
    if trace:
        B("s_lshl_b32 s98, s2, 3"); B("s_add_u32 s98, s98, s28"); B("s_lshl_b32 s98, s98, 7"); B(f"s_add_u32 s98, s98, {WS_STAMP + (8 << 20)}")
    def fs(i, d=0):
        if fine >= 0: ST.at(F[i], "s31", fine + d)
        if trace and i == 0:
            B("s_memtime s[100:101]"); B("s_lshl_b32 s99, s31, 2"); B("s_add_u32 s99, s99, s98"); B("v_mov_b32 v22, 0"); B("s_waitcnt lgkmcnt(0)")
            B("v_mov_b32 v23, s100"); B("buffer_store_dword v23, v22, s[4:7], s99 offen")
    B("s_cmp_ge_u32 s28, 4")
    B("s_cbranch_scc1 @G1")
    s = Stream(qk_items()); A.ext(s.rds(D)); s.run(0, 16 - tail)
    tl = s.mf(16 - tail, 16)
    B("s_waitcnt vmcnt(0) lgkmcnt(0)")
    B("s_barrier")
    B("s_branch @G0_S")
    for slow in (False, True):
        tag = "g0s" if slow else "g0f"
        B("@G0_S:" if slow else "@G0_F:")
        fs(0)
        if align: A(".p2align 3")
        A.ext(tl)
        sp(0)
        if slow:
            B("s_add_u32 s47, s31, 1"); B("s_cmp_gt_u32 s47, s32"); B("s_cselect_b32 s43, 2, 1"); B("s_lshl_b32 s43, s43, 15")
            B("s_cmp_eq_u32 s47, s32"); B("s_cbranch_scc1 @QB")
            B("@QB_RET:")
        A.ext(adv)
        s = Stream(pv_items() + qk_items())
        pre = s.rds(D)
        if pre_at < 0: A.ext(pre); pre = []
        assert pre_at + len(pre) <= 17
        if slow:
            B("s_cmp_eq_u32 s31, s32"); B("s_cbranch_scc1 @EPI_A")
            B("@EPI_A_RET:")
        fs(1); fs(2)
        softmax(tag, slow, dma_blocks(slow), pre)
        fs(3)
        sp(p0)
        if slow:
            B("s_cmp_eq_u32 s31, 16"); B("s_cbranch_scc1 @G0_LAST")
            B("s_add_u32 s47, s31, 1"); B("s_cmp_eq_u32 s47, s32"); B("s_cbranch_scc1 @SWITCH")
            B("@SWITCH_RET:")
        B("s_lshr_b32 s34, s43, 15"); B("s_add_u32 s35, s35, s34")
        B("s_add_u32 s31, s31, 1")
        s.run(0, 32 - tail)
        sp(pt)
        fs(4, 1)
        if slow:
            B("s_cmp_ge_u32 s31, s32"); B("s_cselect_b32 s43, 2, 1"); B("s_lshl_b32 s43, s43, 15")
        B("s_bitcmp1_b32 s36, s31")
        B("s_waitcnt vmcnt(0) lgkmcnt(0)")
        if fine >= 0:
            fs(5, 1); B("s_bitcmp1_b32 s36, s31")
        B("s_barrier")
        if slow:
            B("s_cbranch_scc0 @G0_F"); B("s_branch @G0_S")
        else:
            B("s_cbranch_scc0 @G0_F")
    B("@QB:")
    if qsrc == "global": A.ext(qload_g("s46"))
    else:
        A.ext(qload_l(QB_LDS)); B("s_waitcnt lgkmcnt(0)"); A.ext(list(qb_extra))
    B("s_branch @QB_RET")
    B("@SWITCH:")
    if qsrc == "global": B("s_waitcnt vmcnt(0)")
    for r in range(NM0, NM0+8): B(f"v_mov_b32 v{r}, 0")
    B("s_branch @SWITCH_RET")
    B("@EPI_A:")
    for qs in range(2):
        A.ext(xlane("v_add_f32", V_L+qs, V_T, V_T+1))
        B(f"v_rcp_f32 v{V_L+qs}, v{V_L+qs}")
    B("s_nop 0")
    for i in range(8):
        src, qs, _ = pack_src(i); t = V_T + 4*(i % 2)
        for r in src: B(f"v_mul_f32 v{r}, v{r}, v{V_L+qs}")
        for k in range(4): B(f"v_cvt_pk_bf16_f32 v{t+k}, v{src[2*k]}, v{src[2*k+1]}")
        if i == 4: B("s_add_u32 s45, s45, 4096")
        B(f"buffer_store_dwordx4 {vr(t,4)}, v2, s[4:7], s45 offen offset:{(i%4)*1024} {st_flags}")
        for r in src: B(f"v_mov_b32 v{r}, 0")
    B(f"v_mov_b32 v{V_L}, 0"); B(f"v_mov_b32 v{V_L+1}, 0")
    B("s_mov_b32 s42, 1")
    B("s_lshl_b32 s33, s50, 5")
    B("s_branch @EPI_A_RET")
    init_blk("g0s"); mask_blk("g0s")
    B("@G0_LAST:")
    s = Stream(pv_items()); s.issued = D; s.run(0, 16)
    sp(0)
    B("s_waitcnt vmcnt(0) lgkmcnt(0)")
    B("s_barrier")
    B("s_branch @MERGE")
    B("@G1:")
    B("s_waitcnt vmcnt(0)")
    B("s_barrier")
    sp(p1)
    s = Stream(qk_items()); A.ext(s.rds(D)); s.run(0, 16, extra=dict(zip(g1_at, dma_blocks(True))) if g1m else None)
    B("s_branch @G1_V")
    for slow in (False, True):
        tag = "g1s" if slow else "g1f"
        B("@G1_S:" if slow else "@G1_F:")
        fs(0)
        sp(p1)
        s = Stream(pv_items() + qk_items()); A.ext(s.rds(D))
        s.run(0, 32, extra=dict(zip(g1_at, dma_blocks(slow))) if g1m else None)
        if slow: B("@G1_V:")
        fs(1); fs(2)
        sp(0)
        softmax(tag, slow, [] if g1m else dma_blocks(slow))
        fs(3)
        B("s_add_u32 s31, s31, 1")
        if slow:
            B("s_cmp_ge_u32 s31, s32"); B("s_cselect_b32 s43, 2, 1"); B("s_lshl_b32 s43, s43, 15")
        A.ext(adv)
        B("s_lshr_b32 s34, s43, 15"); B("s_add_u32 s35, s35, s34")
        fs(4, 1)
        B("s_bitcmp1_b32 s36, s31")
        B("s_waitcnt vmcnt(0)")
        if fine >= 0:
            fs(5, 1); B("s_bitcmp1_b32 s36, s31")
        B("s_barrier")
        if slow:
            B("s_cbranch_scc1 @G1_S")
            B("s_cmp_lt_u32 s31, 17"); B("s_cbranch_scc1 @G1_F")
        else:
            B("s_cbranch_scc0 @G1_F")
    s = Stream(pv_items()); A.ext(s.rds(D)); s.run(0, 16)
    B("s_branch @MERGE")
    init_blk("g1s"); mask_blk("g1s")
    fix_blk(["g0f", "g0s", "g1f", "g1s"])
    B("@MERGE:")
    ST("loop_done")
    for qs in range(2): A.ext(xlane("v_add_f32", V_L+qs, V_T, V_T+1))
    B("s_lshr_b32 s34, s28, 1"); B("s_lshl_b32 s34, s34, 15"); B("s_and_b32 s47, s28, 1"); B("s_lshl_b32 s47, s47, 13"); B("s_add_u32 s34, s34, s47")
    B(f"v_add_u32 v{V_Z}, s34, v2")
    B(f"v_xor_b32 v{V_X}, 0x10000, v{V_Z}")
    B("s_lshl_b32 s34, s28, 10")
    B("s_add_u32 s34, s34, 0x20000")
    B(f"v_add_u32 v{V_T+8}, s34, v2")
    B(f"v_xor_b32 v{V_T+9}, 0x1000, v{V_T+8}")
    B(f"v_mov_b32 v{V_T+4}, v{NM0}"); B(f"v_mov_b32 v{V_T+5}, v{NM0+4}"); B(f"v_mov_b32 v{V_T+6}, v{V_L}"); B(f"v_mov_b32 v{V_T+7}, v{V_L+1}")
    B(f"ds_write_b128 v{V_T+8}, {vr(V_T+4,4)}")
    B("s_cmp_ge_u32 s28, 4")
    B("s_cbranch_scc1 @MG1")
    for half in range(2):
        if half == 1: B("@MG1:")
        send = O0 + 32*(1-half); keep = O0 + 32*half
        for i in range(8): B(f"ds_write_b128 v{V_Z}, {vr(send+4*i,4)} offset:{i*1024}")
        B("s_waitcnt lgkmcnt(0)")
        B("s_barrier")
        B(f"ds_read_b128 {vr(S0,4)}, v{V_T+9}")
        for i in range(8): B(f"ds_read_b128 {vr(send+4*i,4)}, v{V_X} offset:{i*1024}")
        B("s_waitcnt lgkmcnt(8)")
        for qs in range(2):
            own_nm = V_T+4+qs; oth_nm = S0+qs; fo = S0+4+2*qs; fp = S0+5+2*qs; mn = S0+8
            B(f"v_min_f32 v{mn}, v{own_nm}, v{oth_nm}")
            B(f"v_sub_f32 v{fo}, v{mn}, v{own_nm}"); B(f"v_sub_f32 v{fp}, v{mn}, v{oth_nm}")
            B(f"v_exp_f32 v{fo}, v{fo}"); B(f"v_exp_f32 v{fp}, v{fp}"); B("s_nop 0")
            B(f"v_mul_f32 v{mn}, v{fo}, v{V_L+qs}"); B(f"v_fma_f32 v{mn}, v{fp}, v{S0+2+qs}, v{mn}")
            B(f"v_rcp_f32 v{mn}, v{mn}"); B("s_nop 0")
            B(f"v_mul_f32 v{fo}, v{fo}, v{mn}"); B(f"v_mul_f32 v{fp}, v{fp}, v{mn}")
        B("s_waitcnt lgkmcnt(0)")
        n = 0
        for i in range(8):
            src, qs, dh = pack_src(i)
            if dh != half: continue
            t = V_T + 4*(n % 2); n += 1
            for r in src:
                B(f"v_mul_f32 v{r}, v{r}, v{S0+4+2*qs}")
                B(f"v_fma_f32 v{r}, v{r - keep + send}, v{S0+5+2*qs}, v{r}")
            for k in range(4): B(f"v_cvt_pk_bf16_f32 v{t+k}, v{src[2*k]}, v{src[2*k+1]}")
            B(f"s_add_u32 s34, s55, {(i//4)*4096}")
            B(f"buffer_store_dwordx4 {vr(t,4)}, v2, s[4:7], s34 offen offset:{(i%4)*1024} {st_flags}")
        if half == 0: B("s_branch @FIN")
    B("@FIN:")

def k2(A, name="k2_kernel", stamps=False, SH=16, **kw):
    A(khead(name))
    ST = Stamps(A, stamps, base=64, srd=4, wave="s28")
    A("s_cmp_ge_u32 s2, 256"); A("s_cbranch_scc1 K2_END")
    ST("start_rt", real=True); ST("start")
    A("s_load_dwordx2 s[8:9], s[0:1], 112")
    A("v_lshrrev_b32 v10, 6, v0"); A("v_and_b32 v1, 63, v0"); A("v_readfirstlane_b32 s28, v10"); A("v_lshlrev_b32 v2, 4, v1")
    A("s_and_b32 s34, s2, 7"); A("s_lshl_b32 s34, s34, 2"); A("s_lshr_b32 s47, s2, 3"); A("s_and_b32 s47, s47, 3")
    A("s_add_u32 s30, s34, s47"); A("s_lshr_b32 s29, s2, 5")
    attn_setup(A)
    A("s_waitcnt lgkmcnt(0)")
    srd(A, 4, 8, 1 << 28)
    attn(A, ST, **kw)
    ST("st_issued")
    if stamps: A("s_waitcnt vmcnt(0)")
    ST("end"); ST("end_rt", real=True)
    ST.dump(vt=10, st=34, kidx=1)
    A("K2_END:"); A("s_endpgm")
    A(kd(name, ACC+96, ACC))
    return ST.names
```

```python
from asmlib import *
from k1 import srd, WS_CTX, WS_PART
from k1b import m16
from f1 import WS_EPOCH, code_touch
from ka import WS_XR, WS_QT, NB_IN, CS, C0, C1
STG = 49152
WS_FLAG3 = 122 << 20
LDS3 = 3*STG

def k3(A, name="k3_kernel", stamps=False, sleep=1, cpf=True, cfl="", ofl="", nocst=False, al=False):
    A(khead(name))
    ST = Stamps(A, stamps, base=64, srd=4, wave="s28")
    A("s_cmp_ge_u32 s2, 256"); A("s_cbranch_scc1 K3_END")
    ST("start_rt", real=True); ST("start")
    A("s_load_dwordx4 s[44:47], s[0:1], 88")
    A("s_load_dwordx2 s[48:49], s[0:1], 112")
    A("s_load_dwordx4 s[52:55], s[0:1], 32")
    A("v_lshrrev_b32 v10, 6, v0"); A("v_and_b32 v1, 63, v0"); A("v_readfirstlane_b32 s28, v10"); A("v_lshlrev_b32 v2, 4, v1")
    if cpf: code_touch(A, "K3_CODE0", "K3_END-K3_CODE0", 15, 12)
    A("v_mov_b32 v14, 0")
    A("s_cmp_ge_u32 s2, 192"); A("s_cbranch_scc1 K3_CONV")
    A("s_and_b32 s29, s2, 3")
    A("s_lshr_b32 s34, s2, 3"); A("s_and_b32 s30, s34, 7"); A("s_and_b32 s35, s2, 4"); A("s_lshl_b32 s35, s35, 1"); A("s_add_u32 s30, s30, s35")
    A("s_lshr_b32 s31, s34, 3")
    A("s_lshr_b32 s42, s28, 2")
    A("s_and_b32 s37, s28, 3")
    A("s_lshl_b32 s34, s30, 2"); A("s_add_u32 s43, s34, s37")
    A("s_lshl_b32 s33, s43, 18"); A("s_lshl_b32 s34, s29, 16"); A("s_add_u32 s33, s33, s34"); A("s_lshl_b32 s34, s42, 15"); A("s_add_u32 s33, s33, s34")
    A(f"s_add_u32 s33, s33, {WS_CTX}")
    A("s_mov_b32 s56, s33"); A("s_add_u32 s57, s33, 4096")
    A("s_mul_i32 s41, s29, 6")
    A("s_mov_b32 s36, 2731")
    A("s_lshl_b32 s34, s28, 6")
    VD = 3
    for i in range(6):
        A("v_add_u32 v10, s34, v1")
        A("v_mul_u32_u24 v11, s36, v10"); A("v_lshrrev_b32 v11, 16, v11")
        A("v_mul_u32_u24 v12, 24, v11"); A("v_sub_u32 v12, v10, v12")
        A("v_and_b32 v13, 6, v11"); A("v_xor_b32 v12, v12, v13")
        A("v_add_u32 v12, s41, v12"); A("v_subrev_u32 v13, 24, v12"); A("v_min_u32 v12, v12, v13")
        A("v_lshrrev_b32 v9, 6, v11"); A("v_mad_u32_u24 v12, v9, 12, v12"); A("v_subrev_u32 v13, 24, v12"); A("v_min_u32 v12, v12, v13")
        A("v_mul_u32_u24 v13, 448, v9"); A("v_add_u32 v11, v11, v13")
        A("v_mul_u32_u24 v11, 1152, v11")
        A(f"v_lshl_add_u32 v{VD+i}, v12, 4, v11")
        A("s_add_u32 s34, s34, 512")
    A(f"s_mul_i32 s32, s29, {1024*1152}"); A("s_mul_i32 s34, s31, 384"); A("s_add_u32 s32, s32, s34")
    A("s_lshl_b32 s38, s28, 10")
    A("s_waitcnt lgkmcnt(0)")
    ST("karg")
    srd(A, 4, 48, 1 << 28); srd(A, 8, 44, 4096*576*2)
    CT = [16, 32, 48]; WR = 64; NW = 16; ACC = 128; VA = 224
    def dma(j):
        return [[f"s_add_u32 m0, s38, {(j%3)*STG + i*8192}", f"s_add_u32 s34, s32, {j*64*1152}" if i == 0 else "s_nop 0",
                 f"buffer_load_dwordx4 v{VD+i}, s[8:11], s34 offen lds"] for i in range(6)]
    def cload(j):
        g = []
        for a in range(2):
            for k2 in range(2):
                pre = [f"s_add_u32 s35, s{56+a}, {(j//2)*8192}"] if k2 == 0 else []
                g.append(pre + [f"buffer_load_dwordx4 {vr(CT[j%3]+8*a+4*k2,4)}, v2, s[4:7], s35 offen offset:{(2*(j%2)+k2)*1024}"])
        return g
    for g in cload(0) + dma(0): A.ext(g)
    ST("issued")
    A("v_lshrrev_b32 v10, 2, v1"); A("v_mul_u32_u24 v11, 384, v10"); A("v_and_b32 v10, 6, v10")
    A("v_bfe_u32 v12, v1, 1, 1"); A("v_or_b32 v10, v10, v12")
    A("v_and_b32 v12, 1, v1"); A("v_lshl_add_u32 v11, v12, 3, v11")
    A(f"s_mul_i32 s34, s42, {64*384}"); A("v_add_u32 v11, s34, v11")
    for u in range(4):
        A(f"v_xor_b32 v12, {2*u}, v10"); A(f"v_lshl_add_u32 v{VA+u}, v12, 4, v11")
    for r in range(ACC, ACC+96): A(f"v_mov_b32 v{r}, 0")
    A(f"s_mov_b32 s34, {WS_EPOCH}")
    A("buffer_load_dwordx2 v[232:233], v14, s[4:7], s34 offen")
    for g in cload(1) + dma(1): A.ext(g)
    A("s_waitcnt vmcnt(11)")
    A("K3_CODE0:")
    TAIL = 4; DW = 10
    def wf(i): return WR + 4*(i % NW)
    def wr(i):
        k2, t = divmod(i, 12)
        return [f"ds_read_b64_tr_b16 {vr(wf(i)+2*half,2)}, v{VA+4+t%4} offset:{(32*k2+16*half)*384+(t//4)*128}" for half in range(2)]
    def mf(j, i):
        k2, t = divmod(i, 12)
        return [m16(vr(ACC+48*a+4*t,4), vr(wf(i),4), vr(CT[j%3]+8*a+4*k2,4)) for a in range(2)]
    tail = []
    for j in range(8):
        if j: A(f"s_waitcnt vmcnt({10 if j < 7 else 0}) lgkmcnt(0)")
        for u in range(4): A(f"v_add_u32 v{VA+4+u}, {(j%3)*STG}, v{VA+u}")
        A("s_barrier")
        if j == 0: ST("landed")
        first = [x for i in range(4) for x in wr(i)]
        if tail:
            for m, r in zip(tail, first): A(m); A(r)
        else: A.ext(first)
        issued = 4
        while issued < 7: A.ext(wr(issued)); issued += 1
        fill = (cload(j+2) + dma(j+2)) if j+2 < 8 else []
        for i in range(24 - TAIL):
            A(f"s_waitcnt lgkmcnt({min(15, 2*(issued - i - 1))})")
            mm = mf(j, i)
            rr = wr(issued) if issued < 24 else [None, None]
            if issued < 24: issued += 1
            A(mm[0])
            if rr[0]: A(rr[0])
            A(mm[1])
            if rr[1]: A(rr[1])
            if i % 2 == 0 and fill: A.ext(fill.pop(0))
        assert issued == 24 and not fill
        tail = [m for i in range(24 - TAIL, 24) for m in mf(j, i)]
    A("s_waitcnt lgkmcnt(0)")
    A.ext(tail)
    ST("gemm_done")
    A("s_mul_i32 s34, s28, 12288"); A("v_add_u32 v9, s34, v2")
    A("s_xor_b32 s35, s28, 4"); A("s_mul_i32 s35, s35, 12288"); A("v_add_u32 v10, s35, v2")
    srd(A, 8, 46, 2048*1152*2)
    A("s_barrier")
    snd = [(a_, t) for a_ in range(2) for t in range(6)]
    for i, (a_, t) in enumerate(snd): A(f"ds_write_b128 v9, {vr(ACC+48*a_+4*(t+6),4)} offset:{i*1024}")
    A("s_mul_i32 s39, s30, 3"); A("s_add_u32 s39, s39, s31")
    A(f"s_mul_i32 s50, s39, {16*4*3072}"); A("s_mul_i32 s34, s37, 3072"); A("s_add_u32 s50, s50, s34"); A(f"s_add_u32 s50, s50, {WS_PART}")
    A("v_readfirstlane_b32 s62, v232"); A("v_readfirstlane_b32 s63, v233")
    A("s_lshl_b32 s52, s39, 12"); A(f"s_add_u32 s52, s52, {WS_FLAG3}")
    A("s_lshl_b32 s34, s29, 10"); A("s_add_u32 s53, s52, s34"); A("s_lshl_b32 s34, s28, 7"); A("s_add_u32 s53, s53, s34")
    def dest(dexpr):
        A(dexpr); A("s_and_b32 s34, s34, 3"); A("s_lshl_b32 s34, s34, 2"); A("s_add_u32 s34, s34, s29")
        A(f"s_mul_i32 s34, s34, {4*3072}"); A("s_add_u32 s34, s34, s50")
    A("s_lshl_b32 s40, s42, 1"); A("s_add_u32 s40, s40, s29")
    A("s_waitcnt lgkmcnt(0)"); A("s_barrier")
    order = [(a_, t) for t in (3, 4, 5, 0, 1, 2) for a_ in range(2)]
    for (a_, t) in order: A(f"ds_read_b128 {vr(ACC+48*a_+4*(t+6),4)}, v10 offset:{snd.index((a_, t))*1024}")
    for i, (a_, t) in enumerate(order):
        if i == 6: A("s_cmp_eq_u32 s42, 0"); A("s_cbranch_scc1 K3_OWN")
        A(f"s_waitcnt lgkmcnt({11 - i})")
        x = ACC + 48*a_ + 4*t; pk = 16 + 2*i
        for r in range(4): A(f"v_add_f32 v{x+r}, v{x+r}, v{x+24+r}")
        A(f"v_cvt_pk_bf16_f32 v{pk}, v{x}, v{x+1}"); A(f"v_cvt_pk_bf16_f32 v{pk+1}, v{x+2}, v{x+3}")
        if i == 0: dest("s_add_u32 s34, s40, 1")
        if i == 6: dest("s_add_u32 s34, s40, 0")
        if a_ == 1: A(f"buffer_store_dwordx4 {vr(pk-2,4)}, v2, s[4:7], s34 offen offset:{(t%3)*1024} sc1")
    A("s_waitcnt vmcnt(0)")
    A("s_mov_b64 exec, 1")
    A("buffer_store_dwordx2 v[232:233], v14, s[4:7], s53 offen sc0 sc1")
    A("s_mov_b64 exec, -1")
    A("s_branch K3_FIN")
    A("K3_OWN:")
    A("s_waitcnt lgkmcnt(0)")
    for (a_, t) in order[6:]:
        x = ACC + 48*a_ + 4*t
        for r in range(4): A(f"v_add_f32 v{x+r}, v{x+r}, v{x+24+r}")
    A("v_and_b32 v12, 3, v1"); A("v_max_u32 v12, 1, v12"); A("v_sub_u32 v13, s29, v12"); A("v_and_b32 v13, 3, v13"); A("v_lshlrev_b32 v13, 10, v13")
    A("v_lshrrev_b32 v12, 1, v12"); A("v_lshl_add_u32 v12, v12, 9, v13"); A("s_lshl_b32 s34, s37, 7"); A("s_add_u32 s52, s52, s34")
    A("v_and_b32 v10, 15, v1"); A("v_mul_u32_u24 v10, 2304, v10"); A("v_lshrrev_b32 v13, 4, v1"); A("v_lshl_add_u32 v3, v13, 3, v10")
    A(f"s_mul_i32 s54, s43, {32*2304}")
    A("s_mul_i32 s34, s31, 384"); A("s_add_u32 s54, s54, s34"); A("s_mul_i32 s34, s29, 96"); A("s_add_u32 s54, s54, s34"); A("s_add_u32 s54, s54, 1152")
    A(f"s_add_u32 s55, s54, {16*2304}")
    A(f"s_mul_i32 s34, s29, {4*4*3072}"); A("s_add_u32 s50, s50, s34")
    A("s_mov_b32 s61, 0x40000")
    A("s_waitcnt vmcnt(0)")
    ST("sent")
    A("s_mov_b64 exec, 1")
    A("buffer_store_dwordx2 v[232:233], v14, s[4:7], s53 offen sc0 sc1")
    A("s_mov_b64 exec, -1")
    A("K3_POLL:")
    A("buffer_load_dwordx2 v[8:9], v12, s[4:7], s52 offen sc0 sc1")
    A("s_waitcnt vmcnt(0)")
    A("v_cmp_ne_u32 vcc, s62, v8"); A("v_cmp_ne_u32 s[36:37], s63, v9")
    A("s_or_b64 vcc, vcc, s[36:37]"); A("s_cmp_eq_u64 vcc, 0"); A("s_cbranch_scc1 K3_GOT")
    A(f"s_sleep {sleep}")
    A("s_sub_u32 s61, s61, 1"); A("s_cmp_lg_u32 s61, 0"); A("s_cbranch_scc1 K3_POLL")
    A("K3_GOT:")
    ST("polled")
    for d in range(1, 4):
        A(f"s_add_u32 s34, s29, {d}"); A("s_and_b32 s34, s34, 3"); A(f"s_mul_i32 s34, s34, {4*3072}"); A("s_add_u32 s34, s34, s50")
        for t in range(3): A(f"buffer_load_dwordx4 {vr(48+12*(d-1)+4*t,4)}, v2, s[4:7], s34 offen offset:{t*1024} sc1")
    A("s_mov_b32 s36, 0xffff0000")
    for d in range(1, 4):
        A(f"s_waitcnt vmcnt({3*(3-d)})")
        for t in range(3):
            for a_ in range(2):
                for h in range(2):
                    y = 48 + 12*(d-1) + 4*t + 2*a_ + h; x = ACC + 48*a_ + 4*t + 2*h
                    A(f"v_lshlrev_b32 v4, 16, v{y}"); A(f"v_and_b32 v5, s36, v{y}")
                    A(f"v_add_f32 v{x}, v{x}, v4"); A(f"v_add_f32 v{x+1}, v{x+1}, v5")
    for a_ in range(2):
        for t in range(3):
            x = ACC + 48*a_ + 4*t
            A(f"v_cvt_pk_bf16_f32 v{x}, v{x}, v{x+1}"); A(f"v_cvt_pk_bf16_f32 v{x+1}, v{x+2}, v{x+3}")
            A(f"buffer_store_dwordx2 {vr(x,2)}, v3, s[8:11], s{54+a_} offen offset:{t*32} {ofl}")
    ST("xdone")
    A("s_branch K3_FIN")
    A("K3_CONV:")
    def xs(i):
        if stamps: A(f"s_memtime s[{64+2*i}:{65+2*i}]")
    A("s_and_b32 s34, s2, 7"); A("s_mul_i32 s29, s34, 9"); A("s_lshr_b32 s35, s2, 3"); A("s_sub_u32 s35, s35, 24"); A("s_add_u32 s29, s29, s35")
    A("s_mul_i32 s40, s34, 72"); A("s_add_u32 s40, s40, 64"); A("s_add_u32 s40, s40, s35")
    A(f"s_mul_i32 s31, s28, {CS}")
    A(f"v_add_u32 v3, {0 if al else 2}, v2")
    A("v_and_b32 v8, 15, v1"); A("v_lshrrev_b32 v9, 4, v1")
    A("v_lshlrev_b32 v10, 5, v8"); A("v_lshl_add_u32 v10, v9, 3, v10")
    A("v_and_b32 v12, 1, v8")
    A("v_add_u32 v13, v8, v12"); A("v_lshl_add_u32 v13, v9, 3, v13"); A("v_lshlrev_b32 v13, 1, v13")
    A(f"v_mul_u32_u24 v12, {C1-C0}, v12"); A("v_sub_u32 v13, v13, v12")
    A(f"s_add_u32 s34, s31, {C1}"); A("v_add_u32 v16, s34, v13")
    for i in range(1, 4): A(f"v_add_u32 v{16+i}, {1024*i}, v16")
    A("v_lshlrev_b32 v12, 5, v8"); A("v_lshlrev_b32 v13, 4, v9"); A("v_sub_u32 v13, v13, v12")
    A(f"s_add_u32 s34, s31, {4064-3584}"); A("v_add_u32 v20, s34, v13")
    A("v_lshl_add_u32 v21, v9, 3, v8"); A("v_sub_u32 v21, 15, v21")
    A("v_bfe_u32 v22, v1, 2, 2"); A(f"v_mul_u32_u24 v22, {CS}, v22")
    A("v_lshl_add_u32 v22, v9, 5, v22"); A("v_and_b32 v13, 3, v1"); A("v_lshl_add_u32 v22, v13, 3, v22")
    A("s_lshl_b32 s34, s28, 9"); A(f"s_add_u32 s34, s34, {C0}"); A("v_add_u32 v22, s34, v22")
    A("v_mul_u32_u24 v23, 2304, v1")
    A("s_waitcnt lgkmcnt(0)")
    srd(A, 4, 48, 1 << 28); srd(A, 8, 52, NB_IN); srd(A, 12, 54, 1152); srd(A, 16, 46, 2048*1152*2)
    QR = 24; CA = 40; FS = [72, 136]; AD = 200
    xs(9)
    A("s_lshl_b32 s30, s29, 3"); A("s_add_u32 s30, s30, s28"); A("s_lshl_b32 s32, s30, 12")
    A(f"s_add_u32 s33, s32, {WS_XR}")
    A("s_mov_b32 m0, s31"); A("s_nop 0")
    for i in range(4): A(f"buffer_load_dwordx4 v2, s[4:7], s33 offen offset:{i*1024} lds")
    A(f"s_add_u32 m0, s31, {C0+32}"); A("s_nop 0")
    for i in range(4): A(f"buffer_load_dwordx4 v2, s[8:11], s32 offen offset:{i*1024} lds")
    A(f"s_add_u32 m0, s31, {C1+32}"); A("s_nop 0")
    for i in range(4): A(f"buffer_load_dwordx4 v3, s[8:11], s32 offen offset:{i*1024} lds")
    XB_ = 8*CS; SUM = 9*CS
    A("s_lshl_b32 s41, s40, 12")
    A("s_cmp_gt_u32 s28, 2"); A("s_cbranch_scc1 K3_XL")
    A("s_cmp_eq_u32 s28, 1"); A("s_cbranch_scc1 K3_XL1")
    A("s_cmp_eq_u32 s28, 2"); A("s_cbranch_scc1 K3_XL2")
    A(f"s_mov_b32 m0, {XB_}"); A(f"s_add_u32 s34, s41, {WS_XR}")
    for i in range(4): A(f"buffer_load_dwordx4 v2, s[4:7], s34 offen offset:{i*1024} lds")
    A("s_branch K3_XL")
    A("K3_XL1:")
    A(f"s_mov_b32 m0, {XB_+C0+32}"); A("s_nop 0")
    for i in range(4): A(f"buffer_load_dwordx4 v2, s[8:11], s41 offen offset:{i*1024} lds")
    A("s_branch K3_XL")
    A("K3_XL2:")
    A(f"s_mov_b32 m0, {XB_+C1+32}"); A("s_nop 0")
    for i in range(4): A(f"buffer_load_dwordx4 v3, s[8:11], s41 offen offset:{i*1024} lds")
    A("K3_XL:")
    A("s_lshl_b32 s34, s40, 1")
    A("buffer_load_ushort v208, v14, s[12:15], s34 offen")
    A("buffer_load_ushort v209, v14, s[8:11], s41 offen")
    A("buffer_load_ushort v210, v14, s[8:11], s41 offen offset:4094")
    A(f"s_add_u32 s34, s41, {WS_QT}"); A("s_lshl_b32 s35, s28, 9"); A("s_add_u32 s34, s34, s35")
    A("buffer_load_dwordx2 v[212:213], v10, s[4:7], s34 offen")
    A("s_lshl_b32 s34, s30, 1")
    A("buffer_load_ushort v5, v14, s[12:15], s34 offen")
    A("buffer_load_ushort v6, v14, s[8:11], s32 offen")
    A("buffer_load_ushort v7, v14, s[8:11], s32 offen offset:4094")
    A(f"s_add_u32 s33, s32, {WS_QT}")
    for w in range(8): A(f"buffer_load_dwordx2 {vr(QR+2*w,2)}, v10, s[4:7], s33 offen offset:{w*512}")
    A("v_mov_b32 v12, 0"); A("v_mov_b32 v13, 0")
    A("v_lshlrev_b32 v11, 3, v1"); A("v_add_u32 v11, s31, v11")
    A("ds_write_b64 v11, v[12:13] offset:4096")
    A("v_cmp_gt_u32 vcc, 4, v1"); A("s_and_saveexec_b64 s[36:37], vcc")
    A(f"ds_write_b64 v11, v[12:13] offset:{C0}"); A(f"ds_write_b64 v11, v[12:13] offset:{C1}")
    A("s_mov_b64 exec, s[36:37]")
    A("s_cmp_lg_u32 s28, 2"); A("s_cbranch_scc1 K3_XZ")
    A("v_lshlrev_b32 v4, 3, v1"); A(f"v_add_u32 v4, {XB_}, v4")
    A("ds_write_b64 v4, v[12:13] offset:4096")
    A("s_mov_b64 exec, 15")
    A(f"ds_write_b64 v4, v[12:13] offset:{C0}"); A(f"ds_write_b64 v4, v[12:13] offset:{C1}")
    A("s_mov_b64 exec, -1")
    A("s_waitcnt vmcnt(8)")
    A(f"v_mov_b32 v4, {XB_}")
    A(f"ds_write_b16 v4, v209 offset:{C1+30}"); A(f"ds_write_b16 v4, v210 offset:{C1+4124}")
    A("K3_XZ:")
    A("s_waitcnt vmcnt(8)")
    A("v_mov_b32 v12, s31")
    A(f"ds_write_b16 v12, v6 offset:{C1+30}"); A(f"ds_write_b16 v12, v7 offset:{C1+4124}")
    xs(2)
    A("s_waitcnt lgkmcnt(0)"); A("s_barrier")
    xs(3)
    def rds(r):
        b = FS[r % 2]; o = []
        for i in range(8):
            o.append(f"ds_read_b128 {vr(b+32+4*i,4)}, v20 offset:{(7-i)*512+64*r}")
            for hh in range(2):
                of = 16*r + 128*(i % 2) + 2*hh
                o.append(f"ds_read2_b32 {vr(b+4*i+2*hh,2)}, v{16+i//2} offset0:{of} offset1:{of+1}")
        return o
    def mfs(r, CA=CA):
        b = FS[r % 2]; o = []
        for k in range(8):
            for i in range(8-k):
                o.append(m16(vr(CA+4*(i+k),4), vr(b+4*i,4), vr(b+32+4*k,4), "0" if (r == 0 and k == 0) else None))
            if r == 0: o.append(m16(vr(CA+4*k,4), vr(AD,4), vr(b+32+4*k,4)))
        return o
    A.ext(rds(0))
    A("v_lshlrev_b32 v13, 16, v5")
    for k in range(4):
        A(f"v_cmp_eq_u32 s[36:37], {2*k}, v21"); A(f"v_cmp_eq_u32 vcc, {2*k+1}, v21"); A("s_nop 1")
        A(f"v_cndmask_b32 v{AD+k}, 0, v5, s[36:37]"); A(f"v_cndmask_b32 v{AD+k}, v{AD+k}, v13, vcc")
    A("s_cmp_eq_u32 s28, 0"); A("s_cselect_b32 s34, -1, 0"); A("v_and_b32 v208, s34, v208"); A("v_lshlrev_b32 v13, 16, v208")
    for k in range(4):
        A(f"v_cmp_eq_u32 s[36:37], {2*k}, v21"); A(f"v_cmp_eq_u32 vcc, {2*k+1}, v21"); A("s_nop 1")
        A(f"v_cndmask_b32 v{AD+4+k}, 0, v208, s[36:37]"); A(f"v_cndmask_b32 v{AD+4+k}, v{AD+4+k}, v13, vcc")
    A("s_lshl_b32 s34, s28, 6"); A(f"s_add_u32 s34, s34, {XB_}"); A("s_sub_u32 s34, s34, s31")
    for r in range(8):
        A("s_waitcnt lgkmcnt(0)")
        if r == 7:
            for q_ in range(16, 21): A(f"v_add_u32 v{q_}, s34, v{q_}")
        A.ext(weave(mfs(r), rds(r+1) if r < 7 else rds(0)))
    A("s_waitcnt lgkmcnt(0)")
    XA = 136
    xs(4)
    A.ext([m.replace(f"{vr(AD,4)}", f"{vr(AD+4,4)}") for m in mfs(0, XA)])
    A("s_waitcnt vmcnt(0)")
    A("s_mov_b32 s34, 0xffff0000")
    A(f"s_add_u32 s35, s31, {C0}"); A("v_add_u32 v11, s35, v10")
    A("s_nop 4")
    for w in range(8):
        a = CA+4*w
        A(f"v_lshlrev_b32 v12, 16, v{QR+2*w}"); A(f"v_and_b32 v13, s34, v{QR+2*w}")
        A(f"v_lshlrev_b32 v4, 16, v{QR+2*w+1}"); A(f"v_and_b32 v5, s34, v{QR+2*w+1}")
        A(f"v_mul_f32 v{a}, v{a}, v12"); A(f"v_mul_f32 v{a+1}, v{a+1}, v13"); A(f"v_mul_f32 v{a+2}, v{a+2}, v4"); A(f"v_mul_f32 v{a+3}, v{a+3}, v5")
        A(f"v_cvt_pk_bf16_f32 v{a}, v{a}, v{a+1}"); A(f"v_cvt_pk_bf16_f32 v{a+1}, v{a+2}, v{a+3}")
        A(f"ds_write_b64 v11, {vr(a,2)} offset:{w*512}")
    xs(5)
    A("v_add_u32 v11, s31, v2")
    for w in range(8): A(f"ds_write_b128 v11, {vr(XA+4*w,4)} offset:{(w%4)*1024 + (w//4)*C1}")
    A(f"s_mul_i32 s35, s28, {256*2304}"); A("s_lshl_b32 s34, s29, 4"); A("s_add_u32 s41, s35, 0"); A("s_add_u32 s35, s35, s34")
    A("s_and_b32 s34, s28, 3"); A("s_lshl_b32 s34, s34, 10"); A("s_lshr_b32 s33, s28, 2"); A(f"s_mul_i32 s33, s33, {C1}"); A("s_add_u32 s34, s34, s33")
    A("v_add_u32 v11, s34, v2"); A(f"v_add_u32 v12, {4*CS}, v11")
    A("s_waitcnt lgkmcnt(0)")
    xs(6)
    A("s_barrier")
    xs(7)
    for w in range(8): A(f"ds_read_b128 {vr(96+4*w,4)}, v{11 + w//4} offset:{(w%4)*CS}")
    for blk in range(4):
        for hf in range(2): A(f"ds_read_b64_tr_b16 {vr(72+4*blk+2*hf,2)}, v22 offset:{hf*4*CS+blk*128}")
    for blk in range(4):
        A(f"s_waitcnt lgkmcnt({6-2*blk})")
        A(f"buffer_store_dwordx4 {vr(72+4*blk,4)}, v23, s[16:19], s35 offen {cfl}" if not nocst else "s_nop 0")
        A(f"s_add_u32 s35, s35, {64*2304}")
    xs(8)
    for st_ in (16, 8, 4):
        for r in range(st_): A(f"v_add_f32 v{96+r}, v{96+r}, v{96+st_+r}")
    A("s_mov_b32 s34, 0xffff0000")
    A("v_lshlrev_b32 v12, 16, v212"); A("v_and_b32 v13, s34, v212"); A("v_lshlrev_b32 v4, 16, v213"); A("v_and_b32 v5, s34, v213")
    A("v_mul_f32 v96, v96, v12"); A("v_mul_f32 v97, v97, v13"); A("v_mul_f32 v98, v98, v4"); A("v_mul_f32 v99, v99, v5")
    A("v_cvt_pk_bf16_f32 v96, v96, v97"); A("v_cvt_pk_bf16_f32 v97, v98, v99")
    A("v_mul_u32_u24 v12, 1152, v10")
    A("s_lshl_b32 s34, s40, 1"); A("s_add_u32 s41, s41, s34"); A(f"s_add_u32 s34, s41, {2*2304}")
    if not nocst:
        A(f"buffer_store_short v96, v12, s[16:19], s41 offen {cfl}"); A(f"buffer_store_short_d16_hi v96, v12, s[16:19], s41 offen offset:2304 {cfl}")
        A(f"buffer_store_short v97, v12, s[16:19], s34 offen {cfl}"); A(f"buffer_store_short_d16_hi v97, v12, s[16:19], s34 offen offset:2304 {cfl}")
    if stamps: A("s_branch K3_FIN2")
    A("K3_FIN:")
    ST("st_issued")
    A("K3_FIN2:")
    if stamps: A("s_waitcnt vmcnt(0)")
    ST("end"); ST("end_rt", real=True)
    ST.dump(vt=10, st=34, kidx=2)
    A("K3_END:"); A("s_endpgm")
    A(kd(name, 240, 240))
    return ST.names
```

```python
import sys
from asmlib import *
import k1 as K1
import k1b as K1B
import k2c as K2
import k3 as K3
import f1 as F1
import k3c as K3B
import ka as KA
def header(launches):
    ref = open("concat_heads__ssm_conv_h3__compressed_kv_cla__prompt.s.ref").read().split("\n")
    hdr = []
    for l in ref:
        if l.startswith("; Override") : break
        hdr.append(l)
    return "\n".join(hdr) + "\n" + "\n".join(launches) + '\n.amdgcn_target "amdgcn-amd-amdhsa--gfx950"\n.text\n'
META = {}
def build(which="all", **opt):
    def o(k):
        d = dict(opt.get(k, {}))
        if opt.get("stamps"): d["stamps"] = True
        return d
    A = Asm()
    launches = []
    if opt.get("fused", True):
        launches.append("; @launch kernel=f1_kernel grid=(256,1,1) block=(512,1,1) lds=163840")
        META['f1'] = (0, F1.f1(A, **o('f1')), 256)
    else:
        launches.append("; @launch kernel=k1_kernel grid=(256,1,1) block=(512,1,1) lds=131072")
        SH = opt.get("SH", 16)
        META['k1'] = (0, (K1B if SH == 16 else K1).k1(A, **o('k1')), 256)
        launches.append("; @launch kernel=k2_kernel grid=(256,1,1) block=(512,1,1) lds=139264")
        META['k2'] = (1, K2.k2(A, SH=SH, **o('k2')), 256)
    if opt.get("k3b", True):
        if not opt.get("f1", {}).get("s1", True):
            launches.insert(0, "; @launch kernel=ka1_kernel grid=(72,1,1) block=(256,1,1) lds=0")
            KA.ka1(A)
        launches.append("; @launch kernel=k3_kernel grid=(256,1,1) block=(512,1,1) lds=147456")
        META['k3'] = (2, K3B.k3(A, **o('k3')), 256)
    else:
        launches.append("; @launch kernel=k3_kernel grid=(256,1,1) block=(512,1,1) lds=110592")
        META['k3'] = (2, K3.k3(A, **o('k3')), 256)
        launches.append("; @launch kernel=k4_kernel grid=(256,1,1) block=(512,1,1) lds=0")
        K3.k4(A)
        launches.append("; @launch kernel=ka1_kernel grid=(72,1,1) block=(256,1,1) lds=0")
        KA.ka1(A)
        launches.append("; @launch kernel=ka2_kernel grid=(72,1,1) block=(512,1,1) lds=103936")
        META['ka2'] = (5, KA.ka2(A, **o('ka2')), 72)
    return header(launches) + A.text()
if __name__ == "__main__":
    out = sys.argv[1] if len(sys.argv) > 1 else "dev.s"
    import json
    opt = json.loads(sys.argv[2]) if len(sys.argv) > 2 else {}
    open(out, "w").write(build(**opt))
    json.dump({k: v for k, v in META.items() if v[1]}, open(out + ".json", "w"))
```

```python
class Asm:
    def __init__(self):
        self.L = []
    def __call__(self, s):
        for line in s.split("\n"):
            line = line.strip()
            if line:
                self.L.append(line if line.endswith(":") or line.startswith(".") else "  " + line)
    def ext(self, lst):
        for s in lst: self(s)
    def text(self):
        return "\n".join(self.L) + "\n"

def vr(b, n=1):
    return f"v{b}" if n == 1 else f"v[{b}:{b+n-1}]"
def ar(b, n=1):
    return f"a{b}" if n == 1 else f"a[{b}:{b+n-1}]"
def sr(b, n=1):
    return f"s{b}" if n == 1 else f"s[{b}:{b+n-1}]"

def mfma32(d, a, b, c=None):
    return f"v_mfma_f32_32x32x16_bf16 {d}, {a}, {b}, {c if c is not None else d}"

def kd(name, vgpr, accum, sgpr=102):
    return f""".section .rodata,"a"
.p2align 6
.amdhsa_kernel {name}
  .amdhsa_next_free_vgpr {vgpr}
  .amdhsa_next_free_sgpr {sgpr}
  .amdhsa_accum_offset {accum}
  .amdhsa_group_segment_fixed_size 0
  .amdhsa_kernarg_size 120
  .amdhsa_user_sgpr_count 2
  .amdhsa_user_sgpr_kernarg_segment_ptr 1
  .amdhsa_system_sgpr_workgroup_id_x 1
.end_amdhsa_kernel
.text
"""

def khead(name):
    return f""".globl {name}
.p2align 8
.type {name},@function
{name}:
"""

def weave(main, fill, start=0, per=None):
    out = []
    n = len(main) - start
    k = 0
    for i, m in enumerate(main):
        out.append(m)
        if i >= start:
            if per is not None:
                cnt = per[i - start] if i - start < len(per) else 0
            else:
                j = i - start + 1
                cnt = (len(fill) * j + n - 1) // n - k
            for _ in range(cnt):
                if k < len(fill):
                    f = fill[k]; k += 1
                    if isinstance(f, list): out.extend(f)
                    else: out.append(f)
    while k < len(fill):
        f = fill[k]; k += 1
        if isinstance(f, list): out.extend(f)
        else: out.append(f)
    return out

WS_STAMP = 192 << 20
class Stamps:
    def __init__(self, A, on, base=64, srd=24, wave="s28"):
        self.A, self.on, self.base, self.n, self.srd, self.wave = A, on, base, 0, srd, wave
        self.names = []
    skip = set()
    def __call__(self, name, real=False):
        if not self.on or name in self.skip: return
        b = self.base + 2 * self.n
        assert b + 1 <= 89
        self.A(f"{'s_memrealtime' if real else 's_memtime'} s[{b}:{b+1}]")
        self.n += 1; self.names.append(name)
    def at(self, idx, cond_sgpr, val):
        if not self.on: return
        self._u = getattr(self, "_u", 0) + 1
        b = self.base + 2 * idx
        self.A(f"s_cmp_eq_u32 {cond_sgpr}, {val}")
        self.A(f"s_cbranch_scc0 STSK_{id(self)%9973}_{self._u}")
        self.A(f"s_memtime s[{b}:{b+1}]")
        self.A(f"STSK_{id(self)%9973}_{self._u}:")
    def reserve(self, name):
        if not self.on: return -1
        self.n += 1; self.names.append(name); return self.n - 1
    def dump(self, vt=12, st=34, kidx=0):
        if not self.on: return
        A = self.A
        A("s_waitcnt lgkmcnt(0)")
        A(f"s_lshl_b32 s{st}, s2, 3")
        A(f"s_add_u32 s{st}, s{st}, {self.wave}")
        A(f"s_lshl_b32 s{st}, s{st}, 7")
        A(f"s_add_u32 s{st}, s{st}, {WS_STAMP + kidx * (1 << 20)}")
        A(f"v_mov_b32 v{vt+1}, 0")
        for i in range(self.n):
            A(f"v_mov_b32 v{vt}, s{self.base + 2*i}")
            A(f"buffer_store_dword v{vt}, v{vt+1}, s[{self.srd}:{self.srd+3}], s{st} offen offset:{4*i}")
            A("s_nop 1")
```

```python
from asmlib import *
from k1 import srd, WS_KV, WS_Q, WS_CTX, f32bits, QSCALE
from k1b import m16
import k2c
import k3d
from ka import WS_XR, WS_QT, NB_IN
WS_FLAG = 120 << 20
WS_EPOCH = 121 << 20

def code_touch(A, lab, nbytes, dst, t0, sp=60):
    n = (nbytes + 127) // 128 if isinstance(nbytes, int) else None
    u = lab + "_ct%d" % t0
    A(f"s_getpc_b64 s[{sp}:{sp+1}]")
    A(f"{u}:")
    A(f"s_add_u32 s{sp}, s{sp}, {lab}-{u}")
    A(f"s_addc_u32 s{sp+1}, s{sp+1}, 0")
    A(f"v_lshlrev_b32 v{t0}, 7, v0")
    A(f"v_min_u32 v{t0}, {nbytes}, v{t0}")
    A(f"v_mov_b32 v{t0+1}, s{sp+1}")
    A(f"v_add_co_u32 v{t0}, vcc, s{sp}, v{t0}")
    A("s_nop 1")
    A(f"v_addc_co_u32 v{t0+1}, vcc, 0, v{t0+1}, vcc")
    A(f"global_load_dword v{dst}, v[{t0}:{t0+1}], off")

def f1(A, name="f1_kernel", st_flags="sc1", stamps=False, pf=3, cpf=3, sleep=2, attn_kw={}, ctx_flags="sc1", ahead=3, xn=6, kvpf=3, tfl="sc1", inv=False, sched=1, gtrace=False, kvfront=8, late_pf=True, s1=True, s1pf=True, nost=0, outpf=False, s1t=False, g0t=False, fuse=True, tail_kw={"wpf": False, "gpf": False}, sset="late"):
    A(khead(name))
    ST = Stamps(A, stamps, base=64, srd=4, wave="s28")
    if fuse: ST.skip = ({"first_landed", "stores_done", "k0_landed", "st_issued", "kv_done", "q_done"} if sset == "late" else
                        {"sig", "ctx_ok", "landed", "gemm_done", "sent", "polled", "xdone"})
    A("s_cmp_ge_u32 s2, 256")
    A("s_cbranch_scc1 F1_END")
    ST("start_rt", real=True); ST("start")
    A("s_load_dwordx4 s[44:47], s[0:1], 48")
    A("s_load_dwordx4 s[48:51], s[0:1], 64")
    A("s_load_dwordx2 s[52:53], s[0:1], 80")
    A("s_load_dwordx4 s[56:59], s[0:1], 104")
    A("s_mov_b32 s90, s0"); A("s_mov_b32 s91, s1")
    A("v_lshrrev_b32 v12, 6, v0")
    A("v_and_b32 v1, 63, v0")
    A("v_readfirstlane_b32 s28, v12")
    npre = 0
    if cpf:
        code_touch(A, "F1_CODE0", "F1_END-F1_CODE0", 15, 12); npre = 0
    A("s_lshr_b32 s29, s2, 3"); A("s_and_b32 s29, s29, 7")
    A("s_and_b32 s34, s2, 7"); A("s_lshl_b32 s34, s34, 2"); A("s_lshr_b32 s35, s2, 6"); A("s_add_u32 s30, s34, s35")
    A("s_and_b32 s37, s28, 3")
    A("v_lshrrev_b32 v12, 3, v1")
    A("s_lshl_b32 s34, s37, 3")
    A("v_add_u32 v12, s34, v12")
    A("v_lshrrev_b32 v13, 4, v1")
    A("s_and_b32 s34, s28, 1")
    A("s_lshl_b32 s34, s34, 2")
    A("v_add_u32 v14, s34, v13")
    A("v_and_b32 v10, 7, v1")
    A("v_xor_b32 v14, v14, v10")
    A("v_lshlrev_b32 v14, 4, v14")
    A("v_lshl_add_u32 v2, v12, 10, v14")
    A("v_mul_u32_u24 v3, 1152, v12")
    A("v_add_u32 v3, v3, v14")
    A("s_lshl_b32 s34, s37, 2")
    A("v_add_u32 v12, s34, v13")
    A("v_lshlrev_b32 v12, 13, v12")
    A("s_and_b32 s34, s28, 2")
    A("s_lshl_b32 s34, s34, 1")
    A("v_add_u32 v14, s34, v13")
    A("v_lshlrev_b32 v14, 1, v14")
    A("v_and_b32 v10, 15, v1")
    A("v_xor_b32 v14, v14, v10")
    A("v_lshl_add_u32 v4, v14, 4, v12")
    A("s_lshl_b32 s34, s30, 8")
    A("v_add_u32 v4, s34, v4")
    A("s_lshl_b32 s31, s37, 10")
    A("s_lshl_b32 s32, s29, 18")
    A("s_mov_b32 s33, 0")
    A("s_waitcnt lgkmcnt(0)")
    C, X, UK, UV, WQ, WSS = "s[8:11]", "s[12:15]", "s[16:19]", "s[20:23]", "s[24:27]", "s[4:7]"
    srd(A, 8, 46, 2048*512*2); srd(A, 16, 50, 512*4096*2); srd(A, 20, 52, 512*4096*2)
    adv = ["s_add_u32 s32, s32, 128", f"s_add_u32 s33, s33, {64*8192}", "s_xor_b32 s31, s31, 0x10000"]
    def dma_kv(part=None):
        g = []
        for i in range(4):
            g.append([f"s_add_u32 m0, s31, {32768+i*4096}", f"s_add_u32 s34, s33, {i*16*8192}", f"buffer_load_dwordx4 v4, {UK}, s34 offen lds"])
            g.append([f"s_add_u32 m0, s31, {49152+i*4096}", "s_nop 0", f"buffer_load_dwordx4 v4, {UV}, s34 offen lds"])
        for i in range(8):
            g.append([f"s_add_u32 m0, s31, {i*4096}", f"s_add_u32 s34, s32, {i*32768}", f"buffer_load_dwordx4 v2, {C}, s34 offen lds"])
        if part is not None: return g[8*part:8*part+8]
        g[-1] = g[-1] + adv
        return g
    SA = [0, 0x20000, 0x10000]; SW = [0x8000, 0xC000, 0x18000]
    def dma_q(j):
        g = []
        for i in range(4):
            g.append([f"s_add_u32 m0, s31, {SW[j%3]+i*4096}", f"s_mov_b32 s34, {(j*64+i*16)*8192}", f"buffer_load_dwordx4 v4, {WQ}, s34 offen lds"])
        for i in range(8):
            g.append([f"s_add_u32 m0, s31, {SA[j%3]+i*4096}", f"s_add_u32 s34, {'s32' if i < 4 else 's36'}, {(i%4)*32*1152 + j*128}", f"buffer_load_dwordx4 v3, {X}, s34 offen lds"])
        return g
    A("s_cmp_ge_u32 s28, 4"); A("s_cbranch_scc1 F1_I1")
    for g in dma_kv(0): A.ext(g)
    A("s_branch F1_I2")
    A("F1_I1:")
    for g in dma_kv(1): A.ext(g)
    A("F1_I2:")
    A.ext(adv)
    srd(A, 12, 44, 2048*576*2); srd(A, 24, 48, 576*4096*2); srd(A, 4, 58, 1 << 28)
    A("s_or_b32 s34, s2, s28"); A("s_cmp_lg_u32 s34, 0"); A("s_cbranch_scc1 F1_NOEP")
    A("s_memrealtime s[98:99]")
    srd(A, 60, 56, 256)
    A("s_waitcnt lgkmcnt(0)")
    A("s_or_b32 s98, s98, 1")
    A("v_mov_b32 v12, s98"); A("v_mov_b32 v13, s99"); A("v_mov_b32 v14, 0"); A(f"s_mov_b32 s34, {WS_EPOCH}")
    A("s_mov_b64 exec, 1")
    A("buffer_store_dwordx2 v[12:13], v14, s[60:63], 0 offen sc0 sc1")
    A("buffer_store_dwordx2 v[12:13], v14, s[4:7], s34 offen")
    A("s_mov_b64 exec, -1")
    A("v_lshrrev_b32 v13, 4, v1")
    A("F1_NOEP:")
    npf = 0
    touch = []
    if pf == 2:
        A("s_cmp_lt_u32 s28, 4"); A("s_cbranch_scc1 F1_PFD")
        A("v_lshlrev_b32 v9, 7, v1")
        plan = [[(C, 8192, 0), (X, 9216, 0), (X, 9216, 1)], [(UK, 16384, 0), (UK, 16384, 1), (WQ, 18432, 2)],
                [(UV, 16384, 0), (UV, 16384, 1), (UV, 16384, 1)], [(WQ, 18432, 0), (WQ, 18432, 1), (WQ, 18432, 1)]]
        for w in range(4):
            if w < 3: A(f"s_cmp_lg_u32 s37, {w}"); A(f"s_cbranch_scc1 F1_PF{w+1}")
            for (sd, share, k) in plan[w]:
                A(f"s_mul_i32 s34, s2, {share}"); A(f"s_add_u32 s34, s34, {k*8192}")
                A(f"buffer_load_dword v15, v9, {sd}, s34 offen {tfl}")
            A("s_branch F1_PFE")
            if w < 3: A(f"F1_PF{w+1}:")
        A("F1_PFD:")
        A("s_nop 0")
        A("F1_PFE:")
        npf = 3
    elif pf == 3:
        TS = 92
        A(f"s_mov_b32 s{TS+3}, 0x20000")
        A("s_cmp_eq_u32 s37, 3"); A("s_cbranch_scc1 F1_PFQ")
        A("s_cmp_eq_u32 s37, 0"); A("s_cbranch_scc0 F1_PFW")
        A("v_lshlrev_b32 v9, 7, v1"); A("s_lshl_b32 s34, s2, 13")
        A("s_cmp_lt_u32 s28, 4"); A("s_cbranch_scc1 F1_PFC")
        A(f"buffer_load_dword v15, v9, {C}, s34 offen {tfl}")
        A("F1_PFC:")
        A(f"s_mov_b32 s{TS}, s44"); A(f"s_mov_b32 s{TS+1}, s45"); A(f"s_mov_b32 s{TS+2}, {2048*576*2}")
        A(f"v_min_u32 v9, {72//xn - 1}, v1"); A("v_lshlrev_b32 v9, 7, v9"); A("s_mul_i32 s96, s2, 9216"); A(f"s_mov_b32 s97, {9216//xn}")
        A("s_branch F1_PFD")
        A("F1_PFW:")
        A("s_cmp_eq_u32 s37, 1"); A(f"s_cselect_b32 s{TS}, s50, s52"); A(f"s_cselect_b32 s{TS+1}, s51, s53"); A(f"s_mov_b32 s{TS+2}, {512*4096*2}")
        A(f"v_min_u32 v9, {16*(ahead-1)-1}, v1"); A("v_lshlrev_b32 v9, 7, v9"); A(f"s_mul_i32 s34, s2, {2048*(ahead-1)}"); A(f"s_add_u32 s34, s34, {64*8192}")
        A("s_cmp_lt_u32 s28, 4"); A("s_cbranch_scc1 F1_PFW2")
        A(f"buffer_load_dword v15, v9, s[{TS}:{TS+3}], s34 offen {tfl}")
        A("F1_PFW2:")
        A("v_min_u32 v9, 15, v1"); A("v_lshlrev_b32 v9, 7, v9"); A("s_lshl_b32 s96, s2, 11"); A(f"s_add_u32 s96, s96, {64*8192*ahead}"); A(f"s_mov_b32 s97, {64*8192}")
        A("s_branch F1_PFD")
        A("F1_PFQ:")
        A(f"s_mov_b32 s{TS}, s48"); A(f"s_mov_b32 s{TS+1}, s49"); A(f"s_mov_b32 s{TS+2}, {576*4096*2}")
        A(f"v_min_u32 v9, {144//xn//16*16//16*16//16 if False else 0}, v1") if False else None
        A(f"v_min_u32 v9, {144//xn - 1}, v1"); A("v_lshlrev_b32 v9, 7, v9"); A(f"s_mul_i32 s96, s2, {18432//xn}"); A(f"s_mov_b32 s97, {576*8192//xn}")
        A("s_cmp_lt_u32 s28, 4"); A("s_cbranch_scc1 F1_PFD")
        A(f"buffer_load_dword v15, v9, s[{TS}:{TS+3}], s96 offen {tfl}")
        A("F1_PFD:")
        touch = [[f"buffer_load_dword v15, v9, s[{TS}:{TS+3}], s96 offen {tfl}", "s_add_u32 s96, s96, s97"]]
        npf = 1
    A("v_and_b32 v12, 15, v1"); A("v_lshlrev_b32 v12, 7, v12")
    A("s_lshr_b32 s34, s28, 2"); A("s_lshl_b32 s34, s34, 14"); A("v_add_u32 v12, s34, v12")
    A("v_bfe_u32 v14, v1, 1, 3"); A("v_xor_b32 v14, v14, v13")
    for ks in range(2):
        A(f"v_xor_b32 v11, {4*ks}, v14"); A(f"v_lshl_add_u32 v{5+ks}, v11, 4, v12")
    def addrW(dst, nb_sgpr2):
        A("v_bfe_u32 v12, v1, 2, 2"); A("v_lshl_add_u32 v14, v13, 3, v12"); A("v_lshlrev_b32 v14, 8, v14")
        A("v_and_b32 v8, 1, v13"); A("v_lshl_add_u32 v12, v8, 2, v12"); A("v_lshlrev_b32 v12, 1, v12")
        A(f"v_xor_b32 v12, {nb_sgpr2}, v12"); A("v_lshl_add_u32 v14, v12, 4, v14")
        A("v_and_b32 v12, 3, v1"); A(f"v_lshl_add_u32 v{dst}, v12, 3, v14")
    A("s_lshl_b32 s38, s37, 2")
    addrW(7, "s38")
    A("v_xor_b32 v8, 32, v7")
    A("v_lshlrev_b32 v11, 4, v1")
    for r in range(16, 144): A(f"v_mov_b32 v{r}, 0")
    for r in range(0, 112): A(f"v_accvgpr_write_b32 a{r}, 0")
    WS_ = [64, 80]; RING = 96; R = 4
    def accK(T, kb): return 32*T + 4*kb
    def accV(T, kb): return 16 + 4*(2*kb + T)
    def accQ(nb, qb): return 80 + 16*qb + 4*nb
    def wreads_kv(ks):
        b = WS_[ks]
        return [f"ds_read_b64_tr_b16 {ar(b+8*mat+4*nb+2*half,2)}, v{7+nb} offset:{32768+16384*mat+(32*ks+4*half)*256}"
                for mat in range(2) for nb in range(2) for half in range(2)]
    def c_read(i):
        ks, kb = divmod(i, 8)
        return f"ds_read_b128 {ar(RING+4*(i%R),4)}, v{5+ks} offset:{kb*2048}"
    def c_mf(i):
        ks, kb = divmod(i, 8); b = WS_[ks]; f = ar(RING+4*(i%R),4)
        return [m16(ar(accK(0,kb),4), ar(b,4), f), m16(ar(accK(1,kb),4), ar(b+4,4), f),
                m16(vr(accV(0,kb),4), f, ar(b+8,4)), m16(vr(accV(1,kb),4), f, ar(b+12,4))]
    TAIL = 2
    def step(nitems, per_ks, wreads, rdf, mff, prev_tail, dma, extra, toggle, first_wait, entry=None, front=99):
        A(first_wait)
        if entry: A(entry)
        if gtrace:
            A("s_memtime s[100:101]")
        A("s_barrier")
        if gtrace:
            A("s_memtime s[88:89]"); A("s_waitcnt lgkmcnt(0)"); A("v_mov_b32 v14, 0"); A("v_mov_b32 v12, s100"); A("v_mov_b32 v13, s88")
            A("buffer_store_dwordx2 v[12:13], v14, s[4:7], s87 offen"); A("s_add_u32 s87, s87, 8")
        q = []
        def issue(instrs, tag):
            for x in instrs: A(x); q.append(tag)
        def wait_for(tags):
            last = max(i for i, t in enumerate(q) if t in tags)
            A(f"s_waitcnt lgkmcnt({min(len(q) - 1 - last, 15)})")
        if sched == 0:
            issue(wreads(0), "w0")
            nxt = 0
            while nxt < R - TAIL:
                issue([rdf(nxt)], nxt); nxt += 1
            half = len(prev_tail) // TAIL
            dq = list(dma)
            for t in range(TAIL):
                take = dq[:(len(dma)+TAIL-1)//TAIL]; dq = dq[len(take):]
                A.ext(weave(prev_tail[t*half:(t+1)*half], take))
                issue([rdf(nxt)], nxt); nxt += 1
            fill = []
        else:
            rl = [(x, "w0") for x in wreads(0)]
            rl = rl[:4] + [(rdf(0), 0)] + rl[4:] + [(rdf(1), 1)]
            nxt = 2
            n = len(prev_tail)
            for t, m in enumerate(prev_tail):
                A(m)
                k = 2 if t < 2 else 1
                for _ in range(k):
                    if rl: x, tag = rl.pop(0); issue([x], tag)
                if t == n//2 - 1 or t == n - 1:
                    while t == n - 1 and rl: x, tag = rl.pop(0); issue([x], tag)
                    issue([rdf(nxt)], nxt); nxt += 1
            fill = list(dma)
        ex = fill + list(extra)
        w1 = wreads(1)
        nslots = nitems - TAIL
        for i in range(nitems - TAIL):
            wait_for({i, f"w{i // per_ks}"})
            mm = mff(i)
            if sched == 0:
                A.ext(mm)
                if nxt < nitems:
                    issue([rdf(nxt)], nxt); nxt += 1
                if i == 1: issue(w1, "w1")
                if ex and i >= 2: A.ext(ex.pop(0))
            else:
                nw = min(len(w1), -(-8 // max(per_ks - 2, 1))) if i < per_ks - 1 else len(w1)
                ne = -(-len(ex) // max(min(nslots, front) - i, 1))
                A(mm[0])
                issue(w1[:(nw+1)//2], "w1")
                A(mm[1])
                issue(w1[(nw+1)//2:nw], "w1"); w1 = w1[nw:]
                A(mm[2])
                if ne: A.ext(ex.pop(0))
                A(mm[3])
                if nxt < nitems:
                    issue([rdf(nxt)], nxt); nxt += 1
                for _ in range(ne - 1): A.ext(ex.pop(0))
        for e in ex: A.ext(e)
        A.ext(toggle)
        return [m for i in range(nitems-TAIL, nitems) for m in mff(i)]
    tog = [f"v_xor_b32 v{r}, 0x10000, v{r}" for r in (5,6,7,8)]
    kv_tail = [m for i in range(16-TAIL, 16) for m in c_mf(i)]
    if gtrace:
        A("s_lshl_b32 s87, s2, 3"); A("s_add_u32 s87, s87, s28"); A("s_lshl_b32 s87, s87, 8"); A(f"s_add_u32 s87, s87, {WS_STAMP + (10 << 20)}")
    if s1:
        A("s_load_dwordx2 s[44:45], s[90:91], 8"); A("s_load_dwordx2 s[48:49], s[90:91], 16"); A("s_load_dwordx2 s[52:53], s[90:91], 0")
        for b_ in (46, 50, 54): A(f"s_mov_b32 s{b_}, {NB_IN}"); A(f"s_mov_b32 s{b_+1}, 0x20000")
    A("s_mov_b32 s41, 0")
    A(f"s_waitcnt vmcnt({npf}) lgkmcnt(0)")
    ST("first_landed")
    A("s_cmp_ge_u32 s28, 4"); A("s_cbranch_scc1 F1_KVENTRY1")
    A("s_waitcnt vmcnt(0)")
    A("s_branch F1_KVENTRY0")
    A("F1_CODE0:")
    def qbases():
        A(f"s_mul_i32 s32, s29, {128*1152}"); A(f"s_sub_u32 s36, {15*128*1152}, s32"); A("s_lshl_b32 s31, s37, 10")
    for g in range(2):
        A(f"F1_KVLOOP{g}:")
        step(16, 8, wreads_kv, c_read, c_mf, kv_tail, dma_kv() if g == 0 else touch, [], tog,
             "s_waitcnt vmcnt(0) lgkmcnt(0)" if g == 0 else "s_waitcnt lgkmcnt(0)", entry=f"F1_KVENTRY{g}:", front=kvfront)
        A("s_add_u32 s41, s41, 1"); A("s_cmp_lt_u32 s41, 7"); A(f"s_cbranch_scc1 F1_KVLOOP{g}")
        qbases()
        t2 = []
        if s1 and s1pf:
            t2 = [["v_lshlrev_b32 v9, 7, v1", "s_mul_i32 s34, s2, 9216", "s_cmp_eq_u32 s37, 3", "s_cbranch_scc1 F1_T3",
                   "s_cmp_eq_u32 s37, 1", "s_cbranch_scc1 F1_T1", "s_cmp_eq_u32 s37, 2", "s_cbranch_scc1 F1_T2",
                   "buffer_load_dword v15, v9, s[44:47], s34 offen sc1", "s_branch F1_T4",
                   "F1_T1:", "buffer_load_dword v15, v9, s[48:51], s34 offen sc1", "s_branch F1_T4",
                   "F1_T2:", "buffer_load_dword v15, v9, s[52:55], s34 offen sc1", "s_branch F1_T4",
                   "F1_T3:", "v_min_u32 v9, 896, v9", "s_add_u32 s34, s34, 8192",
                   "buffer_load_dword v15, v9, s[44:47], s34 offen sc1", "buffer_load_dword v15, v9, s[48:51], s34 offen sc1",
                   "buffer_load_dword v15, v9, s[52:55], s34 offen sc1", "F1_T4:"]]
        step(16, 8, wreads_kv, c_read, c_mf, kv_tail, dma_q(0) + dma_q(1) if g == 0 else t2, [], tog,
             "s_waitcnt vmcnt(0) lgkmcnt(0)" if g == 0 else "s_waitcnt lgkmcnt(0)")
        if g == 0: A("s_branch F1_KVDONE")
    A("F1_KVDONE:")
    ST("kv_done")
    A("s_load_dwordx2 s[16:17], s[90:91], 88"); A("s_load_dwordx2 s[20:21], s[90:91], 32")
    A(f"s_mov_b32 s18, {4096*576*2}"); A(f"s_mov_b32 s22, {2048*576*2}")
    if s1:
        A("s_load_dwordx2 s[92:93], s[90:91], 24")
        A("s_mov_b32 s94, 4608"); A("s_mov_b32 s95, 0x20000")
        A("s_lshl_b32 s96, s2, 1"); A("s_add_u32 s96, s96, s28"); A("s_sub_u32 s96, s96, 1")
        A("s_add_u32 s34, s2, 512"); A("s_cmp_eq_u32 s28, 3"); A("s_cselect_b32 s96, s34, s96")
        A("s_sub_u32 s34, s28, 1"); A("s_cmp_lt_u32 s34, 3"); A("s_cselect_b32 s96, s96, 999")
    A("s_mov_b32 s8, s56"); A("s_mov_b32 s9, s57"); A("s_mov_b32 s10, 256")
    A("s_lshr_b32 s34, s28, 1"); A("s_lshl_b32 s34, s34, 13"); A("s_lshr_b32 s35, s28, 2"); A("s_lshl_b32 s35, s35, 14"); A("s_sub_u32 s34, s34, s35")
    for r in (5, 6): A(f"v_add_u32 v{r}, s34, v{r}")
    A("s_and_b32 s39, s28, 1"); A("s_lshl_b32 s38, s39, 3")
    A("v_lshrrev_b32 v13, 4, v1")
    addrW(7, "s38")
    A("v_xor_b32 v8, 32, v7"); A("v_xor_b32 v9, 64, v7"); A("v_xor_b32 v10, 96, v7")
    A("s_lshl_b32 s40, s30, 20"); A("s_lshl_b32 s34, s29, 16"); A("s_add_u32 s40, s40, s34")
    A("s_lshr_b32 s34, s28, 2"); A("s_lshl_b32 s34, s34, 15"); A("s_add_u32 s40, s40, s34")
    A("s_lshl_b32 s34, s37, 10"); A("s_add_u32 s42, s40, s34")
    A("s_lshl_b32 s34, s37, 11"); A("s_add_u32 s43, s40, s34"); A("s_add_u32 s43, s43, 0x80000")
    def wreads_q(ks):
        b = WS_[ks]
        return [f"ds_read_b64_tr_b16 {ar(b+4*nb+2*half,2)}, v{7+nb} offset:{32768+(32*ks+4*half)*256}" for nb in range(4) for half in range(2)]
    def x_read(i):
        ks, qb = divmod(i, 4)
        return f"ds_read_b128 {ar(RING+4*(i%R),4)}, v{5+ks} offset:{qb*2048}"
    def x_mf(i):
        ks, qb = divmod(i, 4); b = WS_[ks]; f = ar(RING+4*(i%R),4)
        return [m16(vr(accQ(nb,qb),4), ar(b+4*nb,4), f) for nb in range(4)]
    def kv_store(idx):
        o = []
        if idx < 8:
            kp, T = idx >> 1, idx & 1
            src = [accV(T,2*kp)+r for r in range(4)] + [accV(T,2*kp+1)+r for r in range(4)]
            off = kp*8192 + T*1024; base = "s43"
        else:
            kb = idx - 8
            src = [16 + 8*(kb % 4) + r for r in range(8)]
            for r in range(4): o.append(f"v_accvgpr_read_b32 v{src[r]}, a{accK(0,kb)+r}")
            for r in range(4): o.append(f"v_accvgpr_read_b32 v{src[4+r]}, a{accK(1,kb)+r}")
            off = kb*4096; base = "s42"
        d = src[0]
        o += [f"v_cvt_pk_bf16_f32 v{d+j}, v{src[2*j]}, v{src[2*j+1]}" for j in range(4)]
        o.append(f"s_add_u32 s34, {base}, {off}")
        if nost == 2 or (nost == 1 and idx % 2): o.append("buffer_load_dword v15, v11, s[4:7], 0 offen")
        else: o.append(f"buffer_store_dwordx4 {vr(d,4)}, v11, {WSS}, s34 offen {st_flags}")
        return o
    def togq(j):
        da = SA[(j+1) % 3] - SA[j % 3]; dw = SW[(j+1) % 3] - SW[j % 3]
        return [f"v_add_u32 v{r}, {da & 0xffffffff}, v{r}" for r in (5, 6)] + [f"v_add_u32 v{r}, {dw & 0xffffffff}, v{r}" for r in (7, 8, 9, 10)]
    A("s_cmp_ge_u32 s28, 4"); A("s_cbranch_scc1 F1_Q1")
    for g in range(2):
        if g: A("F1_Q1:")
        prev = kv_tail
        for j in range(9):
            loader = (j < 4) == (g == 0)
            st0 = 4*(j % 4)
            ex = []
            if loader: ex = dma_q(j+2) if j <= 6 else []
            elif j < 8: ex = [kv_store(st0 + k) for k in range(4)]
            if g == 0 and j == 7 and not gtrace:
                ex.append(["v_mov_b32 v14, 0", "s_cmp_lg_u32 s28, 0", "s_cbranch_scc1 F1_NOEL",
                           "buffer_load_dwordx2 v[2:3], v14, s[8:11], 0 offen sc0 sc1", "F1_NOEL:"])
            if g == 0 and j == 8 and s1:
                blk = ["s_cmp_ge_u32 s96, 576", "s_cbranch_scc1 F1_NOS1L",
                       "s_mul_i32 s34, s96, 3641", "s_lshr_b32 s34, s34, 16", "s_mul_i32 s35, s34, 18", "s_sub_u32 s35, s96, s35",
                       "v_and_b32 v76, 3, v1", "s_lshl_b32 s35, s35, 2", "v_add_u32 v76, s35, v76",
                       "v_lshrrev_b32 v77, 2, v1", "s_lshl_b32 s34, s34, 4", "v_add_u32 v77, s34, v77",
                       f"v_mul_u32_u24 v78, {4*1152}, v77", "v_lshl_add_u32 v78, v76, 4, v78", f"v_subrev_u32 v79, {3*1152}, v78",
                       "v_lshlrev_b32 v4, 6, v76"]
                blk += [f"buffer_load_dwordx4 {ar(32+4*i,4)}, v4, s[92:95], 0 offen offset:{16*i}" for i in range(4)]
                blk += [f"buffer_load_dwordx4 {vr(16+4*r,4)}, v79, s[44:47], 0 offen offset:{r*1152}" for r in range(3)]
                for base, sd in ((28, 44), (44, 48), (60, 52)):
                    blk += [f"buffer_load_dwordx4 {vr(base+4*r,4)}, v78, s[{sd}:{sd+3}], 0 offen offset:{r*1152}" for r in range(4)]
                ex.append(blk + ["F1_NOS1L:"])
            if g == 0: w = "vmcnt(12) " if j <= 4 else ("vmcnt(4) " if j == 5 else "")
            else: w = "" if j <= 5 else ("vmcnt(12) " if j <= 7 else "vmcnt(0) ")
            if gtrace: w = "vmcnt(0) " if w == "vmcnt(0) " else (w.replace("12", "13").replace("t(4", "t(5") if w else "")
            prev = step(8, 4, wreads_q, x_read, x_mf, prev, ex, [], togq(j) if j < 8 else [], f"s_waitcnt {w}lgkmcnt(0)")
        A("s_waitcnt lgkmcnt(0)")
        A.ext(prev)
        if g == 0: A("s_branch F1_QDONE")
    A("F1_QDONE:")
    ST("q_done")
    if outpf:
        A("s_load_dwordx2 s[24:25], s[90:91], 96"); A(f"s_mov_b32 s26, {2048*1152*2}")
    A(f"s_mov_b32 s36, {QSCALE}")
    A("s_lshr_b32 s34, s28, 1")
    A("s_and_b32 s35, s34, 1"); A("s_lshl_b32 s35, s35, 14")
    A("s_lshr_b32 s34, s34, 1"); A("s_lshl_b32 s34, s34, 17"); A("s_add_u32 s34, s34, s35")
    A("s_lshl_b32 s35, s39, 11"); A("s_add_u32 s34, s34, s35")
    A("v_add_u32 v12, s34, v11")
    if cpf: code_touch(A, "F1_ATTN", "F1_END-F1_ATTN", 15, 8)
    for qb in range(4):
        for j in range(2):
            src = accQ(2*j, qb)
            for r in range(8): A(f"v_mul_f32 v{src+r}, s36, v{src+r}")
            for r in range(4): A(f"v_cvt_pk_bf16_f32 v{src+r}, v{src+2*r}, v{src+2*r+1}")
            A(f"ds_write_b128 v12, {vr(src,4)} offset:{(qb>>1)*8192 + ((qb&1)*4 + j)*1024}")
    A("s_lshl_b32 s60, s30, 10"); A(f"s_add_u32 s60, s60, {WS_FLAG}")
    A("s_lshl_b32 s61, s29, 7"); A("s_add_u32 s61, s61, s60")
    k2c.attn_setup(A)
    A("s_waitcnt vmcnt(0) lgkmcnt(0)")
    A("s_barrier")
    ST("stores_done")
    if gtrace:
        A("s_mov_b32 s98, 0")
    else:
        A("v_readfirstlane_b32 s98, v2"); A("v_readfirstlane_b32 s99, v3")
    A("v_mov_b32 v2, v11")
    A("s_cmp_lg_u32 s28, 0")
    A("s_cbranch_scc1 F1_NOSIG")
    A("s_mov_b32 s63, 0x40000")
    A("v_mov_b32 v14, 0")
    A("F1_EPL:")
    A("s_cmp_lg_u32 s98, 0"); A("s_cbranch_scc1 F1_EPOK")
    A("buffer_load_dwordx2 v[12:13], v14, s[8:11], 0 offen sc0 sc1")
    A("s_waitcnt vmcnt(0)")
    A("v_readfirstlane_b32 s98, v12"); A("v_readfirstlane_b32 s99, v13")
    A("s_sub_u32 s63, s63, 1"); A("s_cmp_lg_u32 s63, 0"); A("s_cbranch_scc1 F1_EPL")
    A("F1_EPOK:")
    A("v_mov_b32 v12, s98"); A("v_mov_b32 v13, s99")
    A("s_mov_b64 exec, 1")
    A("buffer_store_dwordx2 v[12:13], v14, s[4:7], s61 offen sc0 sc1")
    A("s_mov_b64 exec, -1")
    A("F1_NOSIG:")
    A("s_lshr_b32 s34, s28, 2"); A("s_lshl_b32 s34, s34, 17"); A("s_and_b32 s47, s28, 3"); A("s_lshl_b32 s47, s47, 13")
    A("s_add_u32 s34, s34, s47"); A("v_add_u32 v14, s34, v2")
    for i in range(8): A(f"ds_read_b128 {ar(4*i,4)}, v14 offset:{i*1024}")
    if s1:
        A("s_cmp_ge_u32 s96, 576"); A("s_cbranch_scc1 F1_NOS1")
        K_, V_, Q_, W_, KF, O_ = 16, 44, 60, 80, 84, 92
        if fuse:
            A("s_lshl_b32 s15, s28, 13"); A("s_add_u32 s15, s15, 0x8000")
            A("v_and_b32 v78, 3, v1"); A("v_lshlrev_b32 v78, 10, v78"); A("v_add_u32 v78, s15, v78")
            A("v_lshrrev_b32 v77, 2, v1"); A("v_lshlrev_b32 v77, 3, v77"); A("v_add_u32 v79, v78, v77"); A("v_sub_u32 v78, v78, v77"); A("v_add_u32 v78, 120, v78")
        else:
            A("v_lshlrev_b32 v78, 15, v76"); A("v_lshl_add_u32 v79, v77, 3, v78")
            A("v_lshlrev_b32 v77, 3, v77"); A("v_sub_u32 v78, v78, v77"); A("v_add_u32 v78, 4088, v78")
        A("s_mov_b32 s12, 0xffff0000"); A("s_mov_b32 s13, 0x05040100"); A("s_mov_b32 s14, 0x07060302")
        def unp(dst, src, hi): return f"v_and_b32 v{dst}, s12, v{src}" if hi else f"v_lshlrev_b32 v{dst}, 16, v{src}"
        for c in range(8):
            d, hi = c // 2, c % 2
            A(f"v_accvgpr_read_b32 v{W_+1}, a{32+2*c}"); A(f"v_accvgpr_read_b32 v{W_+3}, a{33+2*c}")
            for r in range(7): A(unp(KF+r, K_+4*r+d, hi))
            A(unp(W_, W_+1, 0)); A(unp(W_+1, W_+1, 1)); A(unp(W_+2, W_+3, 0)); A(unp(W_+3, W_+3, 1))
            for p_ in range(4):
                A(f"v_mul_f32 v{O_+p_}, v{KF+p_+3}, v{W_}")
                for u in range(1, 4): A(f"v_fmac_f32 v{O_+p_}, v{KF+p_+3-u}, v{W_+u}")
            for p_ in range(4): A(unp(KF+p_, V_+4*p_+d, hi))
            for p_ in range(4): A(f"v_mul_f32 v{O_+p_}, v{O_+p_}, v{KF+p_}")
            t = 96 + 4*c
            A(f"v_cvt_pk_bf16_f32 v{t}, v{O_+3}, v{O_+2}"); A(f"v_cvt_pk_bf16_f32 v{t+1}, v{O_+1}, v{O_}")
            A(f"v_perm_b32 v{t+2}, v{Q_+4+d}, v{Q_+d}, s{13+hi}"); A(f"v_perm_b32 v{t+3}, v{Q_+12+d}, v{Q_+8+d}, s{13+hi}")
            if fuse:
                A(f"ds_write_b64 v78, {vr(t,2)} offset:{c*128}"); A(f"ds_write_b64 v79, {vr(t+2,2)} offset:{4096 + c*128}")
            else:
                A(f"s_mov_b32 s34, {WS_XR + c*4096}"); A(f"s_mov_b32 s47, {WS_QT + c*4096}")
                A(f"buffer_store_dwordx2 {vr(t,2)}, v78, s[4:7], s34 offen"); A(f"buffer_store_dwordx2 {vr(t+2,2)}, v79, s[4:7], s47 offen")
        if fuse:
            A("v_add_u32 v78, s15, v2")
            for i in range(8): A(f"ds_read_b128 {vr(16+4*i,4)}, v78 offset:{i*1024}")
            A("v_lshrrev_b32 v76, 3, v1"); A("v_lshlrev_b32 v76, 12, v76"); A("v_and_b32 v77, 7, v1"); A("v_lshl_add_u32 v76, v77, 4, v76")
            A("s_mul_i32 s34, s96, 3641"); A("s_lshr_b32 s34, s34, 16"); A("s_mul_i32 s47, s34, 18"); A("s_sub_u32 s47, s96, s47")
            A("s_lshl_b32 s47, s47, 17"); A("s_lshl_b32 s34, s34, 7")
            A(f"s_add_u32 s13, s47, {WS_QT}"); A("s_add_u32 s13, s13, s34")
            A(f"s_add_u32 s12, s47, {WS_XR + 4096 - 128}"); A("s_sub_u32 s12, s12, s34")
            for i in range(8):
                A(f"s_waitcnt lgkmcnt({7 - i})")
                A(f"buffer_store_dwordx4 {vr(16+4*i,4)}, v76, s[4:7], s{12 + i//4} offen sc1")
                A(f"s_add_u32 s{12 + i//4}, s{12 + i//4}, 32768")
        A("s_nop 1")
        A("F1_NOS1:")
    k2c.attn_init(A)
    A("s_cmp_lg_u32 s28, 0")
    A("s_cbranch_scc1 F1_OTHER")
    A("v_and_b32 v14, 7, v1"); A("v_lshlrev_b32 v14, 7, v14")
    A("s_mov_b32 s63, 0x40000")
    A("F1_POLL:")
    A("buffer_load_dwordx2 v[12:13], v14, s[4:7], s60 offen sc0 sc1")
    A("s_waitcnt vmcnt(0)")
    A("v_cmp_ne_u32 vcc, s98, v12")
    A("v_cmp_ne_u32 s[100:101], s99, v13")
    A("s_or_b64 vcc, vcc, s[100:101]")
    A("s_cmp_eq_u64 vcc, 0")
    A("s_cbranch_scc1 F1_GOT")
    A(f"s_sleep {sleep}")
    A("s_sub_u32 s63, s63, 1")
    A("s_cmp_lg_u32 s63, 0")
    A("s_cbranch_scc1 F1_POLL")
    A("F1_GOT:")
    if inv:
        A("buffer_inv sc1")
        A("s_waitcnt vmcnt(0)")
    A("s_branch F1_WAITED")
    A("F1_OTHER:")
    A("F1_WAITED:")
    if s1t:
        A("s_load_dwordx2 s[8:9], s[90:91], 8"); A("s_load_dwordx2 s[12:13], s[90:91], 16"); A("s_load_dwordx2 s[24:25], s[90:91], 0"); A("s_load_dwordx2 s[92:93], s[90:91], 24")
        for b_ in (10, 14, 26): A(f"s_mov_b32 s{b_}, {NB_IN}")
        A("s_mov_b32 s94, 4608"); A("s_mov_b32 s95, 0x20000"); A("s_mov_b32 s40, 999")
    if late_pf:
        A("v_min_u32 v22, 2, v1"); A("v_lshlrev_b32 v22, 7, v22"); A("v_min_u32 v0, 1, v1"); A("v_lshlrev_b32 v0, 7, v0")
        A("s_and_b32 s47, s28, 3"); A("s_mul_i32 s96, s2, 18432"); A("s_mul_i32 s34, s47, 384"); A("s_add_u32 s96, s96, s34")
        A("s_mul_i32 s97, s2, 9216"); A("s_mul_i32 s34, s47, 192"); A("s_and_b32 s34, s34, 0xff80"); A("s_add_u32 s97, s97, s34")
    A("s_waitcnt lgkmcnt(0)")
    A("s_barrier")
    ST("synced")
    g1x = []
    if late_pf:
        g1x = ["buffer_load_dword v23, v22, s[16:19], s96 offen sc1", "s_add_u32 s96, s96, 1536",
               "buffer_load_dword v23, v0, s[20:23], s97 offen sc1"]
        if s1t: g1x += [f"buffer_load_dword v23, v0, s[{b_}:{b_+3}], s97 offen sc1" for b_ in (8, 12, 24)]
        g1x += ["s_add_u32 s97, s97, 768"]
    lastx = []
    mx = []; p0x = []
    if fuse:
        p0x = ["s_cmp_lg_u32 s28, 0", "s_cbranch_scc1 F1_NP0", "s_lshl_b32 s34, s2, 7", f"s_add_u32 s34, s34, {k3d.WS_FLAG5}",
               "v_mov_b32 v22, s98", "v_mov_b32 v23, s99", "v_mov_b32 v21, 0", "s_mov_b64 exec, 1",
               "buffer_store_dwordx2 v[22:23], v21, s[4:7], s34 offen sc0 sc1", "s_mov_b64 exec, -1", "F1_NP0:"]
    if fuse:
        mx = ["s_lshl_b32 s34, s30, 10", "s_lshl_b32 s47, s29, 7", "s_add_u32 s34, s34, s47", f"s_add_u32 s34, s34, {WS_FLAG}", "v_mov_b32 v22, 0",
              "buffer_load_dwordx2 v[22:23], v22, s[4:7], s34 offen sc0 sc1"]
    if s1t:
        lastx = ["s_lshl_b32 s40, s2, 1", "s_add_u32 s40, s40, s28", "s_add_u32 s34, s2, 512", "s_cmp_eq_u32 s28, 2", "s_cselect_b32 s40, s34, s40",
                 "s_cmp_lt_u32 s28, 3", "s_cselect_b32 s40, s40, 999", "s_cmp_ge_u32 s40, 576", "s_cbranch_scc1 F1_NOS1L",
                 "s_mul_i32 s34, s40, 3641", "s_lshr_b32 s34, s34, 16", "s_mul_i32 s41, s34, 18", "s_sub_u32 s41, s40, s41",
                 "v_and_b32 v56, 3, v1", "s_lshl_b32 s41, s41, 2", "v_add_u32 v56, s41, v56",
                 "v_lshrrev_b32 v57, 2, v1", "s_lshl_b32 s34, s34, 4", "v_add_u32 v57, s34, v57",
                 f"v_mul_u32_u24 v58, {4*1152}, v57", "v_lshl_add_u32 v58, v56, 4, v58", f"v_subrev_u32 v59, {3*1152}, v58", "v_lshlrev_b32 v60, 6, v56"]
        lastx += [f"buffer_load_dwordx4 {ar(60+4*i,4)}, v60, s[92:95], 0 offen offset:{16*i}" for i in range(4)]
        lastx += [f"buffer_load_dwordx4 {ar(4*r,4)}, v59, s[8:11], 0 offen offset:{r*1152}" for r in range(3)]
        for base, sd in ((12, 8), (28, 12), (44, 24)):
            lastx += [f"buffer_load_dwordx4 {ar(base+4*r,4)}, v58, s[{sd}:{sd+3}], 0 offen offset:{r*1152}" for r in range(4)]
        lastx += ["F1_NOS1L:"]
    A("F1_ATTN:")
    k2c.attn(A, ST, qsrc="lds", pfx="F1A", st_flags=ctx_flags, ld_flags="" if inv else "sc1", g1_extra=([] if g0t else g1x), g0_extra=(g1x if g0t else []), qb_extra=lastx, merge_extra=mx, post0=p0x, **attn_kw)
    ST("st_issued")
    if fuse: k3d.tail(A, ST, stamps=stamps, **tail_kw)
    if s1t:
        A("s_cmp_ge_u32 s40, 576"); A("s_cbranch_scc1 F1_NOS1T")
        K_, V_, Q_, SK, W_, KF, O_ = 64, 92, 108, 124, 24, 28, 36
        A("v_lshlrev_b32 v58, 15, v56"); A("v_lshl_add_u32 v59, v57, 3, v58")
        A("v_lshlrev_b32 v57, 3, v57"); A("v_sub_u32 v58, v58, v57"); A("v_add_u32 v58, 4088, v58")
        A("s_mov_b32 s12, 0xffff0000"); A("s_mov_b32 s13, 0x05040100"); A("s_mov_b32 s14, 0x07060302")
        A("s_waitcnt vmcnt(4)")
        for r in range(76): A(f"v_accvgpr_read_b32 v{64+r}, a{r}")
        def unp(dst, src, hi): return f"v_and_b32 v{dst}, s12, v{src}" if hi else f"v_lshlrev_b32 v{dst}, 16, v{src}"
        for c in range(8):
            d, hi = c // 2, c % 2
            for r in range(7): A(unp(KF+r, K_+4*r+d, hi))
            for u in range(4): A(unp(W_+u, SK+2*c+u//2, u % 2))
            for p_ in range(4):
                A(f"v_mul_f32 v{O_+p_}, v{KF+p_+3}, v{W_}")
                for u in range(1, 4): A(f"v_fmac_f32 v{O_+p_}, v{KF+p_+3-u}, v{W_+u}")
            for p_ in range(4): A(unp(KF+p_, V_+4*p_+d, hi))
            for p_ in range(4): A(f"v_mul_f32 v{O_+p_}, v{O_+p_}, v{KF+p_}")
            t = 40 + 4*(c % 4)
            A(f"v_cvt_pk_bf16_f32 v{t}, v{O_+3}, v{O_+2}"); A(f"v_cvt_pk_bf16_f32 v{t+1}, v{O_+1}, v{O_}")
            A(f"v_perm_b32 v{t+2}, v{Q_+4+d}, v{Q_+d}, s{13+hi}"); A(f"v_perm_b32 v{t+3}, v{Q_+12+d}, v{Q_+8+d}, s{13+hi}")
            A(f"s_mov_b32 s34, {WS_XR + c*4096}"); A(f"s_mov_b32 s47, {WS_QT + c*4096}")
            A(f"buffer_store_dwordx2 {vr(t,2)}, v58, s[4:7], s34 offen"); A(f"buffer_store_dwordx2 {vr(t+2,2)}, v59, s[4:7], s47 offen")
        A("F1_NOS1T:")
    if stamps: A("s_waitcnt vmcnt(0)")
    ST("end"); ST("end_rt", real=True)
    ST.dump(vt=10, st=34, kidx=0)
    A("F1_END:")
    A("s_endpgm")
    A(kd(name, 256, 144))
    return ST.names
```

```python
from asmlib import *
from k1 import srd, WS_KV, WS_Q, WS_CTX, f32bits
from k1b import m16

V_X, V_Z = 3, 4
V_L, V_THR, V_LT, V_T = 5, 7, 8, 12
S0, P0, NM0, O0, ACC = 24, 56, 72, 80, 144
AQ, AF, NB = 0, 32, 16
def Sreg(qs, kT): return S0 + 16*qs + 4*kT
def Preg(qs, ks): return P0 + 8*qs + 4*ks
def Oreg(qs, d16): return O0 + (d16//4)*32 + qs*16 + (d16 % 4)*4
QB_LDS = 0x20000

def attn_setup(A):
    B = A
    B("s_lshl_b32 s32, s29, 1")
    B("s_sub_u32 s39, 31, s32")
    B("s_add_u32 s32, s32, 2")
    B("s_lshl_b32 s41, s28, 11")
    B("s_lshl_b32 s40, s30, 20")
    B("s_add_u32 s37, s40, s41")
    B("s_add_u32 s38, s37, 0x80000")
    B("s_lshl_b32 s34, s39, 14")
    B("s_add_u32 s56, s37, s34")
    B("s_add_u32 s57, s38, s34")
    B("s_mov_b32 s58, s41")
    B("s_add_u32 s59, s41, 16384")
    B("s_and_b32 s47, s28, 3")
    B("s_lshl_b32 s48, s29, 2")
    B("s_add_u32 s49, s48, s47")
    B("s_sub_u32 s50, 60, s48")
    B("s_add_u32 s50, s50, s47")
    B("s_lshl_b32 s51, s30, 19")
    B(f"s_add_u32 s51, s51, {WS_Q}")
    B("s_lshl_b32 s46, s50, 13")
    B("s_add_u32 s46, s46, s51")
    B("s_cmp_lt_u32 s28, 4")
    B("s_cselect_b32 s52, s49, s50")
    B("s_lshl_b32 s33, s52, 5")
    B("s_lshl_b32 s53, s52, 13")
    B("s_add_u32 s53, s53, s51")
    B("s_lshl_b32 s54, s30, 13")
    B(f"s_add_u32 s54, s54, {WS_CTX}")
    B("s_lshl_b32 s45, s49, 18")
    B("s_add_u32 s45, s45, s54")
    B("s_lshl_b32 s55, s50, 18")
    B("s_add_u32 s55, s55, s54")
    B(f"s_mov_b32 s44, {f32bits(2.0**24)}")
    B("s_sub_u32 s34, s32, 2")
    B("s_cmp_lt_u32 s28, 4")
    B("s_cselect_b32 s36, 7, 2")
    B("s_lshl_b32 s36, s36, s34")
    B("s_or_b32 s36, s36, 0x18001")

def attn_init(B):
    for r in range(NM0, O0+64): B(f"v_mov_b32 v{r}, 0")
    B(f"v_mov_b32 v{V_L}, 0"); B(f"v_mov_b32 v{V_L+1}, 0")
    B(f"v_mov_b32 v{V_Z}, v2"); B(f"v_mov_b32 v{V_X}, v2")
    B("s_mov_b32 s42, 1"); B("s_mov_b32 s31, 0"); B("s_mov_b32 s35, 0"); B("s_mov_b32 s43, 0x8000")

def attn(A, ST, D=8, prio=1, tail=4, st_flags="", pk=False, fine=-1, qsrc="global", wpair=True, pfx="K2", ld_flags="", dma_at=(0, 2, 4, 6), trace=False, g1m=False, g1_at=(2, 6, 10, 14), p0=1, p1=2, pt=3, align=0, smord=1, wgran=2, pre_at=8, qb_extra=(), g1_extra=(), g0_extra=(), merge_extra=(), post0=()):
    L = lambda s: s.replace("@", pfx + "_")
    def B(s): A(L(s))
    uid = [0]
    def dma(kind):
        off, m = ("s37", "s58") if kind == 0 else ("s38", "s59")
        return [f"s_mov_b32 m0, {m}", f"s_add_u32 {m}, {m}, 0x8000",
                f"buffer_load_dwordx4 v2, s[4:7], {off} offen {ld_flags} lds", f"buffer_load_dwordx4 v2, s[4:7], {off} offen offset:1024 {ld_flags} lds",
                f"s_and_b32 {m}, {m}, 0x1ffff", f"s_add_u32 {off}, {off}, 16384"]
    def guarded(conds, body):
        uid[0] += 1; lab = L(f"@D{uid[0]}")
        o = []
        for c in conds: o += c + [f"s_cbranch_scc1 {lab}"]
        return o + body + [f"{lab}:"]
    def dma_blocks(slow):
        if not slow:
            ph = [["s_cmp_eq_u32 s43, 0x8000"]]
            return [dma(0), dma(1), guarded(ph, dma(0)), guarded(ph, dma(1))]
        lk = ["s_cmp_gt_u32 s37, s56"]; lv = ["s_cmp_gt_u32 s38, s57"]
        return [guarded([lk], dma(0)), guarded([lv], dma(1)),
                guarded([lk, ["s_add_u32 s47, s31, 1", "s_cmp_lt_u32 s47, s32"]], dma(0)),
                guarded([lv, ["s_cmp_lt_u32 s31, s32"]], dma(1))]
    def qload_g(base):
        o = []
        for i in range(8):
            if i == 4: o.append(f"s_add_u32 s34, {base}, 4096")
            o.append(f"buffer_load_dwordx4 {ar(AQ+4*i,4)}, v2, s[4:7], {base if i < 4 else 's34'} offen offset:{(i%4)*1024}")
        return o
    def qload_l(ldsbase):
        o = ["s_and_b32 s34, s28, 3", "s_lshl_b32 s34, s34, 13", f"s_add_u32 s34, s34, {ldsbase}", f"v_add_u32 v{V_T+11}, s34, v2"]
        o += [f"ds_read_b128 {ar(AQ+4*i,4)}, v{V_T+11} offset:{i*1024}" for i in range(8)]
        return o
    def qk_items():
        it = []
        for kT in range(4):
            for ds in range(4):
                def fn(f, kT=kT, ds=ds):
                    return [m16(vr(Sreg(qs,kT),4), f, ar(AQ+16*qs+4*ds,4), vr(NM0+4*qs,4) if ds == 0 else vr(Sreg(qs,kT),4)) for qs in range(2)]
                it.append((V_Z, (kT*4+ds)*1024, fn))
        return it
    def pv_items():
        it = []
        for ks in range(2):
            for d16 in range(8):
                def fn(f, ks=ks, d16=d16):
                    return [m16(vr(Oreg(qs,d16),4), f, vr(Preg(qs,ks),4)) for qs in range(2)]
                it.append((V_X, 16384 + (ks*8+d16)*1024, fn))
        return it
    class Stream:
        def __init__(s, items): s.it = items; s.issued = 0
        def f(s, i): return ar(AF + 4*(i % NB), 4)
        def rds(s, n):
            o = []
            while s.issued < min(n, len(s.it)):
                a, off, _ = s.it[s.issued]
                o.append(f"ds_read_b128 {s.f(s.issued)}, v{a} offset:{off}"); s.issued += 1
            return o
        def run(s, i0, i1, extra=None):
            step = wgran
            while (i1 - i0) % step: step //= 2
            for i in range(i0, i1, step):
                A(f"s_waitcnt lgkmcnt({min(s.issued - (i+step), 15)})")
                if align: A(".p2align 3")
                for k in range(step):
                    A.ext(s.it[i+k][2](s.f(i+k)))
                    A.ext(s.rds(i + k + 1 + D))
                    if extra and (i+k) in extra: A.ext(extra[i+k])
            A.ext(s.rds(len(s.it)))
        def mf(s, i0, i1): return [m for i in range(i0, i1) for m in s.it[i][2](s.f(i))]
    def pairs():
        o = []
        for kT in range(4):
            for qs in range(2):
                for k in range(2):
                    o.append((Sreg(qs, kT) + 2*k, Preg(qs, kT//2) + 2*(kT % 2) + k, qs))
        return o
    def sm_list():
        pr = pairs(); seen = set(); NT = 4
        def fin(k):
            s, p, qs = pr[k]; t = V_T + 2*(k % NT); la = V_LT + 2*qs; r = []
            if pk:
                if qs not in seen: seen.add(qs); r.append(f"v_pk_add_f32 {vr(la,2)}, {vr(t,2)}, 0")
                else: r.append(f"v_pk_add_f32 {vr(la,2)}, {vr(la,2)}, {vr(t,2)}")
            elif qs not in seen:
                seen.add(qs); r.append(f"v_add_f32 v{la}, v{t}, v{t+1}")
            else:
                r.append(f"v_add_f32 v{la}, v{la}, v{t}"); r.append(f"v_add_f32 v{la}, v{la}, v{t+1}")
            r.append(f"v_cvt_pk_bf16_f32 v{p}, v{t}, v{t+1}")
            return r
        g = []
        for k in range(16):
            s, p, qs = pr[k]; t = V_T + 2*(k % NT)
            g.append([f"v_exp_f32 v{t}, v{s}", f"v_exp_f32 v{t+1}, v{s+1}"] + (fin(k-1) if k else []))
        if smord == 1:
            seen.clear(); g = []
            def ex(k):
                s, p, qs = pr[k]; t = V_T + 2*(k % NT)
                return [f"v_exp_f32 v{t}, v{s}", f"v_exp_f32 v{t+1}, v{s+1}"]
            for k in range(0, 16, 2):
                if k:
                    a = fin(k-2); b = fin(k-1)
                    g.append(ex(k) + a[:-1]); g.append(ex(k+1) + b[:-1] + [a[-1], b[-1]])
                else:
                    g.append(ex(0)); g.append(ex(1))
            a = fin(14); b = fin(15)
            g.append(a + b)
            return g
        last = fin(15)
        if pk: last = [last[1], last[0], f"v_add_f32 v{V_LT}, v{V_LT}, v{V_LT+1}", f"v_add_f32 v{V_LT+2}, v{V_LT+2}, v{V_LT+3}"]
        g.append(["s_nop 0"] + last)
        return g
    def softmax(tag, slow, blocks, pre=(), xtra=()):
        if slow:
            B("s_lshl_b32 s34, s35, 6"); B("s_add_u32 s34, s34, 63"); B("s_cmp_gt_u32 s34, s33")
            B(f"s_cbranch_scc1 @MASK_{tag}")
            B(f"@MASKRET_{tag}:")
            B("s_cmp_lg_u32 s42, 0"); B(f"s_cbranch_scc1 @INIT_{tag}")
            B(f"@INITRET_{tag}:")
        g = sm_list()
        at = dict(zip(dma_at, blocks))
        for k, grp in enumerate(g):
            if align >= 2 and (k == 2 or (k-1) in at): A(".p2align 3")
            A.ext(grp)
            if k in at: A.ext(at[k])
            if k == max(dma_at) + 1: A.ext(list(xtra))
            if pre and 0 <= k - pre_at < len(pre): A(pre[k - pre_at])
        B(f"v_add_f32 v{V_T+8}, v{V_LT}, v{V_LT+2}")
        B(f"v_cmp_nge_f32 vcc, s44, v{V_T+8}")
        B(f"s_cbranch_vccnz @FIX_{tag}")
        B(f"@FIXRET_{tag}:")
        for qs in range(2): B(f"v_add_f32 v{V_L+qs}, v{V_L+qs}, v{V_LT+2*qs}")
    def xlane(op, v, t1, t2):
        o = []
        for sw in ("32", "16"):
            o += [f"v_mov_b32 v{t1}, v{v}", f"v_mov_b32 v{t2}, v{v}", "s_nop 1", f"v_permlane{sw}_swap_b32 v{t1}, v{t2}", "s_nop 1", f"{op} v{v}, v{t1}, v{t2}"]
        return o
    def sregs(qs): return list(range(S0+16*qs, S0+16*qs+16))
    def oregs(qs): return [Oreg(qs, d)+r for d in range(8) for r in range(4)]
    def rowmax(qs, m):
        s = sregs(qs)
        B(f"v_max3_f32 v{m}, v{s[0]}, v{s[1]}, v{s[2]}")
        for i in range(3, 15, 2): B(f"v_max3_f32 v{m}, v{m}, v{s[i]}, v{s[i+1]}")
        B(f"v_max_f32 v{m}, v{m}, v{s[15]}")
        A.ext(xlane("v_max_f32", m, V_T+2, V_T+3))
    def init_blk(tag):
        B(f"@INIT_{tag}:")
        B("s_nop 7")
        for qs in range(2):
            m = V_T + qs
            rowmax(qs, m)
            for r in sregs(qs) + list(range(NM0+4*qs, NM0+4*qs+4)): B(f"v_sub_f32 v{r}, v{r}, v{m}")
        B("s_mov_b32 s42, 0")
        B(f"s_branch @INITRET_{tag}")
    def fix_blk(tags):
        for t in tags:
            B(f"@FIX_{t}:")
            B(f"s_getpc_b64 s[62:63]")
            B(f"@FIXPC_{t}:")
            B(f"s_add_u32 s62, s62, @FIXRET_{t}-@FIXPC_{t}")
            B(f"s_addc_u32 s63, s63, -1" if True else "")
            B(f"s_branch @FIXBODY_{tags[0]}")
        B(f"@FIXBODY_{tags[0]}:")
        for qs in range(2):
            m = V_T + 8 + qs
            rowmax(qs, m)
            B(f"v_max_f32 v{m}, 0, v{m}")
            for r in sregs(qs) + list(range(NM0+4*qs, NM0+4*qs+4)): B(f"v_sub_f32 v{r}, v{r}, v{m}")
            B(f"v_sub_f32 v{V_T+4}, 0, v{m}")
            B(f"v_exp_f32 v{V_T+4}, v{V_T+4}")
            B("s_nop 0")
            B(f"v_mul_f32 v{V_L+qs}, v{V_L+qs}, v{V_T+4}")
            for r in oregs(qs): B(f"v_mul_f32 v{r}, v{r}, v{V_T+4}")
        for grp in sm_list(): A.ext(grp)
        B("s_setpc_b64 s[62:63]")
    def mask_blk(tag):
        B(f"@MASK_{tag}:")
        B("s_lshl_b32 s34, s35, 6"); B("s_sub_u32 s34, s33, s34")
        B(f"v_and_b32 v{V_THR}, 15, v1"); B(f"v_lshrrev_b32 v{V_T}, 4, v1"); B(f"v_lshlrev_b32 v{V_T}, 2, v{V_T}")
        B(f"v_sub_u32 v{V_THR}, v{V_THR}, v{V_T}")
        B(f"v_mov_b32 v{V_T}, 0xff800000")
        mk = ["s[60:61]", "s[62:63]", "s[52:53]", "vcc"]
        for r in range(4): B(f"v_cmp_gt_i32 {mk[r]}, {r}, v{V_THR}")
        B("s_cmp_eq_u32 s34, 32"); B(f"s_cbranch_scc1 @MASK32_{tag}")
        for kT in (2, 3):
            for qs in range(2):
                for r in range(4): B(f"v_mov_b32 v{Sreg(qs,kT)+r}, v{V_T}")
        for r in range(4): B(f"v_mov_b32 v{Sreg(0,1)+r}, v{V_T}")
        B("s_cmp_eq_u32 s34, 0"); B(f"s_cbranch_scc1 @MASK0_{tag}")
        for (qs, kT) in ((0, 0), (1, 0), (1, 1)):
            for r in range(4): B(f"v_mov_b32 v{Sreg(qs,kT)+r}, v{V_T}")
        B(f"s_branch @MASKRET_{tag}")
        B(f"@MASK0_{tag}:")
        for (qs, kT) in ((0, 0), (1, 1)):
            for r in range(4): B(f"v_cndmask_b32 v{Sreg(qs,kT)+r}, v{Sreg(qs,kT)+r}, v{V_T}, {mk[r]}")
        B(f"s_branch @MASKRET_{tag}")
        B(f"@MASK32_{tag}:")
        for (qs, kT) in ((0, 2), (1, 3)):
            for r in range(4): B(f"v_cndmask_b32 v{Sreg(qs,kT)+r}, v{Sreg(qs,kT)+r}, v{V_T}, {mk[r]}")
        for r in range(4): B(f"v_mov_b32 v{Sreg(0,3)+r}, v{V_T}")
        B(f"s_branch @MASKRET_{tag}")
    def pack_src(i):
        qs, j = i // 4, i % 4
        return [Oreg(qs, 2*j)+k for k in range(4)] + [Oreg(qs, 2*j+1)+k for k in range(4)], qs, j // 2
    def sp(n):
        if prio: B(f"s_setprio {n}")
    adv = [f"v_mov_b32 v{V_X}, v{V_Z}", f"v_add_u32 v{V_Z}, s43, v{V_Z}", f"v_and_b32 v{V_Z}, 0x1ffff, v{V_Z}"]
    A.ext(dma(0))
    if qsrc == "global": A.ext(qload_g("s53"))
    A.ext(dma(0)); A.ext(dma(1))
    if qsrc == "global": attn_init(A)
    B("s_waitcnt vmcnt(4)")
    B("s_barrier")
    ST("k0_landed")
    F = [ST.reserve(f"f{i}") for i in range(6)] if fine >= 0 else None
    if trace:
        B("s_lshl_b32 s98, s2, 3"); B("s_add_u32 s98, s98, s28"); B("s_lshl_b32 s98, s98, 7"); B(f"s_add_u32 s98, s98, {WS_STAMP + (8 << 20)}")
    def fs(i, d=0):
        if fine >= 0: ST.at(F[i], "s31", fine + d)
        if trace and i == 0:
            B("s_memtime s[100:101]"); B("s_lshl_b32 s99, s31, 2"); B("s_add_u32 s99, s99, s98"); B("v_mov_b32 v22, 0"); B("s_waitcnt lgkmcnt(0)")
            B("v_mov_b32 v23, s100"); B("buffer_store_dword v23, v22, s[4:7], s99 offen")
    B("s_cmp_ge_u32 s28, 4")
    B("s_cbranch_scc1 @G1")
    s = Stream(qk_items()); A.ext(s.rds(D)); s.run(0, 16 - tail)
    tl = s.mf(16 - tail, 16)
    B("s_waitcnt vmcnt(0) lgkmcnt(0)")
    B("s_barrier")
    A.ext(list(post0))
    B("s_branch @G0_S")
    for slow in (False, True):
        tag = "g0s" if slow else "g0f"
        B("@G0_S:" if slow else "@G0_F:")
        fs(0)
        if align: A(".p2align 3")
        A.ext(tl)
        sp(0)
        if slow:
            B("s_add_u32 s47, s31, 1"); B("s_cmp_gt_u32 s47, s32"); B("s_cselect_b32 s43, 2, 1"); B("s_lshl_b32 s43, s43, 15")
            B("s_cmp_eq_u32 s47, s32"); B("s_cbranch_scc1 @QB")
            B("@QB_RET:")
        A.ext(adv)
        s = Stream(pv_items() + qk_items())
        pre = s.rds(D)
        if pre_at < 0: A.ext(pre); pre = []
        assert pre_at + len(pre) <= 17
        fs(1); fs(2)
        softmax(tag, slow, dma_blocks(slow), pre, xtra=() if slow else g0_extra)
        fs(3)
        sp(p0)
        if slow:
            B("s_cmp_eq_u32 s31, 16"); B("s_cbranch_scc1 @G0_LAST")
            B("s_add_u32 s47, s31, 1"); B("s_cmp_eq_u32 s47, s32"); B("s_cbranch_scc1 @SWITCH")
            B("@SWITCH_RET:")
        B("s_lshr_b32 s34, s43, 15"); B("s_add_u32 s35, s35, s34")
        B("s_add_u32 s31, s31, 1")
        s.run(0, 32 - tail)
        sp(pt)
        fs(4, 1)
        if slow:
            B("s_cmp_ge_u32 s31, s32"); B("s_cselect_b32 s43, 2, 1"); B("s_lshl_b32 s43, s43, 15")
        if slow:
            B("s_cmp_eq_u32 s31, s32"); B("s_cbranch_scc1 @EPI_A")
        B("s_bitcmp1_b32 s36, s31")
        B(f"s_waitcnt vmcnt({sum('buffer_load' in x for x in g0_extra) if not slow else 0}) lgkmcnt(0)")
        if fine >= 0:
            fs(5, 1); B("s_bitcmp1_b32 s36, s31")
        B("s_barrier")
        if slow:
            B("s_cbranch_scc0 @G0_F"); B("s_branch @G0_S")
        else:
            B("s_cbranch_scc0 @G0_F")
    B("@QB:")
    if qsrc == "global": A.ext(qload_g("s46"))
    else:
        A.ext(qload_l(QB_LDS)); B("s_waitcnt lgkmcnt(0)")
    B("s_branch @QB_RET")
    B("@SWITCH:")
    if qsrc == "global": B("s_waitcnt vmcnt(0)")
    for r in range(NM0, NM0+8): B(f"v_mov_b32 v{r}, 0")
    B("s_branch @SWITCH_RET")
    B("@EPI_A:")
    for qs in range(2):
        A.ext(xlane("v_add_f32", V_L+qs, V_T, V_T+1))
        B(f"v_rcp_f32 v{V_L+qs}, v{V_L+qs}")
    B("s_nop 0")
    for i in range(8):
        src, qs, _ = pack_src(i); t = V_T + 4*(i % 2)
        for r in src: B(f"v_mul_f32 v{r}, v{r}, v{V_L+qs}")
        for k in range(4): B(f"v_cvt_pk_bf16_f32 v{t+k}, v{src[2*k]}, v{src[2*k+1]}")
        if i == 4: B("s_add_u32 s45, s45, 4096")
        B(f"buffer_store_dwordx4 {vr(t,4)}, v2, s[4:7], s45 offen offset:{(i%4)*1024} {st_flags}")
        for r in src: B(f"v_mov_b32 v{r}, 0")
    B(f"v_mov_b32 v{V_L}, 0"); B(f"v_mov_b32 v{V_L+1}, 0")
    B("s_mov_b32 s42, 1")
    B("s_lshl_b32 s33, s50, 5")
    B("s_waitcnt vmcnt(8) lgkmcnt(0)")
    B("s_barrier")
    B("s_branch @G0_S")
    init_blk("g0s"); mask_blk("g0s")
    B("@G0_LAST:")
    s = Stream(pv_items()); s.issued = D; s.run(0, 16)
    sp(0)
    B("s_waitcnt vmcnt(0) lgkmcnt(0)")
    A.ext(list(qb_extra))
    B("s_barrier")
    B("s_branch @MERGE")
    B("@G1:")
    B("s_waitcnt vmcnt(0)")
    B("s_barrier")
    sp(p1)
    s = Stream(qk_items()); A.ext(s.rds(D)); s.run(0, 16, extra=dict(zip(g1_at, dma_blocks(True))) if g1m else None)
    B("s_branch @G1_V")
    for slow in (False, True):
        tag = "g1s" if slow else "g1f"
        B("@G1_S:" if slow else "@G1_F:")
        fs(0)
        sp(p1)
        s = Stream(pv_items() + qk_items()); A.ext(s.rds(D))
        s.run(0, 32, extra=dict(zip(g1_at, dma_blocks(slow))) if g1m else None)
        if slow: B("@G1_V:")
        fs(1); fs(2)
        sp(0)
        softmax(tag, slow, [] if g1m else dma_blocks(slow))
        if not slow: A.ext(list(g1_extra))
        fs(3)
        B("s_add_u32 s31, s31, 1")
        if slow:
            B("s_cmp_ge_u32 s31, s32"); B("s_cselect_b32 s43, 2, 1"); B("s_lshl_b32 s43, s43, 15")
        A.ext(adv)
        B("s_lshr_b32 s34, s43, 15"); B("s_add_u32 s35, s35, s34")
        fs(4, 1)
        B("s_bitcmp1_b32 s36, s31")
        B(f"s_waitcnt vmcnt({sum('buffer_load' in x for x in g1_extra) if not slow else 0})")
        if fine >= 0:
            fs(5, 1); B("s_bitcmp1_b32 s36, s31")
        B("s_barrier")
        if slow:
            B("s_cbranch_scc1 @G1_S")
            B("s_cmp_lt_u32 s31, 17"); B("s_cbranch_scc1 @G1_F")
        else:
            B("s_cbranch_scc0 @G1_F")
    s = Stream(pv_items()); A.ext(s.rds(D)); s.run(0, 16)
    B("s_branch @MERGE")
    init_blk("g1s"); mask_blk("g1s")
    fix_blk(["g0f", "g0s", "g1f", "g1s"])
    B("@MERGE:")
    ST("loop_done")
    A.ext(list(merge_extra))
    for qs in range(2): A.ext(xlane("v_add_f32", V_L+qs, V_T, V_T+1))
    B("s_lshr_b32 s34, s28, 1"); B("s_lshl_b32 s34, s34, 15"); B("s_and_b32 s47, s28, 1"); B("s_lshl_b32 s47, s47, 13"); B("s_add_u32 s34, s34, s47")
    B(f"v_add_u32 v{V_Z}, s34, v2")
    B(f"v_xor_b32 v{V_X}, 0x10000, v{V_Z}")
    B("s_lshl_b32 s34, s28, 10")
    B("s_add_u32 s34, s34, 0x20000")
    B(f"v_add_u32 v{V_T+8}, s34, v2")
    B(f"v_xor_b32 v{V_T+9}, 0x1000, v{V_T+8}")
    B(f"v_mov_b32 v{V_T+4}, v{NM0}"); B(f"v_mov_b32 v{V_T+5}, v{NM0+4}"); B(f"v_mov_b32 v{V_T+6}, v{V_L}"); B(f"v_mov_b32 v{V_T+7}, v{V_L+1}")
    B(f"ds_write_b128 v{V_T+8}, {vr(V_T+4,4)}")
    B("s_cmp_ge_u32 s28, 4")
    B("s_cbranch_scc1 @MG1")
    for half in range(2):
        if half == 1: B("@MG1:")
        send = O0 + 32*(1-half); keep = O0 + 32*half
        for i in range(8): B(f"ds_write_b128 v{V_Z}, {vr(send+4*i,4)} offset:{i*1024}")
        B("s_waitcnt lgkmcnt(0)")
        B("s_barrier")
        B(f"ds_read_b128 {vr(S0,4)}, v{V_T+9}")
        for i in range(8): B(f"ds_read_b128 {vr(send+4*i,4)}, v{V_X} offset:{i*1024}")
        B("s_waitcnt lgkmcnt(8)")
        for qs in range(2):
            own_nm = V_T+4+qs; oth_nm = S0+qs; fo = S0+4+2*qs; fp = S0+5+2*qs; mn = S0+8
            B(f"v_min_f32 v{mn}, v{own_nm}, v{oth_nm}")
            B(f"v_sub_f32 v{fo}, v{mn}, v{own_nm}"); B(f"v_sub_f32 v{fp}, v{mn}, v{oth_nm}")
            B(f"v_exp_f32 v{fo}, v{fo}"); B(f"v_exp_f32 v{fp}, v{fp}"); B("s_nop 0")
            B(f"v_mul_f32 v{mn}, v{fo}, v{V_L+qs}"); B(f"v_fma_f32 v{mn}, v{fp}, v{S0+2+qs}, v{mn}")
            B(f"v_rcp_f32 v{mn}, v{mn}"); B("s_nop 0")
            B(f"v_mul_f32 v{fo}, v{fo}, v{mn}"); B(f"v_mul_f32 v{fp}, v{fp}, v{mn}")
        B("s_waitcnt lgkmcnt(0)")
        n = 0
        for i in range(8):
            src, qs, dh = pack_src(i)
            if dh != half: continue
            t = V_T + 4*(n % 2); n += 1
            for r in src:
                B(f"v_mul_f32 v{r}, v{r}, v{S0+4+2*qs}")
                B(f"v_fma_f32 v{r}, v{r - keep + send}, v{S0+5+2*qs}, v{r}")
            for k in range(4): B(f"v_cvt_pk_bf16_f32 v{t+k}, v{src[2*k]}, v{src[2*k+1]}")
            B(f"s_add_u32 s34, s55, {(i//4)*4096}")
            B(f"buffer_store_dwordx4 {vr(t,4)}, v2, s[4:7], s34 offen offset:{(i%4)*1024} {st_flags}")
        if half == 0: B("s_branch @FIN")
    B("@FIN:")

def k2(A, name="k2_kernel", stamps=False, SH=16, **kw):
    A(khead(name))
    ST = Stamps(A, stamps, base=64, srd=4, wave="s28")
    A("s_cmp_ge_u32 s2, 256"); A("s_cbranch_scc1 K2_END")
    ST("start_rt", real=True); ST("start")
    A("s_load_dwordx2 s[8:9], s[0:1], 112")
    A("v_lshrrev_b32 v10, 6, v0"); A("v_and_b32 v1, 63, v0"); A("v_readfirstlane_b32 s28, v10"); A("v_lshlrev_b32 v2, 4, v1")
    A("s_and_b32 s34, s2, 7"); A("s_lshl_b32 s34, s34, 2"); A("s_lshr_b32 s47, s2, 3"); A("s_and_b32 s47, s47, 3")
    A("s_add_u32 s30, s34, s47"); A("s_lshr_b32 s29, s2, 5")
    attn_setup(A)
    A("s_waitcnt lgkmcnt(0)")
    srd(A, 4, 8, 1 << 28)
    attn(A, ST, **kw)
    ST("st_issued")
    if stamps: A("s_waitcnt vmcnt(0)")
    ST("end"); ST("end_rt", real=True)
    ST.dump(vt=10, st=34, kidx=1)
    A("K2_END:"); A("s_endpgm")
    A(kd(name, ACC+96, ACC))
    return ST.names
```

```python
from asmlib import *
from k1 import srd, WS_CTX, WS_PART
from k1b import m16
from f1 import WS_EPOCH, code_touch
from ka import WS_XR, WS_QT, NB_IN, CS, C0, C1
STG = 49152
WS_FLAG3 = 122 << 20
WS_FLAG4 = 123 << 20
LDS3 = 3*STG

def k3(A, name="k3_kernel", stamps=False, sleep=1, cpf=True, cfl="", ofl="", nocst=False, al=False, noost=False, s1=False, wpf=True):
    A(khead(name))
    ST = Stamps(A, stamps, base=64, srd=4, wave="s28")
    A("s_cmp_ge_u32 s2, 256"); A("s_cbranch_scc1 K3_END")
    ST("start_rt", real=True); ST("start")
    A("s_load_dwordx4 s[44:47], s[0:1], 88")
    A("s_load_dwordx2 s[48:49], s[0:1], 112")
    A("s_load_dwordx4 s[52:55], s[0:1], 32")
    A("v_lshrrev_b32 v10, 6, v0"); A("v_and_b32 v1, 63, v0"); A("v_readfirstlane_b32 s28, v10"); A("v_lshlrev_b32 v2, 4, v1")
    if cpf: code_touch(A, "K3_CODE0", "K3_END-K3_CODE0", 15, 12)
    A("v_mov_b32 v14, 0")
    A("s_cmp_ge_u32 s2, 192"); A("s_cbranch_scc1 K3_CONV")
    A("s_and_b32 s29, s2, 3")
    A("s_lshr_b32 s34, s2, 3"); A("s_and_b32 s30, s34, 7"); A("s_and_b32 s35, s2, 4"); A("s_lshl_b32 s35, s35, 1"); A("s_add_u32 s30, s30, s35")
    A("s_lshr_b32 s31, s34, 3")
    A("s_lshr_b32 s42, s28, 2")
    A("s_and_b32 s37, s28, 3")
    A("s_lshl_b32 s34, s30, 2"); A("s_add_u32 s43, s34, s37")
    A("s_lshl_b32 s33, s43, 18"); A("s_lshl_b32 s34, s29, 16"); A("s_add_u32 s33, s33, s34"); A("s_lshl_b32 s34, s42, 15"); A("s_add_u32 s33, s33, s34")
    A(f"s_add_u32 s33, s33, {WS_CTX}")
    A("s_mov_b32 s56, s33"); A("s_add_u32 s57, s33, 4096")
    A("s_mul_i32 s41, s29, 6")
    A("s_mov_b32 s36, 2731")
    A("s_lshl_b32 s34, s28, 6")
    VD = 3
    for i in range(6):
        A("v_add_u32 v10, s34, v1")
        A("v_mul_u32_u24 v11, s36, v10"); A("v_lshrrev_b32 v11, 16, v11")
        A("v_mul_u32_u24 v12, 24, v11"); A("v_sub_u32 v12, v10, v12")
        A("v_and_b32 v13, 6, v11"); A("v_xor_b32 v12, v12, v13")
        A("v_add_u32 v12, s41, v12"); A("v_subrev_u32 v13, 24, v12"); A("v_min_u32 v12, v12, v13")
        A("v_lshrrev_b32 v9, 6, v11"); A("v_mad_u32_u24 v12, v9, 12, v12"); A("v_subrev_u32 v13, 24, v12"); A("v_min_u32 v12, v12, v13")
        A("v_mul_u32_u24 v13, 448, v9"); A("v_add_u32 v11, v11, v13")
        A("v_mul_u32_u24 v11, 1152, v11")
        A(f"v_lshl_add_u32 v{VD+i}, v12, 4, v11")
        A("s_add_u32 s34, s34, 512")
    A(f"s_mul_i32 s32, s29, {1024*1152}"); A("s_mul_i32 s34, s31, 384"); A("s_add_u32 s32, s32, s34")
    A("s_lshl_b32 s38, s28, 10")
    A("s_waitcnt lgkmcnt(0)")
    ST("karg")
    srd(A, 4, 48, 1 << 28); srd(A, 8, 44, 4096*576*2)
    CT = [16, 32, 48]; WR = 64; NW = 16; ACC = 128; VA = 224
    def dma(j):
        return [[f"s_add_u32 m0, s38, {(j%3)*STG + i*8192}", f"s_add_u32 s34, s32, {j*64*1152}" if i == 0 else "s_nop 0",
                 f"buffer_load_dwordx4 v{VD+i}, s[8:11], s34 offen lds"] for i in range(6)]
    def cload(j):
        g = []
        for a in range(2):
            for k2 in range(2):
                pre = [f"s_add_u32 s35, s{56+a}, {(j//2)*8192}"] if k2 == 0 else []
                g.append(pre + [f"buffer_load_dwordx4 {vr(CT[j%3]+8*a+4*k2,4)}, v2, s[4:7], s35 offen offset:{(2*(j%2)+k2)*1024}"])
        return g
    for g in cload(0) + dma(0): A.ext(g)
    ST("issued")
    A("v_lshrrev_b32 v10, 2, v1"); A("v_mul_u32_u24 v11, 384, v10"); A("v_and_b32 v10, 6, v10")
    A("v_bfe_u32 v12, v1, 1, 1"); A("v_or_b32 v10, v10, v12")
    A("v_and_b32 v12, 1, v1"); A("v_lshl_add_u32 v11, v12, 3, v11")
    A(f"s_mul_i32 s34, s42, {64*384}"); A("v_add_u32 v11, s34, v11")
    for u in range(4):
        A(f"v_xor_b32 v12, {2*u}, v10"); A(f"v_lshl_add_u32 v{VA+u}, v12, 4, v11")
    for r in range(ACC, ACC+96): A(f"v_mov_b32 v{r}, 0")
    A(f"s_mov_b32 s34, {WS_EPOCH}")
    A("buffer_load_dwordx2 v[232:233], v14, s[4:7], s34 offen")
    for g in cload(1) + dma(1): A.ext(g)
    A("s_waitcnt vmcnt(11)")
    A("K3_CODE0:")
    TAIL = 4; DW = 10
    def wf(i): return WR + 4*(i % NW)
    def wr(i):
        k2, t = divmod(i, 12)
        return [f"ds_read_b64_tr_b16 {vr(wf(i)+2*half,2)}, v{VA+4+t%4} offset:{(32*k2+16*half)*384+(t//4)*128}" for half in range(2)]
    def mf(j, i):
        k2, t = divmod(i, 12)
        return [m16(vr(ACC+48*a+4*t,4), vr(wf(i),4), vr(CT[j%3]+8*a+4*k2,4)) for a in range(2)]
    tail = []
    for j in range(8):
        if j: A(f"s_waitcnt vmcnt({10 if j < 7 else 0}) lgkmcnt(0)")
        for u in range(4): A(f"v_add_u32 v{VA+4+u}, {(j%3)*STG}, v{VA+u}")
        A("s_barrier")
        if j == 0: ST("landed")
        first = [x for i in range(4) for x in wr(i)]
        if tail:
            for m, r in zip(tail, first): A(m); A(r)
        else: A.ext(first)
        issued = 4
        while issued < 7: A.ext(wr(issued)); issued += 1
        fill = (cload(j+2) + dma(j+2)) if j+2 < 8 else []
        for i in range(24 - TAIL):
            A(f"s_waitcnt lgkmcnt({min(15, 2*(issued - i - 1))})")
            mm = mf(j, i)
            rr = wr(issued) if issued < 24 else [None, None]
            if issued < 24: issued += 1
            A(mm[0])
            if rr[0]: A(rr[0])
            A(mm[1])
            if rr[1]: A(rr[1])
            if i % 2 == 0 and fill: A.ext(fill.pop(0))
        assert issued == 24 and not fill
        tail = [m for i in range(24 - TAIL, 24) for m in mf(j, i)]
    A("s_waitcnt lgkmcnt(0)")
    A.ext(tail)
    ST("gemm_done")
    A("s_mul_i32 s34, s28, 12288"); A("v_add_u32 v9, s34, v2")
    A("s_xor_b32 s35, s28, 4"); A("s_mul_i32 s35, s35, 12288"); A("v_add_u32 v10, s35, v2")
    srd(A, 8, 46, 2048*1152*2)
    A("s_barrier")
    snd = [(a_, t) for a_ in range(2) for t in range(6)]
    for i, (a_, t) in enumerate(snd): A(f"ds_write_b128 v9, {vr(ACC+48*a_+4*(t+6),4)} offset:{i*1024}")
    A("s_mul_i32 s39, s30, 3"); A("s_add_u32 s39, s39, s31")
    A(f"s_mul_i32 s50, s39, {16*4*3072}"); A("s_mul_i32 s34, s37, 3072"); A("s_add_u32 s50, s50, s34"); A(f"s_add_u32 s50, s50, {WS_PART}")
    A("v_readfirstlane_b32 s62, v232"); A("v_readfirstlane_b32 s63, v233")
    A("s_lshl_b32 s52, s39, 12"); A(f"s_add_u32 s52, s52, {WS_FLAG3}")
    A("s_lshl_b32 s34, s29, 10"); A("s_add_u32 s53, s52, s34"); A("s_lshl_b32 s34, s28, 7"); A("s_add_u32 s53, s53, s34")
    def dest(dexpr):
        A(dexpr); A("s_and_b32 s34, s34, 3"); A("s_lshl_b32 s34, s34, 2"); A("s_add_u32 s34, s34, s29")
        A(f"s_mul_i32 s34, s34, {4*3072}"); A("s_add_u32 s34, s34, s50")
    A("s_lshl_b32 s40, s42, 1"); A("s_add_u32 s40, s40, s29")
    A("s_waitcnt lgkmcnt(0)"); A("s_barrier")
    order = [(a_, t) for t in (3, 4, 5, 0, 1, 2) for a_ in range(2)]
    for (a_, t) in order: A(f"ds_read_b128 {vr(ACC+48*a_+4*(t+6),4)}, v10 offset:{snd.index((a_, t))*1024}")
    for i, (a_, t) in enumerate(order):
        if i == 6: A("s_cmp_eq_u32 s42, 0"); A("s_cbranch_scc1 K3_OWN")
        A(f"s_waitcnt lgkmcnt({11 - i})")
        x = ACC + 48*a_ + 4*t; pk = 16 + 2*i
        for r in range(4): A(f"v_add_f32 v{x+r}, v{x+r}, v{x+24+r}")
        A(f"v_cvt_pk_bf16_f32 v{pk}, v{x}, v{x+1}"); A(f"v_cvt_pk_bf16_f32 v{pk+1}, v{x+2}, v{x+3}")
        if i == 0: dest("s_add_u32 s34, s40, 1")
        if i == 6: dest("s_add_u32 s34, s40, 0")
        if a_ == 1: A(f"buffer_store_dwordx4 {vr(pk-2,4)}, v2, s[4:7], s34 offen offset:{(t%3)*1024} sc1")
    A("s_waitcnt vmcnt(0)")
    A("s_mov_b64 exec, 1")
    A("buffer_store_dwordx2 v[232:233], v14, s[4:7], s53 offen sc0 sc1")
    A("s_mov_b64 exec, -1")
    A("s_branch K3_FIN")
    A("K3_OWN:")
    A("s_waitcnt lgkmcnt(0)")
    for (a_, t) in order[6:]:
        x = ACC + 48*a_ + 4*t
        for r in range(4): A(f"v_add_f32 v{x+r}, v{x+r}, v{x+24+r}")
    A("v_and_b32 v12, 3, v1"); A("v_max_u32 v12, 1, v12"); A("v_sub_u32 v13, s29, v12"); A("v_and_b32 v13, 3, v13"); A("v_lshlrev_b32 v13, 10, v13")
    A("v_lshrrev_b32 v12, 1, v12"); A("v_lshl_add_u32 v12, v12, 9, v13"); A("s_lshl_b32 s34, s37, 7"); A("s_add_u32 s52, s52, s34")
    A("v_and_b32 v10, 15, v1"); A("v_mul_u32_u24 v10, 2304, v10"); A("v_lshrrev_b32 v13, 4, v1"); A("v_lshl_add_u32 v3, v13, 3, v10")
    A(f"s_mul_i32 s54, s43, {32*2304}")
    A("s_mul_i32 s34, s31, 384"); A("s_add_u32 s54, s54, s34"); A("s_mul_i32 s34, s29, 96"); A("s_add_u32 s54, s54, s34"); A("s_add_u32 s54, s54, 1152")
    A(f"s_add_u32 s55, s54, {16*2304}")
    A(f"s_mul_i32 s34, s29, {4*4*3072}"); A("s_add_u32 s50, s50, s34")
    A("s_mov_b32 s61, 0x40000")
    A("s_waitcnt vmcnt(0)")
    ST("sent")
    A("s_mov_b64 exec, 1")
    A("buffer_store_dwordx2 v[232:233], v14, s[4:7], s53 offen sc0 sc1")
    A("s_mov_b64 exec, -1")
    A("K3_POLL:")
    A("buffer_load_dwordx2 v[8:9], v12, s[4:7], s52 offen sc0 sc1")
    A("s_waitcnt vmcnt(0)")
    A("v_cmp_ne_u32 vcc, s62, v8"); A("v_cmp_ne_u32 s[36:37], s63, v9")
    A("s_or_b64 vcc, vcc, s[36:37]"); A("s_cmp_eq_u64 vcc, 0"); A("s_cbranch_scc1 K3_GOT")
    A(f"s_sleep {sleep}")
    A("s_sub_u32 s61, s61, 1"); A("s_cmp_lg_u32 s61, 0"); A("s_cbranch_scc1 K3_POLL")
    A("K3_GOT:")
    ST("polled")
    for d in range(1, 4):
        A(f"s_add_u32 s34, s29, {d}"); A("s_and_b32 s34, s34, 3"); A(f"s_mul_i32 s34, s34, {4*3072}"); A("s_add_u32 s34, s34, s50")
        for t in range(3): A(f"buffer_load_dwordx4 {vr(48+12*(d-1)+4*t,4)}, v2, s[4:7], s34 offen offset:{t*1024} sc1")
    A("s_mov_b32 s36, 0xffff0000")
    for d in range(1, 4):
        A(f"s_waitcnt vmcnt({3*(3-d)})")
        for t in range(3):
            for a_ in range(2):
                for h in range(2):
                    y = 48 + 12*(d-1) + 4*t + 2*a_ + h; x = ACC + 48*a_ + 4*t + 2*h
                    A(f"v_lshlrev_b32 v4, 16, v{y}"); A(f"v_and_b32 v5, s36, v{y}")
                    A(f"v_add_f32 v{x}, v{x}, v4"); A(f"v_add_f32 v{x+1}, v{x+1}, v5")
    for a_ in range(2):
        for t in range(3):
            x = ACC + 48*a_ + 4*t
            A(f"v_cvt_pk_bf16_f32 v{x}, v{x}, v{x+1}"); A(f"v_cvt_pk_bf16_f32 v{x+1}, v{x+2}, v{x+3}")
            if not noost: A(f"buffer_store_dwordx2 {vr(x,2)}, v3, s[8:11], s{54+a_} offen offset:{t*32} {ofl}")
    ST("xdone")
    A("s_branch K3_FIN")
    A("K3_CONV:")
    def xs(i):
        if stamps: A(f"s_memtime s[{64+2*i}:{65+2*i}]")
    if s1:
        A("s_load_dwordx2 s[20:21], s[0:1], 8"); A("s_load_dwordx2 s[24:25], s[0:1], 16"); A("s_load_dwordx2 s[56:57], s[0:1], 0"); A("s_load_dwordx2 s[60:61], s[0:1], 24")
        for b_ in (22, 26, 58): A(f"s_mov_b32 s{b_}, {NB_IN}"); A(f"s_mov_b32 s{b_+1}, 0x20000")
        A("s_mov_b32 s62, 4608"); A("s_mov_b32 s63, 0x20000")
    A("s_and_b32 s34, s2, 7"); A("s_mul_i32 s29, s34, 9"); A("s_lshr_b32 s35, s2, 3"); A("s_sub_u32 s35, s35, 24")
    A("s_mov_b32 s38, s29"); A("s_mov_b32 s39, s35")
    A("s_add_u32 s29, s29, s35")
    A("s_mul_i32 s40, s34, 72"); A("s_add_u32 s40, s40, 64"); A("s_add_u32 s40, s40, s35")
    A(f"s_mul_i32 s31, s28, {CS}")
    A(f"v_add_u32 v3, {0 if al else 2}, v2")
    A("v_and_b32 v8, 15, v1"); A("v_lshrrev_b32 v9, 4, v1")
    A("v_lshlrev_b32 v10, 5, v8"); A("v_lshl_add_u32 v10, v9, 3, v10")
    A("v_and_b32 v12, 1, v8")
    A("v_add_u32 v13, v8, v12"); A("v_lshl_add_u32 v13, v9, 3, v13"); A("v_lshlrev_b32 v13, 1, v13")
    A(f"v_mul_u32_u24 v12, {C1-C0}, v12"); A("v_sub_u32 v13, v13, v12")
    A(f"s_add_u32 s34, s31, {C1}"); A("v_add_u32 v16, s34, v13")
    for i in range(1, 4): A(f"v_add_u32 v{16+i}, {1024*i}, v16")
    A("v_lshlrev_b32 v12, 5, v8"); A("v_lshlrev_b32 v13, 4, v9"); A("v_sub_u32 v13, v13, v12")
    A(f"s_add_u32 s34, s31, {4064-3584}"); A("v_add_u32 v20, s34, v13")
    A("v_lshl_add_u32 v21, v9, 3, v8"); A("v_sub_u32 v21, 15, v21")
    A("v_bfe_u32 v22, v1, 2, 2"); A(f"v_mul_u32_u24 v22, {CS}, v22")
    A("v_lshl_add_u32 v22, v9, 5, v22"); A("v_and_b32 v13, 3, v1"); A("v_lshl_add_u32 v22, v13, 3, v22")
    A("s_lshl_b32 s34, s28, 9"); A(f"s_add_u32 s34, s34, {C0}"); A("v_add_u32 v22, s34, v22")
    A("v_mul_u32_u24 v23, 2304, v1")
    A("s_waitcnt lgkmcnt(0)")
    srd(A, 4, 48, 1 << 28); srd(A, 8, 52, NB_IN); srd(A, 12, 54, 1152); srd(A, 16, 46, 2048*1152*2)
    QR = 24; CA = 40; FS = [72, 136]; AD = 200
    xs(9)
    XB_ = 8*CS
    A("s_lshl_b32 s30, s29, 3"); A("s_add_u32 s30, s30, s28"); A("s_lshl_b32 s32, s30, 12"); A("s_lshl_b32 s41, s40, 12")
    lf = "sc1" if s1 else ""
    if s1:
        K_, V_, Q_, SK, W_, KF, O_, KB = 72, 100, 116, 132, 148, 152, 160, 164
        A("s_and_b32 s34, s28, 1"); A("s_lshl_b32 s34, s34, 2"); A("s_add_u32 s34, s34, s38"); A("v_and_b32 v40, 3, v1"); A("v_add_u32 v40, s34, v40")
        A("s_lshl_b32 s34, s39, 6"); A("s_lshr_b32 s35, s28, 1"); A("s_lshl_b32 s35, s35, 4"); A("s_add_u32 s35, s35, s34"); A("v_lshrrev_b32 v41, 2, v1"); A("v_add_u32 v41, s35, v41")
        A(f"v_mul_u32_u24 v42, {4*1152}, v41"); A("v_lshl_add_u32 v42, v40, 4, v42"); A(f"v_subrev_u32 v43, {3*1152}, v42"); A("v_lshlrev_b32 v44, 6, v40")
        for i in range(4): A(f"buffer_load_dwordx4 {vr(SK+4*i,4)}, v44, s[60:63], 0 offen offset:{16*i}")
        for r in range(3): A(f"buffer_load_dwordx4 {vr(K_+4*r,4)}, v43, s[20:23], 0 offen offset:{r*1152}")
        for base, sd in ((K_+12, 20), (V_, 24), (Q_, 56)):
            for r in range(4): A(f"buffer_load_dwordx4 {vr(base+4*r,4)}, v42, s[{sd}:{sd+3}], 0 offen offset:{r*1152}")
        A("v_add_u32 v45, s34, v1"); A(f"v_mul_u32_u24 v46, {4*1152}, v45")
        A("s_add_u32 s34, s38, 8"); A("s_lshl_b32 s35, s34, 4"); A("s_lshr_b32 s33, s28, 1"); A("s_lshl_b32 s33, s33, 2"); A("s_add_u32 s35, s35, s33")
        A("v_add_u32 v46, s35, v46"); A(f"v_subrev_u32 v47, {3*1152}, v46")
        A("s_lshl_b32 s42, s34, 3"); A("s_add_u32 s42, s42, s28")
        A("s_lshl_b32 s34, s42, 3")
        A(f"buffer_load_dwordx2 {vr(KB+16,2)}, v14, s[60:63], s34 offen")
        for r in range(3): A(f"buffer_load_dword v{KB+r}, v47, s[20:23], 0 offen offset:{r*1152}")
        for base, sd in ((KB+3, 20), (KB+7, 24), (KB+11, 56)):
            for r in range(4): A(f"buffer_load_dword v{base+r}, v46, s[{sd}:{sd+3}], 0 offen offset:{r*1152}")
        A(f"s_mov_b32 s34, {WS_EPOCH}")
        A("buffer_load_dwordx2 v[214:215], v14, s[4:7], s34 offen")
    A(f"s_add_u32 m0, s31, {C0+32}"); A("s_nop 0")
    for i in range(4): A(f"buffer_load_dwordx4 v2, s[8:11], s32 offen offset:{i*1024} lds")
    A(f"s_add_u32 m0, s31, {C1+32}"); A("s_nop 0")
    for i in range(4): A(f"buffer_load_dwordx4 v3, s[8:11], s32 offen offset:{i*1024} lds")
    A("s_cmp_eq_u32 s28, 1"); A("s_cbranch_scc1 K3_XL1")
    A("s_cmp_lg_u32 s28, 2"); A("s_cbranch_scc1 K3_XL")
    A(f"s_mov_b32 m0, {XB_+C1+32}"); A("s_nop 0")
    for i in range(4): A(f"buffer_load_dwordx4 v3, s[8:11], s41 offen offset:{i*1024} lds")
    A("s_branch K3_XL")
    A("K3_XL1:")
    A(f"s_mov_b32 m0, {XB_+C0+32}"); A("s_nop 0")
    for i in range(4): A(f"buffer_load_dwordx4 v2, s[8:11], s41 offen offset:{i*1024} lds")
    A("K3_XL:")
    A("s_lshl_b32 s34, s40, 1")
    A("buffer_load_ushort v208, v14, s[12:15], s34 offen")
    A("buffer_load_ushort v209, v14, s[8:11], s41 offen")
    A("buffer_load_ushort v210, v14, s[8:11], s41 offen offset:4094")
    A("s_lshl_b32 s34, s30, 1")
    A("buffer_load_ushort v5, v14, s[12:15], s34 offen")
    A("buffer_load_ushort v6, v14, s[8:11], s32 offen")
    A("buffer_load_ushort v7, v14, s[8:11], s32 offen offset:4094")
    if s1:
        A("v_lshlrev_b32 v42, 15, v40"); A("v_lshl_add_u32 v43, v41, 3, v42")
        A("v_lshlrev_b32 v41, 3, v41"); A("v_sub_u32 v42, v42, v41"); A("v_add_u32 v42, 4088, v42")
        A("s_mov_b32 s50, 0xffff0000"); A("s_mov_b32 s51, 0x05040100"); A("s_mov_b32 s52, 0x07060302")
        A("s_waitcnt vmcnt(14)")
        xs(2)
        def unp(dst, src, hi): return f"v_and_b32 v{dst}, s50, v{src}" if hi else f"v_lshlrev_b32 v{dst}, 16, v{src}"
        for c in range(8):
            d, hi = c // 2, c % 2
            for r in range(7): A(unp(KF+r, K_+4*r+d, hi))
            for u in range(4): A(unp(W_+u, SK+2*c+u//2, u % 2))
            for p_ in range(4):
                A(f"v_mul_f32 v{O_+p_}, v{KF+p_+3}, v{W_}")
                for u in range(1, 4): A(f"v_fmac_f32 v{O_+p_}, v{KF+p_+3-u}, v{W_+u}")
            for p_ in range(4): A(unp(KF+p_, V_+4*p_+d, hi))
            for p_ in range(4): A(f"v_mul_f32 v{O_+p_}, v{O_+p_}, v{KF+p_}")
            t = 184 + 4*(c % 4)
            A(f"v_cvt_pk_bf16_f32 v{t}, v{O_+3}, v{O_+2}"); A(f"v_cvt_pk_bf16_f32 v{t+1}, v{O_+1}, v{O_}")
            A(f"v_perm_b32 v{t+2}, v{Q_+4+d}, v{Q_+d}, s{51+hi}"); A(f"v_perm_b32 v{t+3}, v{Q_+12+d}, v{Q_+8+d}, s{51+hi}")
            A(f"s_mov_b32 s34, {WS_XR + c*4096}"); A(f"s_mov_b32 s35, {WS_QT + c*4096}")
            A(f"buffer_store_dwordx2 {vr(t,2)}, v42, s[4:7], s34 offen"); A(f"buffer_store_dwordx2 {vr(t+2,2)}, v43, s[4:7], s35 offen")
        A("s_and_b32 s34, s28, 1"); A("s_lshl_b32 s34, s34, 4"); A("s_xor_b32 s53, s34, 16"); A("s_and_b32 s34, s28, 1"); A("s_cmp_eq_u32 s34, 0"); A("s_cselect_b32 s54, s51, s52")
        for r in range(11): A(f"v_lshlrev_b32 v{KB+r}, s53, v{KB+r}"); A(f"v_and_b32 v{KB+r}, s50, v{KB+r}")
        for u in range(4): A(unp(W_+u, KB+16+u//2, u % 2))
        for p_ in range(4):
            A(f"v_mul_f32 v{O_+p_}, v{KB+p_+3}, v{W_}")
            for u in range(1, 4): A(f"v_fmac_f32 v{O_+p_}, v{KB+p_+3-u}, v{W_+u}")
        for p_ in range(4): A(f"v_mul_f32 v{O_+p_}, v{O_+p_}, v{KB+7+p_}")
        A(f"v_cvt_pk_bf16_f32 v48, v{O_+3}, v{O_+2}"); A(f"v_cvt_pk_bf16_f32 v49, v{O_+1}, v{O_}")
        A(f"v_perm_b32 v50, v{KB+12}, v{KB+11}, s54"); A(f"v_perm_b32 v51, v{KB+14}, v{KB+13}, s54")
        A("v_lshlrev_b32 v45, 3, v45"); A("v_sub_u32 v46, 4088, v45")
        A("s_lshl_b32 s34, s42, 12"); A(f"s_add_u32 s35, s34, {WS_QT}"); A(f"s_add_u32 s34, s34, {WS_XR}")
        A("buffer_store_dwordx2 v[48:49], v46, s[4:7], s34 offen"); A("buffer_store_dwordx2 v[50:51], v45, s[4:7], s35 offen")
        A("v_readfirstlane_b32 s50, v214"); A("v_readfirstlane_b32 s51, v215")
        A("s_and_b32 s52, s2, 7"); A("s_lshl_b32 s52, s52, 10"); A(f"s_add_u32 s52, s52, {WS_FLAG4}"); A("s_lshl_b32 s34, s39, 7"); A("s_add_u32 s53, s52, s34")
        A("v_and_b32 v40, 7, v1"); A("v_lshlrev_b32 v40, 7, v40"); A("s_mov_b32 s54, 0x40000")
        xs(3)
        A("s_waitcnt vmcnt(0)"); A("s_barrier")
        xs(4)
        A("s_cmp_lg_u32 s28, 0"); A("s_cbranch_scc1 K3_CP")
        A("buffer_wbl2 sc1"); A("s_waitcnt vmcnt(0)")
        A("s_mov_b64 exec, 1"); A("buffer_store_dwordx2 v[214:215], v14, s[4:7], s53 offen sc0 sc1"); A("s_mov_b64 exec, -1")
        A("K3_CP:")
        A("buffer_load_dwordx2 v[42:43], v40, s[4:7], s52 offen sc0 sc1")
        A("s_waitcnt vmcnt(0)")
        A("v_cmp_ne_u32 vcc, s50, v42"); A("v_cmp_ne_u32 s[36:37], s51, v43")
        A("s_or_b64 vcc, vcc, s[36:37]"); A("s_cmp_eq_u64 vcc, 0"); A("s_cbranch_scc1 K3_CG")
        A(f"s_sleep {sleep}")
        A("s_sub_u32 s54, s54, 1"); A("s_cmp_lg_u32 s54, 0"); A("s_cbranch_scc1 K3_CP")
        A("K3_CG:")
        xs(5)
    A(f"s_add_u32 s33, s32, {WS_XR}")
    A("s_mov_b32 m0, s31"); A("s_nop 0")
    for i in range(4): A(f"buffer_load_dwordx4 v2, s[4:7], s33 offen offset:{i*1024} {lf} lds")
    A("s_cmp_lg_u32 s28, 0"); A("s_cbranch_scc1 K3_XL0")
    A(f"s_mov_b32 m0, {XB_}"); A(f"s_add_u32 s34, s41, {WS_XR}")
    for i in range(4): A(f"buffer_load_dwordx4 v2, s[4:7], s34 offen offset:{i*1024} {lf} lds")
    A("K3_XL0:")
    A(f"s_add_u32 s34, s41, {WS_QT}"); A("s_lshl_b32 s35, s28, 9"); A("s_add_u32 s34, s34, s35")
    A(f"buffer_load_dwordx2 v[212:213], v10, s[4:7], s34 offen {lf}")
    A(f"s_add_u32 s33, s32, {WS_QT}")
    for w in range(8): A(f"buffer_load_dwordx2 {vr(QR+2*w,2)}, v10, s[4:7], s33 offen offset:{w*512} {lf}")
    NT = 0
    if wpf:
        srd(A, 20, 44, 4096*576*2)
        A("s_sub_u32 s34, s2, 192"); A("s_lshr_b32 s35, s34, 3"); A("s_lshl_b32 s35, s35, 9"); A("s_and_b32 s34, s34, 7"); A("s_lshl_b32 s34, s34, 3")
        A("s_add_u32 s34, s34, s35"); A("s_lshl_b32 s35, s28, 6"); A("s_add_u32 s34, s34, s35"); A("s_mul_i32 s34, s34, 1152")
        A("v_lshlrev_b32 v4, 7, v1"); A("v_min_u32 v216, 896, v4"); A("s_add_u32 s35, s34, 8192")
        A("buffer_load_dword v217, v4, s[20:23], s34 offen sc1"); A("buffer_load_dword v217, v216, s[20:23], s35 offen sc1")
        NT = 2
    A("v_mov_b32 v12, 0"); A("v_mov_b32 v13, 0")
    A("v_lshlrev_b32 v11, 3, v1"); A("v_add_u32 v11, s31, v11")
    A("ds_write_b64 v11, v[12:13] offset:4096")
    A("v_cmp_gt_u32 vcc, 4, v1"); A("s_and_saveexec_b64 s[36:37], vcc")
    A(f"ds_write_b64 v11, v[12:13] offset:{C0}"); A(f"ds_write_b64 v11, v[12:13] offset:{C1}")
    A("s_mov_b64 exec, s[36:37]")
    A("s_cmp_lg_u32 s28, 2"); A("s_cbranch_scc1 K3_XZ")
    A("v_lshlrev_b32 v4, 3, v1"); A(f"v_add_u32 v4, {XB_}, v4")
    A("ds_write_b64 v4, v[12:13] offset:4096")
    A("s_mov_b64 exec, 15")
    A(f"ds_write_b64 v4, v[12:13] offset:{C0}"); A(f"ds_write_b64 v4, v[12:13] offset:{C1}")
    A("s_mov_b64 exec, -1")
    A(f"s_waitcnt vmcnt({8+NT})")
    A(f"v_mov_b32 v4, {XB_}")
    A(f"ds_write_b16 v4, v209 offset:{C1+30}"); A(f"ds_write_b16 v4, v210 offset:{C1+4124}")
    A("K3_XZ:")
    A(f"s_waitcnt vmcnt({8+NT})")
    A("v_mov_b32 v12, s31")
    A(f"ds_write_b16 v12, v6 offset:{C1+30}"); A(f"ds_write_b16 v12, v7 offset:{C1+4124}")
    A("s_waitcnt lgkmcnt(0)"); A("s_barrier")
    xs(6)
    def rds(r):
        b = FS[r % 2]; o = []
        for i in range(8):
            o.append(f"ds_read_b128 {vr(b+32+4*i,4)}, v20 offset:{(7-i)*512+64*r}")
            for hh in range(2):
                of = 16*r + 128*(i % 2) + 2*hh
                o.append(f"ds_read2_b32 {vr(b+4*i+2*hh,2)}, v{16+i//2} offset0:{of} offset1:{of+1}")
        return o
    def mfs(r, CA=CA):
        b = FS[r % 2]; o = []
        for k in range(8):
            for i in range(8-k):
                o.append(m16(vr(CA+4*(i+k),4), vr(b+4*i,4), vr(b+32+4*k,4), "0" if (r == 0 and k == 0) else None))
            if r == 0: o.append(m16(vr(CA+4*k,4), vr(AD,4), vr(b+32+4*k,4)))
        return o
    A.ext(rds(0))
    A("v_lshlrev_b32 v13, 16, v5")
    for k in range(4):
        A(f"v_cmp_eq_u32 s[36:37], {2*k}, v21"); A(f"v_cmp_eq_u32 vcc, {2*k+1}, v21"); A("s_nop 1")
        A(f"v_cndmask_b32 v{AD+k}, 0, v5, s[36:37]"); A(f"v_cndmask_b32 v{AD+k}, v{AD+k}, v13, vcc")
    A("s_cmp_eq_u32 s28, 0"); A("s_cselect_b32 s34, -1, 0"); A("v_and_b32 v208, s34, v208"); A("v_lshlrev_b32 v13, 16, v208")
    for k in range(4):
        A(f"v_cmp_eq_u32 s[36:37], {2*k}, v21"); A(f"v_cmp_eq_u32 vcc, {2*k+1}, v21"); A("s_nop 1")
        A(f"v_cndmask_b32 v{AD+4+k}, 0, v208, s[36:37]"); A(f"v_cndmask_b32 v{AD+4+k}, v{AD+4+k}, v13, vcc")
    A("s_lshl_b32 s34, s28, 6"); A(f"s_add_u32 s34, s34, {XB_}"); A("s_sub_u32 s34, s34, s31")
    for r in range(8):
        A("s_waitcnt lgkmcnt(0)")
        if r == 7:
            for q_ in range(16, 21): A(f"v_add_u32 v{q_}, s34, v{q_}")
        A.ext(weave(mfs(r), rds(r+1) if r < 7 else rds(0)))
    A("s_waitcnt lgkmcnt(0)")
    XA = 136
    A.ext([m.replace(f"{vr(AD,4)}", f"{vr(AD+4,4)}") for m in mfs(0, XA)])
    A("s_waitcnt vmcnt(0)")
    A("s_mov_b32 s34, 0xffff0000")
    A(f"s_add_u32 s35, s31, {C0}"); A("v_add_u32 v11, s35, v10")
    A("s_nop 4")
    for w in range(8):
        a = CA+4*w
        A(f"v_lshlrev_b32 v12, 16, v{QR+2*w}"); A(f"v_and_b32 v13, s34, v{QR+2*w}")
        A(f"v_lshlrev_b32 v4, 16, v{QR+2*w+1}"); A(f"v_and_b32 v5, s34, v{QR+2*w+1}")
        A(f"v_mul_f32 v{a}, v{a}, v12"); A(f"v_mul_f32 v{a+1}, v{a+1}, v13"); A(f"v_mul_f32 v{a+2}, v{a+2}, v4"); A(f"v_mul_f32 v{a+3}, v{a+3}, v5")
        A(f"v_cvt_pk_bf16_f32 v{a}, v{a}, v{a+1}"); A(f"v_cvt_pk_bf16_f32 v{a+1}, v{a+2}, v{a+3}")
        A(f"ds_write_b64 v11, {vr(a,2)} offset:{w*512}")
    A("v_add_u32 v11, s31, v2")
    for w in range(8): A(f"ds_write_b128 v11, {vr(XA+4*w,4)} offset:{(w%4)*1024 + (w//4)*C1}")
    A(f"s_mul_i32 s35, s28, {256*2304}"); A("s_lshl_b32 s34, s29, 4"); A("s_add_u32 s41, s35, 0"); A("s_add_u32 s35, s35, s34")
    A("s_and_b32 s34, s28, 3"); A("s_lshl_b32 s34, s34, 10"); A("s_lshr_b32 s33, s28, 2"); A(f"s_mul_i32 s33, s33, {C1}"); A("s_add_u32 s34, s34, s33")
    A("v_add_u32 v11, s34, v2"); A(f"v_add_u32 v12, {4*CS}, v11")
    A("s_waitcnt lgkmcnt(0)")
    A("s_barrier")
    xs(7)
    for w in range(8): A(f"ds_read_b128 {vr(96+4*w,4)}, v{11 + w//4} offset:{(w%4)*CS}")
    for blk in range(4):
        for hf in range(2): A(f"ds_read_b64_tr_b16 {vr(72+4*blk+2*hf,2)}, v22 offset:{hf*4*CS+blk*128}")
    for blk in range(4):
        A(f"s_waitcnt lgkmcnt({6-2*blk})")
        A(f"buffer_store_dwordx4 {vr(72+4*blk,4)}, v23, s[16:19], s35 offen {cfl}" if not nocst else "s_nop 0")
        A(f"s_add_u32 s35, s35, {64*2304}")
    xs(8)
    for st_ in (16, 8, 4):
        for r in range(st_): A(f"v_add_f32 v{96+r}, v{96+r}, v{96+st_+r}")
    A("s_mov_b32 s34, 0xffff0000")
    A("v_lshlrev_b32 v12, 16, v212"); A("v_and_b32 v13, s34, v212"); A("v_lshlrev_b32 v4, 16, v213"); A("v_and_b32 v5, s34, v213")
    A("v_mul_f32 v96, v96, v12"); A("v_mul_f32 v97, v97, v13"); A("v_mul_f32 v98, v98, v4"); A("v_mul_f32 v99, v99, v5")
    A("v_cvt_pk_bf16_f32 v96, v96, v97"); A("v_cvt_pk_bf16_f32 v97, v98, v99")
    A("v_mul_u32_u24 v12, 1152, v10")
    A("s_lshl_b32 s34, s40, 1"); A("s_add_u32 s41, s41, s34"); A(f"s_add_u32 s34, s41, {2*2304}")
    if not nocst:
        A(f"buffer_store_short v96, v12, s[16:19], s41 offen {cfl}"); A(f"buffer_store_short_d16_hi v96, v12, s[16:19], s41 offen offset:2304 {cfl}")
        A(f"buffer_store_short v97, v12, s[16:19], s34 offen {cfl}"); A(f"buffer_store_short_d16_hi v97, v12, s[16:19], s34 offen offset:2304 {cfl}")
    if stamps: A("s_branch K3_FIN2")
    A("K3_FIN:")
    ST("st_issued")
    A("K3_FIN2:")
    if stamps: A("s_waitcnt vmcnt(0)")
    ST("end"); ST("end_rt", real=True)
    ST.dump(vt=10, st=34, kidx=2)
    A("K3_END:"); A("s_endpgm")
    A(kd(name, 240, 240))
    return ST.names
```

```python
from asmlib import *
from k1 import srd, WS_CTX, WS_PART
from k1b import m16
from ka import WS_XR, WS_QT, NB_IN, CS, C0, C1
STG = 49152
WS_FLAG2 = 124 << 20
WS_FLAG3 = 122 << 20
WS_FLAG5 = 125 << 20
EP = 12

def flag(A, soff):
    A("v_mov_b32 v12, s62"); A("v_mov_b32 v13, s63")
    A("s_mov_b64 exec, 1"); A(f"buffer_store_dwordx2 v[12:13], v14, s[4:7], {soff} offen sc0 sc1"); A("s_mov_b64 exec, -1")

def poll(A, lab, voff, soff, sleep, n=1, stride=0):
    A("s_mov_b32 s61, 0x40000")
    A(f"{lab}:")
    for i in range(n):
        if i: A(f"s_add_u32 s34, {soff}, {i*stride}")
        A(f"buffer_load_dwordx2 v[{16+2*i}:{17+2*i}], v{voff}, s[4:7], {soff if i == 0 else 's34'} offen sc0 sc1")
    A("s_waitcnt vmcnt(0)")
    A("v_cmp_ne_u32 vcc, s62, v16"); A("v_cmp_ne_u32 s[58:59], s63, v17"); A("s_or_b64 vcc, vcc, s[58:59]")
    for i in range(1, n):
        A(f"v_cmp_ne_u32 s[58:59], s62, v{16+2*i}"); A("s_or_b64 vcc, vcc, s[58:59]")
        A(f"v_cmp_ne_u32 s[58:59], s63, v{17+2*i}"); A("s_or_b64 vcc, vcc, s[58:59]")
    A("s_cmp_eq_u64 vcc, 0"); A(f"s_cbranch_scc1 {lab}_G")
    A(f"s_sleep {sleep}")
    A("s_sub_u32 s61, s61, 1"); A("s_cmp_lg_u32 s61, 0"); A(f"s_cbranch_scc1 {lab}")
    A(f"{lab}_G:")

def tail(A, ST, stamps=False, sleep=1, wpf=True, cfl="sc1", inv=False, delay=0, wfl="", vz=False, alone=False, pre=0, zero=False, gpf=True, p1one=True):
    for _ in range(pre): A("s_sleep 127")
    if zero:
        A("s_waitcnt vmcnt(0)"); A("s_setprio 0")
        for r in list(range(3, 22)) + list(range(24, 144)): A(f"v_mov_b32 v{r}, 0")
        for r in range(112): A(f"v_accvgpr_write_b32 a{r}, 0")
        for r in list(range(8, 28)) + list(range(31, 60)): A(f"s_mov_b32 s{r}, 0")
    A("s_load_dwordx4 s[44:47], s[90:91], 88")
    A("s_load_dwordx4 s[52:55], s[90:91], 32")
    A("s_lshl_b32 s60, s30, 3"); A("s_add_u32 s60, s60, s29"); A("s_lshl_b32 s60, s60, 7"); A(f"s_add_u32 s60, s60, {WS_FLAG2}")
    A("s_waitcnt vmcnt(4)")
    A("v_readfirstlane_b32 s62, v22"); A("v_readfirstlane_b32 s63, v23"); A("v_mov_b32 v14, 0")
    def signal():
        A("s_barrier")
        A("s_cmp_lg_u32 s28, 0"); A(f"s_cbranch_scc1 T_NS{signal.n}")
        flag(A, "s60")
        A(f"T_NS{signal.n}:"); signal.n += 1
    signal.n = 0
    A("s_cmp_ge_u32 s2, 192"); A("s_cbranch_scc1 T_CONV")
    A("s_and_b32 s29, s2, 3")
    A("s_lshr_b32 s34, s2, 3"); A("s_and_b32 s30, s34, 7"); A("s_and_b32 s35, s2, 4"); A("s_lshl_b32 s35, s35, 1"); A("s_add_u32 s30, s30, s35")
    A("s_lshr_b32 s31, s34, 3")
    A("s_lshr_b32 s42, s28, 2"); A("s_and_b32 s37, s28, 3")
    A("s_lshl_b32 s34, s30, 2"); A("s_add_u32 s43, s34, s37")
    A("s_lshl_b32 s33, s43, 18"); A("s_lshl_b32 s34, s29, 16"); A("s_add_u32 s33, s33, s34"); A("s_lshl_b32 s34, s42, 15"); A("s_add_u32 s33, s33, s34")
    A(f"s_add_u32 s56, s33, {WS_CTX}"); A("s_add_u32 s57, s56, 4096")
    A("s_mul_i32 s41, s29, 6"); A("s_mov_b32 s36, 2731"); A("s_lshl_b32 s34, s28, 6")
    VD = 3
    for i in range(6):
        A("v_add_u32 v20, s34, v1")
        A("v_mul_u32_u24 v21, s36, v20"); A("v_lshrrev_b32 v21, 16, v21")
        A("v_mul_u32_u24 v22, 24, v21"); A("v_sub_u32 v22, v20, v22")
        A("v_and_b32 v23, 6, v21"); A("v_xor_b32 v22, v22, v23")
        A("v_add_u32 v22, s41, v22"); A("v_subrev_u32 v23, 24, v22"); A("v_min_u32 v22, v22, v23")
        A("v_lshrrev_b32 v19, 6, v21"); A("v_mad_u32_u24 v22, v19, 12, v22"); A("v_subrev_u32 v23, 24, v22"); A("v_min_u32 v22, v22, v23")
        A("v_mul_u32_u24 v23, 448, v19"); A("v_add_u32 v21, v21, v23")
        A("v_mul_u32_u24 v21, 1152, v21")
        A(f"v_lshl_add_u32 v{VD+i}, v22, 4, v21")
        A("s_add_u32 s34, s34, 512")
    A(f"s_mul_i32 s32, s29, {1024*1152}"); A("s_mul_i32 s34, s31, 384"); A("s_add_u32 s32, s32, s34")
    A("s_lshl_b32 s38, s28, 10")
    A("s_waitcnt lgkmcnt(0)")
    srd(A, 8, 44, 4096*576*2)
    CT = [0, 16, 32]; WR = 48; NW = 16; ACC = 48; VA = 24
    def dma(j):
        return [[f"s_add_u32 m0, s38, {(j%3)*STG + i*8192}", f"s_add_u32 s34, s32, {j*64*1152}" if i == 0 else "s_nop 0",
                 f"buffer_load_dwordx4 v{VD+i}, s[8:11], s34 offen {wfl} lds"] for i in range(6)]
    def cload(j):
        g = []
        for a in range(2):
            for k2 in range(2):
                pre = [f"s_add_u32 s35, s{56+a}, {(j//2)*8192}"] if k2 == 0 else []
                g.append(pre + [f"buffer_load_dwordx4 {ar(CT[j%3]+8*a+4*k2,4)}, v2, s[4:7], s35 offen offset:{(2*(j%2)+k2)*1024} {cfl}"])
        return g
    A("s_waitcnt vmcnt(0)")
    signal()
    ST("sig")
    for g in dma(0) + dma(1): A.ext(g)
    if gpf:
        A("s_mul_i32 s34, s2, 24576"); A("s_mul_i32 s35, s28, 3072"); A("s_add_u32 s34, s34, s35")
        A("v_min_u32 v20, 23, v1"); A("v_lshlrev_b32 v20, 7, v20")
        A("buffer_load_dword v15, v20, s[8:11], s34 offen sc1")
    A("v_lshrrev_b32 v20, 2, v1"); A("v_mul_u32_u24 v21, 384, v20"); A("v_and_b32 v20, 6, v20")
    A("v_bfe_u32 v22, v1, 1, 1"); A("v_or_b32 v20, v20, v22")
    A("v_and_b32 v22, 1, v1"); A("v_lshl_add_u32 v21, v22, 3, v21")
    A(f"s_mul_i32 s34, s42, {64*384}"); A("v_add_u32 v21, s34, v21")
    for u in range(4):
        A(f"v_xor_b32 v22, {2*u}, v20"); A(f"v_lshl_add_u32 v{VA+u}, v22, 4, v21")
    for r in range(ACC, ACC+96): A(f"v_mov_b32 v{r}, 0")
    A("s_sub_u32 s34, 15, s30"); A("s_min_u32 s34, s34, s30"); A("s_lshl_b32 s34, s34, 7"); A("s_lshl_b32 s35, s29, 13"); A("s_add_u32 s39, s34, s35"); A(f"s_add_u32 s39, s39, {WS_FLAG2}")
    A("v_and_b32 v20, 7, v1"); A("v_lshlrev_b32 v20, 10, v20")
    if not alone and p1one:
        A("s_cmp_lg_u32 s28, 0"); A("s_cbranch_scc1 T_P1_G")
        poll(A, "T_P1", 20, "s39", sleep)
        A("s_barrier")
    elif not alone: poll(A, "T_P1", 20, "s39", sleep)
    else: A("s_waitcnt vmcnt(0)")
    if inv: A("buffer_inv sc1"); A("s_waitcnt vmcnt(0)")
    for _ in range(delay): A("s_sleep 127")
    ST("ctx_ok")
    for g in cload(0) + cload(1): A.ext(g)
    A("s_waitcnt vmcnt(4)")
    TAIL = 4
    def wf(i): return WR + 4*(i % NW)
    def wr(i):
        k2, t = divmod(i, 12)
        return [f"ds_read_b64_tr_b16 {ar(wf(i)+2*half,2)}, v{VA+4+t%4} offset:{(32*k2+16*half)*384+(t//4)*128}" for half in range(2)]
    def mf(j, i):
        k2, t = divmod(i, 12)
        return [m16(vr(ACC+48*a+4*t,4), ar(wf(i),4), ar(CT[j%3]+8*a+4*k2,4)) for a in range(2)]
    tl = []
    for j in range(8):
        if j: A(f"s_waitcnt vmcnt({10 if (j < 7 and not vz) else 0}) lgkmcnt(0)")
        for u in range(4): A(f"v_add_u32 v{VA+4+u}, {(j%3)*STG}, v{VA+u}")
        A("s_barrier")
        if j == 0: ST("landed")
        first = [x for i in range(4) for x in wr(i)]
        if tl:
            for m, r in zip(tl, first): A(m); A(r)
        else: A.ext(first)
        issued = 4
        while issued < 7: A.ext(wr(issued)); issued += 1
        fill = (cload(j+2) + dma(j+2)) if j+2 < 8 else []
        for i in range(24 - TAIL):
            A(f"s_waitcnt lgkmcnt({min(15, 2*(issued - i - 1))})")
            mm = mf(j, i)
            rr = wr(issued) if issued < 24 else [None, None]
            if issued < 24: issued += 1
            A(mm[0])
            if rr[0]: A(rr[0])
            A(mm[1])
            if rr[1]: A(rr[1])
            if i % 2 == 0 and fill: A.ext(fill.pop(0))
        tl = [m for i in range(24 - TAIL, 24) for m in mf(j, i)]
    A("s_waitcnt lgkmcnt(0)")
    A.ext(tl)
    ST("gemm_done")
    A("s_mul_i32 s34, s28, 12288"); A("v_add_u32 v9, s34, v2")
    A("s_xor_b32 s35, s28, 4"); A("s_mul_i32 s35, s35, 12288"); A("v_add_u32 v10, s35, v2")
    srd(A, 8, 46, 2048*1152*2)
    A("s_barrier")
    snd = [(a_, t) for a_ in range(2) for t in range(6)]
    for i, (a_, t) in enumerate(snd): A(f"ds_write_b128 v9, {vr(ACC+48*a_+4*(t+6),4)} offset:{i*1024}")
    A("s_mul_i32 s39, s30, 3"); A("s_add_u32 s39, s39, s31")
    A(f"s_mul_i32 s50, s39, {16*4*3072}"); A("s_mul_i32 s34, s37, 3072"); A("s_add_u32 s50, s50, s34"); A(f"s_add_u32 s50, s50, {WS_PART}")
    A("s_lshl_b32 s52, s39, 12"); A(f"s_add_u32 s52, s52, {WS_FLAG3}")
    A("s_lshl_b32 s34, s29, 10"); A("s_add_u32 s53, s52, s34"); A("s_lshl_b32 s34, s28, 7"); A("s_add_u32 s53, s53, s34")
    def dest(dexpr):
        A(dexpr); A("s_and_b32 s34, s34, 3"); A("s_lshl_b32 s34, s34, 2"); A("s_add_u32 s34, s34, s29")
        A(f"s_mul_i32 s34, s34, {4*3072}"); A("s_add_u32 s34, s34, s50")
    A("s_lshl_b32 s40, s42, 1"); A("s_add_u32 s40, s40, s29")
    A("s_waitcnt lgkmcnt(0)"); A("s_barrier")
    order = [(a_, t) for t in (3, 4, 5, 0, 1, 2) for a_ in range(2)]
    for (a_, t) in order: A(f"ds_read_b128 {vr(ACC+48*a_+4*(t+6),4)}, v10 offset:{snd.index((a_, t))*1024}")
    for i, (a_, t) in enumerate(order):
        if i == 6: A("s_cmp_eq_u32 s42, 0"); A("s_cbranch_scc1 T_OWN")
        A(f"s_waitcnt lgkmcnt({11 - i})")
        x = ACC + 48*a_ + 4*t; pk = 24 + 2*i
        for r in range(4): A(f"v_add_f32 v{x+r}, v{x+r}, v{x+24+r}")
        A(f"v_cvt_pk_bf16_f32 v{pk}, v{x}, v{x+1}"); A(f"v_cvt_pk_bf16_f32 v{pk+1}, v{x+2}, v{x+3}")
        if i == 0: dest("s_add_u32 s34, s40, 1")
        if i == 6: dest("s_add_u32 s34, s40, 0")
        if a_ == 1: A(f"buffer_store_dwordx4 {vr(pk-2,4)}, v2, s[4:7], s34 offen offset:{(t%3)*1024} sc1")
    A("s_waitcnt vmcnt(0)")
    flag(A, "s53")
    A("s_branch T_FIN")
    A("T_OWN:")
    A("s_waitcnt lgkmcnt(0)")
    for (a_, t) in order[6:]:
        x = ACC + 48*a_ + 4*t
        for r in range(4): A(f"v_add_f32 v{x+r}, v{x+r}, v{x+24+r}")
    A("v_and_b32 v20, 3, v1"); A("v_max_u32 v20, 1, v20"); A("v_sub_u32 v21, s29, v20"); A("v_and_b32 v21, 3, v21"); A("v_lshlrev_b32 v21, 10, v21")
    A("v_lshrrev_b32 v20, 1, v20"); A("v_lshl_add_u32 v20, v20, 9, v21"); A("s_lshl_b32 s34, s37, 7"); A("s_add_u32 s52, s52, s34")
    A("v_and_b32 v10, 15, v1"); A("v_mul_u32_u24 v10, 2304, v10"); A("v_lshrrev_b32 v21, 4, v1"); A("v_lshl_add_u32 v3, v21, 3, v10")
    A(f"s_mul_i32 s54, s43, {32*2304}")
    A("s_mul_i32 s34, s31, 384"); A("s_add_u32 s54, s54, s34"); A("s_mul_i32 s34, s29, 96"); A("s_add_u32 s54, s54, s34"); A("s_add_u32 s54, s54, 1152")
    A(f"s_add_u32 s55, s54, {16*2304}")
    A(f"s_mul_i32 s34, s29, {4*4*3072}"); A("s_add_u32 s50, s50, s34")
    A("s_waitcnt vmcnt(0)")
    ST("sent")
    flag(A, "s53")
    poll(A, "T_P2", 20, "s52", sleep)
    ST("polled")
    RV = [ACC + 24, ACC + 36, ACC + 72]
    for d in range(1, 4):
        A(f"s_add_u32 s34, s29, {d}"); A("s_and_b32 s34, s34, 3"); A(f"s_mul_i32 s34, s34, {4*3072}"); A("s_add_u32 s34, s34, s50")
        for t in range(3): A(f"buffer_load_dwordx4 {vr(RV[d-1]+4*t,4)}, v2, s[4:7], s34 offen offset:{t*1024} sc1")
    A("s_mov_b32 s36, 0xffff0000")
    for d in range(1, 4):
        A(f"s_waitcnt vmcnt({3*(3-d)})")
        for t in range(3):
            for a_ in range(2):
                for h in range(2):
                    y = RV[d-1] + 4*t + 2*a_ + h; x = ACC + 48*a_ + 4*t + 2*h
                    A(f"v_lshlrev_b32 v4, 16, v{y}"); A(f"v_and_b32 v5, s36, v{y}")
                    A(f"v_add_f32 v{x}, v{x}, v4"); A(f"v_add_f32 v{x+1}, v{x+1}, v5")
    for a_ in range(2):
        for t in range(3):
            x = ACC + 48*a_ + 4*t
            A(f"v_cvt_pk_bf16_f32 v{x}, v{x}, v{x+1}"); A(f"v_cvt_pk_bf16_f32 v{x+1}, v{x+2}, v{x+3}")
            A(f"buffer_store_dwordx2 {vr(x,2)}, v3, s[8:11], s{54+a_} offen offset:{t*32}")
    ST("xdone")
    A("s_branch T_FIN")
    A("T_CONV:")
    def xs(nm):
        if stamps and nm in ST.names:
            i = ST.names.index(nm); A(f"s_memtime s[{ST.base+2*i}:{ST.base+2*i+1}]")
    A("s_and_b32 s34, s2, 7"); A("s_mul_i32 s29, s34, 9"); A("s_lshr_b32 s35, s2, 3"); A("s_sub_u32 s35, s35, 24"); A("s_add_u32 s29, s29, s35")
    A("s_mul_i32 s40, s34, 72"); A("s_add_u32 s40, s40, 64"); A("s_add_u32 s40, s40, s35")
    A(f"s_mul_i32 s31, s28, {CS}")
    A("s_lshl_b32 s30, s29, 3"); A("s_add_u32 s30, s30, s28"); A("s_lshl_b32 s32, s30, 12"); A("s_lshl_b32 s41, s40, 12")
    A("v_add_u32 v3, 2, v2")
    A("s_waitcnt lgkmcnt(0)")
    srd(A, 8, 52, NB_IN); srd(A, 12, 54, 1152); srd(A, 16, 46, 2048*1152*2); srd(A, 20, 44, 4096*576*2)
    XB_ = 8*CS
    A("s_waitcnt vmcnt(0)")
    signal()
    xs("sig")
    A("v_lshlrev_b32 v4, 7, v1"); A(f"s_mov_b32 s39, {WS_FLAG5}")
    if not alone:
        A("s_cmp_lg_u32 s28, 7"); A("s_cbranch_scc1 T_P3_G")
        poll(A, "T_P3", 4, "s39", sleep, n=4, stride=8192)
    A(f"s_add_u32 m0, s31, {C0+32}"); A("s_nop 0")
    for i in range(4): A(f"buffer_load_dwordx4 v2, s[8:11], s32 offen offset:{i*1024} lds")
    A(f"s_add_u32 m0, s31, {C1+32}"); A("s_nop 0")
    for i in range(4): A(f"buffer_load_dwordx4 v3, s[8:11], s32 offen offset:{i*1024} lds")
    A("s_cmp_eq_u32 s28, 1"); A("s_cbranch_scc1 T_XL1")
    A("s_cmp_lg_u32 s28, 2"); A("s_cbranch_scc1 T_XL")
    A(f"s_mov_b32 m0, {XB_+C1+32}"); A("s_nop 0")
    for i in range(4): A(f"buffer_load_dwordx4 v3, s[8:11], s41 offen offset:{i*1024} lds")
    A("s_branch T_XL")
    A("T_XL1:")
    A(f"s_mov_b32 m0, {XB_+C0+32}"); A("s_nop 0")
    for i in range(4): A(f"buffer_load_dwordx4 v2, s[8:11], s41 offen offset:{i*1024} lds")
    A("T_XL:")
    QR = 40; CA = 56; XA = 88; AD = 120; X0 = 128
    A("s_lshl_b32 s34, s40, 1")
    A(f"buffer_load_ushort v{X0}, v14, s[12:15], s34 offen"); A(f"buffer_load_ushort v{X0+1}, v14, s[8:11], s41 offen"); A(f"buffer_load_ushort v{X0+2}, v14, s[8:11], s41 offen offset:4094")
    A("s_lshl_b32 s34, s30, 1")
    A("buffer_load_ushort v5, v14, s[12:15], s34 offen"); A("buffer_load_ushort v6, v14, s[8:11], s32 offen"); A("buffer_load_ushort v7, v14, s[8:11], s32 offen offset:4094")
    A("v_and_b32 v8, 15, v1"); A("v_lshrrev_b32 v9, 4, v1")
    A("v_lshlrev_b32 v10, 5, v8"); A("v_lshl_add_u32 v10, v9, 3, v10")
    A("v_and_b32 v24, 1, v8")
    A("v_add_u32 v25, v8, v24"); A("v_lshl_add_u32 v25, v9, 3, v25"); A("v_lshlrev_b32 v25, 1, v25")
    A(f"v_mul_u32_u24 v24, {C1-C0}, v24"); A("v_sub_u32 v25, v25, v24")
    A(f"s_add_u32 s34, s31, {C1}"); A("v_add_u32 v28, s34, v25")
    for i in range(1, 4): A(f"v_add_u32 v{28+i}, {1024*i}, v28")
    A("v_lshlrev_b32 v24, 5, v8"); A("v_lshlrev_b32 v25, 4, v9"); A("v_sub_u32 v25, v25, v24")
    A(f"s_add_u32 s34, s31, {4064-3584}"); A("v_add_u32 v32, s34, v25")
    A("v_lshl_add_u32 v33, v9, 3, v8"); A("v_sub_u32 v33, 15, v33")
    A("v_bfe_u32 v34, v1, 2, 2"); A(f"v_mul_u32_u24 v34, {CS}, v34")
    A("v_lshl_add_u32 v34, v9, 5, v34"); A("v_and_b32 v25, 3, v1"); A("v_lshl_add_u32 v34, v25, 3, v34")
    A("s_lshl_b32 s34, s28, 9"); A(f"s_add_u32 s34, s34, {C0}"); A("v_add_u32 v34, s34, v34")
    A("v_mul_u32_u24 v35, 2304, v1")
    A("v_mov_b32 v24, 0"); A("v_mov_b32 v25, 0")
    A("v_lshlrev_b32 v11, 3, v1"); A("v_add_u32 v11, s31, v11")
    A("ds_write_b64 v11, v[24:25] offset:4096")
    A("s_mov_b64 exec, 15")
    A(f"ds_write_b64 v11, v[24:25] offset:{C0}"); A(f"ds_write_b64 v11, v[24:25] offset:{C1}")
    A("s_mov_b64 exec, -1")
    A("s_cmp_lg_u32 s28, 2"); A("s_cbranch_scc1 T_XZ0")
    A("v_lshlrev_b32 v4, 3, v1"); A(f"v_add_u32 v4, {XB_}, v4")
    A("ds_write_b64 v4, v[24:25] offset:4096")
    A("s_mov_b64 exec, 15")
    A(f"ds_write_b64 v4, v[24:25] offset:{C0}"); A(f"ds_write_b64 v4, v[24:25] offset:{C1}")
    A("s_mov_b64 exec, -1")
    A("T_XZ0:")
    A("s_barrier")
    xs("ctx_ok")
    A(f"s_add_u32 s33, s32, {WS_XR}")
    A("s_mov_b32 m0, s31"); A("s_nop 0")
    for i in range(4): A(f"buffer_load_dwordx4 v2, s[4:7], s33 offen offset:{i*1024} sc1 lds")
    A("s_cmp_lg_u32 s28, 0"); A("s_cbranch_scc1 T_XL0")
    A(f"s_mov_b32 m0, {XB_}"); A(f"s_add_u32 s34, s41, {WS_XR}")
    for i in range(4): A(f"buffer_load_dwordx4 v2, s[4:7], s34 offen offset:{i*1024} sc1 lds")
    A("T_XL0:")
    A(f"s_add_u32 s34, s41, {WS_QT}"); A("s_lshl_b32 s35, s28, 9"); A("s_add_u32 s34, s34, s35")
    A(f"buffer_load_dwordx2 {vr(X0+4,2)}, v10, s[4:7], s34 offen sc1")
    A(f"s_add_u32 s33, s32, {WS_QT}")
    for w in range(8): A(f"buffer_load_dwordx2 {vr(QR+2*w,2)}, v10, s[4:7], s33 offen offset:{w*512} sc1")
    if wpf:
        A("s_sub_u32 s34, s2, 192"); A("s_lshr_b32 s35, s34, 3"); A("s_lshl_b32 s35, s35, 9"); A("s_and_b32 s34, s34, 7"); A("s_lshl_b32 s34, s34, 3")
        A("s_add_u32 s34, s34, s35"); A("s_lshl_b32 s35, s28, 6"); A("s_add_u32 s34, s34, s35"); A("s_mul_i32 s34, s34, 1152")
        A("v_lshlrev_b32 v4, 7, v1"); A("v_min_u32 v15, 896, v4"); A("s_add_u32 s35, s34, 8192")
        A(f"buffer_load_dword v{X0+3}, v4, s[20:23], s34 offen sc1"); A(f"buffer_load_dword v{X0+3}, v15, s[20:23], s35 offen sc1")
    A(f"s_waitcnt vmcnt({9 + (2 if wpf else 0)})")
    A("v_mov_b32 v24, s31")
    A(f"ds_write_b16 v24, v6 offset:{C1+30}"); A(f"ds_write_b16 v24, v7 offset:{C1+4124}")
    A("s_cmp_lg_u32 s28, 2"); A("s_cbranch_scc1 T_XZ")
    A(f"v_mov_b32 v4, {XB_}")
    A(f"ds_write_b16 v4, v{X0+1} offset:{C1+30}"); A(f"ds_write_b16 v4, v{X0+2} offset:{C1+4124}")
    A("T_XZ:")
    A("v_lshlrev_b32 v25, 16, v5")
    for k in range(4):
        A(f"v_cmp_eq_u32 s[36:37], {2*k}, v33"); A(f"v_cmp_eq_u32 vcc, {2*k+1}, v33"); A("s_nop 1")
        A(f"v_cndmask_b32 v{AD+k}, 0, v5, s[36:37]"); A(f"v_cndmask_b32 v{AD+k}, v{AD+k}, v25, vcc")
    A("s_cmp_eq_u32 s28, 0"); A("s_cselect_b32 s34, -1, 0"); A(f"v_and_b32 v{X0}, s34, v{X0}"); A(f"v_lshlrev_b32 v25, 16, v{X0}")
    for k in range(4):
        A(f"v_cmp_eq_u32 s[36:37], {2*k}, v33"); A(f"v_cmp_eq_u32 vcc, {2*k+1}, v33"); A("s_nop 1")
        A(f"v_cndmask_b32 v{AD+4+k}, 0, v{X0}, s[36:37]"); A(f"v_cndmask_b32 v{AD+4+k}, v{AD+4+k}, v25, vcc")
    A("s_waitcnt lgkmcnt(0)"); A("s_barrier")
    xs("landed")
    def fr(s_, i, n=4, o=0):
        idx = 64*s_ + 4*i
        if idx < 112: return ar(idx + o, n)
        return vr([136, 140, 16, 20][(idx - 112)//4] + o, n)
    def rds(r):
        o = []
        for i in range(8):
            o.append(f"ds_read_b128 {fr(r%2, 8+i)}, v32 offset:{(7-i)*512+64*r}")
            for hh in range(2):
                of = 16*r + 128*(i % 2) + 2*hh
                o.append(f"ds_read2_b32 {fr(r%2, i, 2, 2*hh)}, v{28+i//2} offset0:{of} offset1:{of+1}")
        return o
    def mfs(r, C_=CA, D_=AD):
        o = []
        for k in range(8):
            for i in range(8-k):
                o.append(m16(vr(C_+4*(i+k),4), fr(r%2, i), fr(r%2, 8+k), "0" if (r == 0 and k == 0) else None))
            if r == 0: o.append(m16(vr(C_+4*k,4), vr(D_,4), fr(0, 8+k)))
        return o
    A.ext(rds(0))
    A("s_lshl_b32 s34, s28, 6"); A(f"s_add_u32 s34, s34, {XB_}"); A("s_sub_u32 s34, s34, s31")
    for r in range(8):
        A("s_waitcnt lgkmcnt(0)")
        if r == 7:
            for q_ in range(28, 33): A(f"v_add_u32 v{q_}, s34, v{q_}")
        A.ext(weave(mfs(r), rds(r+1) if r < 7 else rds(0)))
    A("s_waitcnt lgkmcnt(0)")
    A.ext(mfs(0, XA, AD+4))
    xs("gemm_done")
    A(f"s_waitcnt vmcnt({2 if wpf else 0})")
    A("s_mov_b32 s34, 0xffff0000")
    A(f"s_add_u32 s35, s31, {C0}"); A("v_add_u32 v11, s35, v10")
    for w in range(8):
        a = CA+4*w
        A(f"v_lshlrev_b32 v24, 16, v{QR+2*w}"); A(f"v_and_b32 v25, s34, v{QR+2*w}")
        A(f"v_lshlrev_b32 v4, 16, v{QR+2*w+1}"); A(f"v_and_b32 v5, s34, v{QR+2*w+1}")
        A(f"v_mul_f32 v{a}, v{a}, v24"); A(f"v_mul_f32 v{a+1}, v{a+1}, v25"); A(f"v_mul_f32 v{a+2}, v{a+2}, v4"); A(f"v_mul_f32 v{a+3}, v{a+3}, v5")
        A(f"v_cvt_pk_bf16_f32 v{a}, v{a}, v{a+1}"); A(f"v_cvt_pk_bf16_f32 v{a+1}, v{a+2}, v{a+3}")
        A(f"ds_write_b64 v11, {vr(a,2)} offset:{w*512}")
    A("v_add_u32 v11, s31, v2")
    for w in range(8): A(f"ds_write_b128 v11, {vr(XA+4*w,4)} offset:{(w%4)*1024 + (w//4)*C1}")
    A(f"s_mul_i32 s41, s28, {256*2304}"); A("s_lshl_b32 s34, s29, 4"); A("s_add_u32 s35, s41, s34")
    A("s_and_b32 s34, s28, 3"); A("s_lshl_b32 s34, s34, 10"); A("s_lshr_b32 s33, s28, 2"); A(f"s_mul_i32 s33, s33, {C1}"); A("s_add_u32 s34, s34, s33")
    A("v_add_u32 v11, s34, v2"); A(f"v_add_u32 v15, {4*CS}, v11")
    xs("sent")
    A("s_waitcnt lgkmcnt(0)"); A("s_barrier")
    xs("polled")
    for w in range(8): A(f"ds_read_b128 {vr(XA+4*w,4)}, v{11 if w < 4 else 15} offset:{(w%4)*CS}")
    for blk in range(4):
        for hf in range(2): A(f"ds_read_b64_tr_b16 {vr(CA+4*blk+2*hf,2)}, v34 offset:{hf*4*CS+blk*128}")
    for blk in range(4):
        A(f"s_waitcnt lgkmcnt({6-2*blk})")
        A(f"buffer_store_dwordx4 {vr(CA+4*blk,4)}, v35, s[16:19], s35 offen")
        A(f"s_add_u32 s35, s35, {64*2304}")
    for st_ in (16, 8, 4):
        for r in range(st_): A(f"v_add_f32 v{XA+r}, v{XA+r}, v{XA+st_+r}")
    A("s_mov_b32 s34, 0xffff0000")
    A(f"v_lshlrev_b32 v24, 16, v{X0+4}"); A(f"v_and_b32 v25, s34, v{X0+4}"); A(f"v_lshlrev_b32 v4, 16, v{X0+5}"); A(f"v_and_b32 v5, s34, v{X0+5}")
    A(f"v_mul_f32 v{XA}, v{XA}, v24"); A(f"v_mul_f32 v{XA+1}, v{XA+1}, v25"); A(f"v_mul_f32 v{XA+2}, v{XA+2}, v4"); A(f"v_mul_f32 v{XA+3}, v{XA+3}, v5")
    A(f"v_cvt_pk_bf16_f32 v{XA}, v{XA}, v{XA+1}"); A(f"v_cvt_pk_bf16_f32 v{XA+1}, v{XA+2}, v{XA+3}")
    A("v_mul_u32_u24 v24, 1152, v10")
    A("s_lshl_b32 s34, s40, 1"); A("s_add_u32 s41, s41, s34"); A(f"s_add_u32 s34, s41, {2*2304}")
    A(f"buffer_store_short v{XA}, v24, s[16:19], s41 offen"); A(f"buffer_store_short_d16_hi v{XA}, v24, s[16:19], s41 offen offset:2304")
    A(f"buffer_store_short v{XA+1}, v24, s[16:19], s34 offen"); A(f"buffer_store_short_d16_hi v{XA+1}, v24, s[16:19], s34 offen offset:2304")
    xs("xdone")
    A("T_FIN:")

def k3alone(A, name="k3_kernel"):
    A(khead(name))
    ST = Stamps(A, False)
    A("s_cmp_ge_u32 s2, 256"); A("s_cbranch_scc1 K3_END")
    A("s_load_dwordx2 s[48:49], s[0:1], 112"); A("s_mov_b32 s90, s0"); A("s_mov_b32 s91, s1")
    A("v_lshrrev_b32 v10, 6, v0"); A("v_and_b32 v1, 63, v0"); A("v_readfirstlane_b32 s28, v10"); A("v_lshlrev_b32 v2, 4, v1")
    A("s_mov_b32 s29, 0"); A("s_mov_b32 s30, 0")
    A("s_waitcnt lgkmcnt(0)")
    srd(A, 4, 48, 1 << 28)
    A(f"s_mov_b32 s34, {121 << 20}"); A("v_mov_b32 v22, 0")
    A("buffer_load_dwordx2 v[22:23], v22, s[4:7], s34 offen"); A("s_waitcnt vmcnt(0)")
    tail(A, ST, alone=True)
    A("K3_END:"); A("s_endpgm")
    A(kd(name, 256, 144))
```

```python
import sys
from asmlib import *
import k1 as K1
import k1b as K1B
import k2c as K2
import k3 as K3
import f1 as F1
import k3c as K3B
import ka as KA
def header(launches):
    ref = open("concat_heads__ssm_conv_h3__compressed_kv_cla__prompt.s.ref").read().split("\n")
    hdr = []
    for l in ref:
        if l.startswith("; Override") : break
        hdr.append(l)
    return "\n".join(hdr) + "\n" + "\n".join(launches) + '\n.amdgcn_target "amdgcn-amd-amdhsa--gfx950"\n.text\n'
META = {}
def build(which="all", **opt):
    def o(k):
        d = dict(opt.get(k, {}))
        if opt.get("stamps"): d["stamps"] = True
        return d
    A = Asm()
    launches = []
    if opt.get("fused", True):
        launches.append("; @launch kernel=f1_kernel grid=(256,1,1) block=(512,1,1) lds=163840")
        META['f1'] = (0, F1.f1(A, **o('f1')), 256)
    else:
        launches.append("; @launch kernel=k1_kernel grid=(256,1,1) block=(512,1,1) lds=131072")
        SH = opt.get("SH", 16)
        META['k1'] = (0, (K1B if SH == 16 else K1).k1(A, **o('k1')), 256)
        launches.append("; @launch kernel=k2_kernel grid=(256,1,1) block=(512,1,1) lds=139264")
        META['k2'] = (1, K2.k2(A, SH=SH, **o('k2')), 256)
    if opt.get("f1", {}).get("fuse", True):
        pass
    elif opt.get("alone"):
        import k3d
        launches.append("; @launch kernel=k3_kernel grid=(256,1,1) block=(512,1,1) lds=163840")
        k3d.k3alone(A)
    elif opt.get("k3b", True):
        if opt.get("ka1", False):
            launches.insert(0, "; @launch kernel=ka1_kernel grid=(72,1,1) block=(256,1,1) lds=0")
            KA.ka1(A)
        launches.append("; @launch kernel=k3_kernel grid=(256,1,1) block=(512,1,1) lds=147456")
        META['k3'] = (2, K3B.k3(A, **o('k3')), 256)
    else:
        launches.append("; @launch kernel=k3_kernel grid=(256,1,1) block=(512,1,1) lds=110592")
        META['k3'] = (2, K3.k3(A, **o('k3')), 256)
        launches.append("; @launch kernel=k4_kernel grid=(256,1,1) block=(512,1,1) lds=0")
        K3.k4(A)
        launches.append("; @launch kernel=ka1_kernel grid=(72,1,1) block=(256,1,1) lds=0")
        KA.ka1(A)
        launches.append("; @launch kernel=ka2_kernel grid=(72,1,1) block=(512,1,1) lds=103936")
        META['ka2'] = (5, KA.ka2(A, **o('ka2')), 72)
    txt = header(launches) + A.text()
    if len(launches) == 1:
        N = "concat_heads__ssm_conv_h3__compressed_kv_cla__prompt_kernel"
        if opt.get("single", False):
            txt = txt.replace("; @launch kernel=f1_kernel ", "; @launch ")
        txt = txt.replace("f1_kernel", N)
    return txt
if __name__ == "__main__":
    out = sys.argv[1] if len(sys.argv) > 1 else "dev.s"
    import json
    opt = json.loads(sys.argv[2]) if len(sys.argv) > 2 else {}
    open(out, "w").write(build(**opt))
    json.dump({k: v for k, v in META.items() if v[1]}, open(out + ".json", "w"))
```

```python
from asmlib import *
from k1 import srd, WS_KV, WS_Q, WS_CTX, f32bits, QSCALE
from k1b import m16
import k2c
import k3d
from ka import WS_XR, WS_QT, NB_IN
WS_FLAG = 120 << 20
WS_EPOCH = 121 << 20

def code_touch(A, lab, nbytes, dst, t0, sp=60):
    n = (nbytes + 127) // 128 if isinstance(nbytes, int) else None
    u = lab + "_ct%d" % t0
    A(f"s_getpc_b64 s[{sp}:{sp+1}]")
    A(f"{u}:")
    A(f"s_add_u32 s{sp}, s{sp}, {lab}-{u}")
    A(f"s_addc_u32 s{sp+1}, s{sp+1}, 0")
    A(f"v_lshlrev_b32 v{t0}, 7, v0")
    A(f"v_min_u32 v{t0}, {nbytes}, v{t0}")
    A(f"v_mov_b32 v{t0+1}, s{sp+1}")
    A(f"v_add_co_u32 v{t0}, vcc, s{sp}, v{t0}")
    A("s_nop 1")
    A(f"v_addc_co_u32 v{t0+1}, vcc, 0, v{t0+1}, vcc")
    A(f"global_load_dword v{dst}, v[{t0}:{t0+1}], off")

def f1(A, name="f1_kernel", st_flags="sc1", stamps=False, pf=3, cpf=3, sleep=2, attn_kw={}, ctx_flags="sc1", ahead=2, xn=6, kvpf=3, tfl="sc1", inv=False, sched=1, gtrace=False, kvfront=8, late_pf=True, s1=True, s1pf=True, nost=0, outpf=False, s1t=False, g0t=False, fuse=True, tail_kw={"wpf": False, "gpf": False}, sset="late", wnt=True, wdnt=True, s1nt=False, hip=True):
    A(khead(name))
    ST = Stamps(A, stamps, base=64, srd=4, wave="s28")
    if fuse: ST.skip = ({"first_landed", "stores_done", "k0_landed", "st_issued", "kv_done", "q_done"} if sset == "late" else
                        {"sig", "ctx_ok", "landed", "gemm_done", "sent", "polled", "xdone"})
    A("s_cmp_ge_u32 s2, 256")
    A("s_cbranch_scc1 F1_END")
    ST("start_rt", real=True); ST("start")
    A("s_load_dwordx4 s[44:47], s[0:1], 48")
    A("s_load_dwordx4 s[48:51], s[0:1], 64")
    A("s_load_dwordx2 s[52:53], s[0:1], 80")
    A("s_load_dwordx4 s[56:59], s[0:1], 104")
    A("s_mov_b32 s90, s0"); A("s_mov_b32 s91, s1")
    A("v_lshrrev_b32 v12, 6, v0")
    A("v_and_b32 v1, 63, v0")
    A("v_readfirstlane_b32 s28, v12")
    npre = 0
    if cpf:
        code_touch(A, "F1_CODE0", "F1_END-F1_CODE0", 15, 12); npre = 0
    A("s_lshr_b32 s29, s2, 3"); A("s_and_b32 s29, s29, 7")
    A("s_and_b32 s34, s2, 7"); A("s_lshl_b32 s34, s34, 2"); A("s_lshr_b32 s35, s2, 6"); A("s_add_u32 s30, s34, s35")
    A("s_and_b32 s37, s28, 3")
    A("v_lshrrev_b32 v12, 3, v1")
    A("s_lshl_b32 s34, s37, 3")
    A("v_add_u32 v12, s34, v12")
    A("v_lshrrev_b32 v13, 4, v1")
    A("s_and_b32 s34, s28, 1")
    A("s_lshl_b32 s34, s34, 2")
    A("v_add_u32 v14, s34, v13")
    A("v_and_b32 v10, 7, v1")
    A("v_xor_b32 v14, v14, v10")
    A("v_lshlrev_b32 v14, 4, v14")
    A("v_lshl_add_u32 v2, v12, 10, v14")
    A("v_mul_u32_u24 v3, 1152, v12")
    A("v_add_u32 v3, v3, v14")
    A("s_lshl_b32 s34, s37, 2")
    A("v_add_u32 v12, s34, v13")
    A("v_lshlrev_b32 v12, 13, v12")
    A("s_and_b32 s34, s28, 2")
    A("s_lshl_b32 s34, s34, 1")
    A("v_add_u32 v14, s34, v13")
    A("v_lshlrev_b32 v14, 1, v14")
    A("v_and_b32 v10, 15, v1")
    A("v_xor_b32 v14, v14, v10")
    A("v_lshl_add_u32 v4, v14, 4, v12")
    A("s_lshl_b32 s34, s30, 8")
    A("v_add_u32 v4, s34, v4")
    A("s_lshl_b32 s31, s37, 10")
    A("s_lshl_b32 s32, s29, 18")
    A("s_mov_b32 s33, 0")
    A("s_waitcnt lgkmcnt(0)")
    C, X, UK, UV, WQ, WSS = "s[8:11]", "s[12:15]", "s[16:19]", "s[20:23]", "s[24:27]", "s[4:7]"
    srd(A, 8, 46, 2048*512*2); srd(A, 16, 50, 512*4096*2); srd(A, 20, 52, 512*4096*2)
    WD = "nt" if wdnt else ""
    adv = ["s_add_u32 s32, s32, 128", f"s_add_u32 s33, s33, {64*8192}", "s_xor_b32 s31, s31, 0x10000"]
    def dma_kv(part=None):
        g = []
        for i in range(4):
            g.append([f"s_add_u32 m0, s31, {32768+i*4096}", f"s_add_u32 s34, s33, {i*16*8192}", f"buffer_load_dwordx4 v4, {UK}, s34 offen {WD} lds"])
            g.append([f"s_add_u32 m0, s31, {49152+i*4096}", "s_nop 0", f"buffer_load_dwordx4 v4, {UV}, s34 offen {WD} lds"])
        for i in range(8):
            g.append([f"s_add_u32 m0, s31, {i*4096}", f"s_add_u32 s34, s32, {i*32768}", f"buffer_load_dwordx4 v2, {C}, s34 offen lds"])
        if part is not None: return g[8*part:8*part+8]
        g[-1] = g[-1] + adv
        return g
    SA = [0, 0x20000, 0x10000]; SW = [0x8000, 0xC000, 0x18000]
    def dma_q(j):
        g = []
        for i in range(4):
            g.append([f"s_add_u32 m0, s31, {SW[j%3]+i*4096}", f"s_mov_b32 s34, {(j*64+i*16)*8192}", f"buffer_load_dwordx4 v4, {WQ}, s34 offen lds"])
        for i in range(8):
            g.append([f"s_add_u32 m0, s31, {SA[j%3]+i*4096}", f"s_add_u32 s34, {'s32' if i < 4 else 's36'}, {(i%4)*32*1152 + j*128}", f"buffer_load_dwordx4 v3, {X}, s34 offen lds"])
        return g
    A("s_cmp_ge_u32 s28, 4"); A("s_cbranch_scc1 F1_I1")
    for g in dma_kv(0): A.ext(g)
    A("s_branch F1_I2")
    A("F1_I1:")
    for g in dma_kv(1): A.ext(g)
    A("F1_I2:")
    A.ext(adv)
    srd(A, 12, 44, 2048*576*2); srd(A, 24, 48, 576*4096*2); srd(A, 4, 58, 1 << 28)
    A("s_or_b32 s34, s2, s28"); A("s_cmp_lg_u32 s34, 0"); A("s_cbranch_scc1 F1_NOEP")
    A("s_memrealtime s[98:99]")
    srd(A, 60, 56, 256)
    A("s_waitcnt lgkmcnt(0)")
    A("s_or_b32 s98, s98, 1")
    A("v_mov_b32 v12, s98"); A("v_mov_b32 v13, s99"); A("v_mov_b32 v14, 0"); A(f"s_mov_b32 s34, {WS_EPOCH}")
    A("s_mov_b64 exec, 1")
    A("buffer_store_dwordx2 v[12:13], v14, s[60:63], 0 offen sc0 sc1")
    A("buffer_store_dwordx2 v[12:13], v14, s[4:7], s34 offen")
    A("s_mov_b64 exec, -1")
    A("v_lshrrev_b32 v13, 4, v1")
    A("F1_NOEP:")
    npf = 0
    touch = []
    if pf == 2:
        A("s_cmp_lt_u32 s28, 4"); A("s_cbranch_scc1 F1_PFD")
        A("v_lshlrev_b32 v9, 7, v1")
        plan = [[(C, 8192, 0), (X, 9216, 0), (X, 9216, 1)], [(UK, 16384, 0), (UK, 16384, 1), (WQ, 18432, 2)],
                [(UV, 16384, 0), (UV, 16384, 1), (UV, 16384, 1)], [(WQ, 18432, 0), (WQ, 18432, 1), (WQ, 18432, 1)]]
        for w in range(4):
            if w < 3: A(f"s_cmp_lg_u32 s37, {w}"); A(f"s_cbranch_scc1 F1_PF{w+1}")
            for (sd, share, k) in plan[w]:
                A(f"s_mul_i32 s34, s2, {share}"); A(f"s_add_u32 s34, s34, {k*8192}")
                A(f"buffer_load_dword v15, v9, {sd}, s34 offen {tfl}")
            A("s_branch F1_PFE")
            if w < 3: A(f"F1_PF{w+1}:")
        A("F1_PFD:")
        A("s_nop 0")
        A("F1_PFE:")
        npf = 3
    elif pf == 3:
        TS = 92
        A(f"s_mov_b32 s{TS+3}, 0x20000")
        A("s_cmp_eq_u32 s37, 3"); A("s_cbranch_scc1 F1_PFQ")
        A("s_cmp_eq_u32 s37, 0"); A("s_cbranch_scc0 F1_PFW")
        A("v_lshlrev_b32 v9, 7, v1"); A("s_lshl_b32 s34, s2, 13")
        A("s_cmp_lt_u32 s28, 4"); A("s_cbranch_scc1 F1_PFC")
        A(f"buffer_load_dword v15, v9, {C}, s34 offen {tfl}")
        A("F1_PFC:")
        A(f"s_mov_b32 s{TS}, s44"); A(f"s_mov_b32 s{TS+1}, s45"); A(f"s_mov_b32 s{TS+2}, {2048*576*2}")
        A(f"v_min_u32 v9, {72//xn - 1}, v1"); A("v_lshlrev_b32 v9, 7, v9"); A("s_mul_i32 s96, s2, 9216"); A(f"s_mov_b32 s97, {9216//xn}")
        A("s_branch F1_PFD")
        if wnt:
            A("F1_PFW:")
            A("s_cmp_eq_u32 s37, 1"); A(f"s_cselect_b32 s{TS}, s50, s52"); A(f"s_cselect_b32 s{TS+1}, s51, s53"); A(f"s_mov_b32 s{TS+2}, {512*4096*2}")
            A("s_lshr_b32 s35, s2, 3"); A("s_and_b32 s36, s2, 7"); A("s_lshl_b32 s36, s36, 10"); A("s_lshl_b32 s96, s35, 14"); A("s_add_u32 s96, s96, s36")
            A("v_bfe_u32 v14, v1, 3, 1"); A("v_and_b32 v12, 7, v1"); A("v_lshlrev_b32 v12, 7, v12"); A("v_lshl_add_u32 v9, v14, 13, v12")
            A("v_lshrrev_b32 v14, 4, v1"); A(f"v_min_u32 v14, {ahead-2}, v14"); A("v_lshl_add_u32 v12, v14, 19, v9"); A(f"s_add_u32 s34, s96, {64*8192}")
            A("s_cmp_lt_u32 s28, 4"); A("s_cbranch_scc1 F1_PFW2")
            A(f"buffer_load_dword v15, v12, s[{TS}:{TS+3}], s34 offen nt")
            A("F1_PFW2:")
            A(f"s_add_u32 s96, s96, {64*8192*ahead}"); A(f"s_mov_b32 s97, {64*8192}")
            A("s_branch F1_PFD")
            A("F1_PFQ:")
            A(f"s_mov_b32 s{TS}, s48"); A(f"s_mov_b32 s{TS+1}, s49"); A(f"s_mov_b32 s{TS+2}, {576*4096*2}")
            A(f"v_min_u32 v9, {144//xn - 1}, v1"); A("v_lshlrev_b32 v9, 7, v9"); A(f"s_mul_i32 s96, s2, {18432//xn}"); A(f"s_mov_b32 s97, {576*8192//xn}")
            A("s_cmp_lt_u32 s28, 4"); A("s_cbranch_scc1 F1_PFD")
            A(f"buffer_load_dword v15, v9, s[{TS}:{TS+3}], s96 offen {tfl}")
        else:
            A("F1_PFW:")
            A("s_cmp_eq_u32 s37, 1"); A(f"s_cselect_b32 s{TS}, s50, s52"); A(f"s_cselect_b32 s{TS+1}, s51, s53"); A(f"s_mov_b32 s{TS+2}, {512*4096*2}")
            A(f"v_min_u32 v9, {16*(ahead-1)-1}, v1"); A("v_lshlrev_b32 v9, 7, v9"); A(f"s_mul_i32 s34, s2, {2048*(ahead-1)}"); A(f"s_add_u32 s34, s34, {64*8192}")
            A("s_cmp_lt_u32 s28, 4"); A("s_cbranch_scc1 F1_PFW2")
            A(f"buffer_load_dword v15, v9, s[{TS}:{TS+3}], s34 offen {tfl}")
            A("F1_PFW2:")
            A("v_min_u32 v9, 15, v1"); A("v_lshlrev_b32 v9, 7, v9"); A("s_lshl_b32 s96, s2, 11"); A(f"s_add_u32 s96, s96, {64*8192*ahead}"); A(f"s_mov_b32 s97, {64*8192}")
            A("s_branch F1_PFD")
            A("F1_PFQ:")
            A(f"s_mov_b32 s{TS}, s48"); A(f"s_mov_b32 s{TS+1}, s49"); A(f"s_mov_b32 s{TS+2}, {576*4096*2}")
            A(f"v_min_u32 v9, {144//xn//16*16//16*16//16 if False else 0}, v1") if False else None
            A(f"v_min_u32 v9, {144//xn - 1}, v1"); A("v_lshlrev_b32 v9, 7, v9"); A(f"s_mul_i32 s96, s2, {18432//xn}"); A(f"s_mov_b32 s97, {576*8192//xn}")
            A("s_cmp_lt_u32 s28, 4"); A("s_cbranch_scc1 F1_PFD")
            A(f"buffer_load_dword v15, v9, s[{TS}:{TS+3}], s96 offen {tfl}")
        A("F1_PFD:")
        touch = [[f"buffer_load_dword v15, v9, s[{TS}:{TS+3}], s96 offen {tfl}", "s_add_u32 s96, s96, s97"]]
        if wnt:
            touch = [["s_sub_u32 s34, s37, 1", "s_cmp_gt_u32 s34, 1", "s_cbranch_scc1 F1_TX", f"buffer_load_dword v15, v9, s[{TS}:{TS+3}], s96 offen nt", "s_branch F1_TY", "F1_TX:",
                      f"buffer_load_dword v15, v9, s[{TS}:{TS+3}], s96 offen {tfl}", "F1_TY:", "s_add_u32 s96, s96, s97"]]
        npf = 1
    A("v_and_b32 v12, 15, v1"); A("v_lshlrev_b32 v12, 7, v12")
    A("s_lshr_b32 s34, s28, 2"); A("s_lshl_b32 s34, s34, 14"); A("v_add_u32 v12, s34, v12")
    A("v_bfe_u32 v14, v1, 1, 3"); A("v_xor_b32 v14, v14, v13")
    for ks in range(2):
        A(f"v_xor_b32 v11, {4*ks}, v14"); A(f"v_lshl_add_u32 v{5+ks}, v11, 4, v12")
    def addrW(dst, nb_sgpr2):
        A("v_bfe_u32 v12, v1, 2, 2"); A("v_lshl_add_u32 v14, v13, 3, v12"); A("v_lshlrev_b32 v14, 8, v14")
        A("v_and_b32 v8, 1, v13"); A("v_lshl_add_u32 v12, v8, 2, v12"); A("v_lshlrev_b32 v12, 1, v12")
        A(f"v_xor_b32 v12, {nb_sgpr2}, v12"); A("v_lshl_add_u32 v14, v12, 4, v14")
        A("v_and_b32 v12, 3, v1"); A(f"v_lshl_add_u32 v{dst}, v12, 3, v14")
    A("s_lshl_b32 s38, s37, 2")
    addrW(7, "s38")
    A("v_xor_b32 v8, 32, v7")
    A("v_lshlrev_b32 v11, 4, v1")
    for r in range(16, 144): A(f"v_mov_b32 v{r}, 0")
    for r in range(0, 112): A(f"v_accvgpr_write_b32 a{r}, 0")
    WS_ = [64, 80]; RING = 96; R = 4
    def accK(T, kb): return 32*T + 4*kb
    def accV(T, kb): return 16 + 4*(2*kb + T)
    def accQ(nb, qb): return 80 + 16*qb + 4*nb
    def wreads_kv(ks):
        b = WS_[ks]
        return [f"ds_read_b64_tr_b16 {ar(b+8*mat+4*nb+2*half,2)}, v{7+nb} offset:{32768+16384*mat+(32*ks+4*half)*256}"
                for mat in range(2) for nb in range(2) for half in range(2)]
    def c_read(i):
        ks, kb = divmod(i, 8)
        return f"ds_read_b128 {ar(RING+4*(i%R),4)}, v{5+ks} offset:{kb*2048}"
    def c_mf(i):
        ks, kb = divmod(i, 8); b = WS_[ks]; f = ar(RING+4*(i%R),4)
        return [m16(ar(accK(0,kb),4), ar(b,4), f), m16(ar(accK(1,kb),4), ar(b+4,4), f),
                m16(vr(accV(0,kb),4), f, ar(b+8,4)), m16(vr(accV(1,kb),4), f, ar(b+12,4))]
    TAIL = 2
    def step(nitems, per_ks, wreads, rdf, mff, prev_tail, dma, extra, toggle, first_wait, entry=None, front=99):
        A(first_wait)
        if entry: A(entry)
        if gtrace:
            A("s_memtime s[100:101]")
        A("s_barrier")
        if gtrace:
            A("s_memtime s[88:89]"); A("s_waitcnt lgkmcnt(0)"); A("v_mov_b32 v14, 0"); A("v_mov_b32 v12, s100"); A("v_mov_b32 v13, s88")
            A("buffer_store_dwordx2 v[12:13], v14, s[4:7], s87 offen"); A("s_add_u32 s87, s87, 8")
        q = []
        def issue(instrs, tag):
            for x in instrs: A(x); q.append(tag)
        def wait_for(tags):
            last = max(i for i, t in enumerate(q) if t in tags)
            A(f"s_waitcnt lgkmcnt({min(len(q) - 1 - last, 15)})")
        if sched == 0:
            issue(wreads(0), "w0")
            nxt = 0
            while nxt < R - TAIL:
                issue([rdf(nxt)], nxt); nxt += 1
            half = len(prev_tail) // TAIL
            dq = list(dma)
            for t in range(TAIL):
                take = dq[:(len(dma)+TAIL-1)//TAIL]; dq = dq[len(take):]
                A.ext(weave(prev_tail[t*half:(t+1)*half], take))
                issue([rdf(nxt)], nxt); nxt += 1
            fill = []
        else:
            rl = [(x, "w0") for x in wreads(0)]
            rl = rl[:4] + [(rdf(0), 0)] + rl[4:] + [(rdf(1), 1)]
            nxt = 2
            n = len(prev_tail)
            for t, m in enumerate(prev_tail):
                A(m)
                k = 2 if t < 2 else 1
                for _ in range(k):
                    if rl: x, tag = rl.pop(0); issue([x], tag)
                if t == n//2 - 1 or t == n - 1:
                    while t == n - 1 and rl: x, tag = rl.pop(0); issue([x], tag)
                    issue([rdf(nxt)], nxt); nxt += 1
            fill = list(dma)
        ex = fill + list(extra)
        w1 = wreads(1)
        nslots = nitems - TAIL
        for i in range(nitems - TAIL):
            wait_for({i, f"w{i // per_ks}"})
            mm = mff(i)
            if sched == 0:
                A.ext(mm)
                if nxt < nitems:
                    issue([rdf(nxt)], nxt); nxt += 1
                if i == 1: issue(w1, "w1")
                if ex and i >= 2: A.ext(ex.pop(0))
            else:
                nw = min(len(w1), -(-8 // max(per_ks - 2, 1))) if i < per_ks - 1 else len(w1)
                ne = -(-len(ex) // max(min(nslots, front) - i, 1))
                A(mm[0])
                issue(w1[:(nw+1)//2], "w1")
                A(mm[1])
                issue(w1[(nw+1)//2:nw], "w1"); w1 = w1[nw:]
                A(mm[2])
                if ne: A.ext(ex.pop(0))
                A(mm[3])
                if nxt < nitems:
                    issue([rdf(nxt)], nxt); nxt += 1
                for _ in range(ne - 1): A.ext(ex.pop(0))
        for e in ex: A.ext(e)
        A.ext(toggle)
        return [m for i in range(nitems-TAIL, nitems) for m in mff(i)]
    tog = [f"v_xor_b32 v{r}, 0x10000, v{r}" for r in (5,6,7,8)]
    kv_tail = [m for i in range(16-TAIL, 16) for m in c_mf(i)]
    if gtrace:
        A("s_lshl_b32 s87, s2, 3"); A("s_add_u32 s87, s87, s28"); A("s_lshl_b32 s87, s87, 8"); A(f"s_add_u32 s87, s87, {WS_STAMP + (10 << 20)}")
    if s1:
        A("s_load_dwordx2 s[44:45], s[90:91], 8"); A("s_load_dwordx2 s[48:49], s[90:91], 16"); A("s_load_dwordx2 s[52:53], s[90:91], 0")
        for b_ in (46, 50, 54): A(f"s_mov_b32 s{b_}, {NB_IN}"); A(f"s_mov_b32 s{b_+1}, 0x20000")
    A("s_mov_b32 s41, 0")
    A(f"s_waitcnt vmcnt({npf}) lgkmcnt(0)")
    ST("first_landed")
    A("s_cmp_ge_u32 s28, 4"); A("s_cbranch_scc1 F1_KVENTRY1")
    A("s_waitcnt vmcnt(0)")
    A("s_branch F1_KVENTRY0")
    A("F1_CODE0:")
    def qbases():
        A(f"s_mul_i32 s32, s29, {128*1152}"); A(f"s_sub_u32 s36, {15*128*1152}, s32"); A("s_lshl_b32 s31, s37, 10")
    for g in range(2):
        A(f"F1_KVLOOP{g}:")
        step(16, 8, wreads_kv, c_read, c_mf, kv_tail, dma_kv() if g == 0 else touch, [], tog,
             "s_waitcnt vmcnt(0) lgkmcnt(0)" if g == 0 else "s_waitcnt lgkmcnt(0)", entry=f"F1_KVENTRY{g}:", front=kvfront)
        A("s_add_u32 s41, s41, 1"); A("s_cmp_lt_u32 s41, 7"); A(f"s_cbranch_scc1 F1_KVLOOP{g}")
        qbases()
        t2 = []
        if s1 and s1pf:
            t2 = [["v_lshlrev_b32 v9, 7, v1", "s_mul_i32 s34, s2, 9216", "s_cmp_eq_u32 s37, 3", "s_cbranch_scc1 F1_T3",
                   "s_cmp_eq_u32 s37, 1", "s_cbranch_scc1 F1_T1", "s_cmp_eq_u32 s37, 2", "s_cbranch_scc1 F1_T2",
                   "buffer_load_dword v15, v9, s[44:47], s34 offen sc1", "s_branch F1_T4",
                   "F1_T1:", "buffer_load_dword v15, v9, s[48:51], s34 offen sc1", "s_branch F1_T4",
                   "F1_T2:", "buffer_load_dword v15, v9, s[52:55], s34 offen sc1", "s_branch F1_T4",
                   "F1_T3:", "v_min_u32 v9, 896, v9", "s_add_u32 s34, s34, 8192",
                   "buffer_load_dword v15, v9, s[44:47], s34 offen sc1", "buffer_load_dword v15, v9, s[48:51], s34 offen sc1",
                   "buffer_load_dword v15, v9, s[52:55], s34 offen sc1", "F1_T4:"]]
        step(16, 8, wreads_kv, c_read, c_mf, kv_tail, dma_q(0) + dma_q(1) if g == 0 else t2, [], tog,
             "s_waitcnt vmcnt(0) lgkmcnt(0)" if g == 0 else "s_waitcnt lgkmcnt(0)")
        if g == 0: A("s_branch F1_KVDONE")
    A("F1_KVDONE:")
    ST("kv_done")
    A("s_load_dwordx2 s[16:17], s[90:91], 88"); A("s_load_dwordx2 s[20:21], s[90:91], 32")
    A(f"s_mov_b32 s18, {4096*576*2}"); A(f"s_mov_b32 s22, {2048*576*2}")
    if s1:
        A("s_load_dwordx2 s[92:93], s[90:91], 24")
        A("s_mov_b32 s94, 4608"); A("s_mov_b32 s95, 0x20000")
        A("s_lshl_b32 s96, s2, 1"); A("s_add_u32 s96, s96, s28"); A("s_sub_u32 s96, s96, 1")
        A("s_add_u32 s34, s2, 512"); A("s_cmp_eq_u32 s28, 3"); A("s_cselect_b32 s96, s34, s96")
        A("s_sub_u32 s34, s28, 1"); A("s_cmp_lt_u32 s34, 3"); A("s_cselect_b32 s96, s96, 999")
    A("s_mov_b32 s8, s56"); A("s_mov_b32 s9, s57"); A("s_mov_b32 s10, 256")
    A("s_lshr_b32 s34, s28, 1"); A("s_lshl_b32 s34, s34, 13"); A("s_lshr_b32 s35, s28, 2"); A("s_lshl_b32 s35, s35, 14"); A("s_sub_u32 s34, s34, s35")
    for r in (5, 6): A(f"v_add_u32 v{r}, s34, v{r}")
    A("s_and_b32 s39, s28, 1"); A("s_lshl_b32 s38, s39, 3")
    A("v_lshrrev_b32 v13, 4, v1")
    addrW(7, "s38")
    A("v_xor_b32 v8, 32, v7"); A("v_xor_b32 v9, 64, v7"); A("v_xor_b32 v10, 96, v7")
    A("s_lshl_b32 s40, s30, 20"); A("s_lshl_b32 s34, s29, 16"); A("s_add_u32 s40, s40, s34")
    A("s_lshr_b32 s34, s28, 2"); A("s_lshl_b32 s34, s34, 15"); A("s_add_u32 s40, s40, s34")
    A("s_lshl_b32 s34, s37, 10"); A("s_add_u32 s42, s40, s34")
    A("s_lshl_b32 s34, s37, 11"); A("s_add_u32 s43, s40, s34"); A("s_add_u32 s43, s43, 0x80000")
    def wreads_q(ks):
        b = WS_[ks]
        return [f"ds_read_b64_tr_b16 {ar(b+4*nb+2*half,2)}, v{7+nb} offset:{32768+(32*ks+4*half)*256}" for nb in range(4) for half in range(2)]
    def x_read(i):
        ks, qb = divmod(i, 4)
        return f"ds_read_b128 {ar(RING+4*(i%R),4)}, v{5+ks} offset:{qb*2048}"
    def x_mf(i):
        ks, qb = divmod(i, 4); b = WS_[ks]; f = ar(RING+4*(i%R),4)
        return [m16(vr(accQ(nb,qb),4), ar(b+4*nb,4), f) for nb in range(4)]
    def kv_store(idx):
        o = []
        if idx < 8:
            kp, T = idx >> 1, idx & 1
            src = [accV(T,2*kp)+r for r in range(4)] + [accV(T,2*kp+1)+r for r in range(4)]
            off = kp*8192 + T*1024; base = "s43"
        else:
            kb = idx - 8
            src = [16 + 8*(kb % 4) + r for r in range(8)]
            for r in range(4): o.append(f"v_accvgpr_read_b32 v{src[r]}, a{accK(0,kb)+r}")
            for r in range(4): o.append(f"v_accvgpr_read_b32 v{src[4+r]}, a{accK(1,kb)+r}")
            off = kb*4096; base = "s42"
        d = src[0]
        o += [f"v_cvt_pk_bf16_f32 v{d+j}, v{src[2*j]}, v{src[2*j+1]}" for j in range(4)]
        o.append(f"s_add_u32 s34, {base}, {off}")
        if nost == 2 or (nost == 1 and idx % 2): o.append("buffer_load_dword v15, v11, s[4:7], 0 offen")
        else: o.append(f"buffer_store_dwordx4 {vr(d,4)}, v11, {WSS}, s34 offen {st_flags}")
        return o
    def togq(j):
        da = SA[(j+1) % 3] - SA[j % 3]; dw = SW[(j+1) % 3] - SW[j % 3]
        return [f"v_add_u32 v{r}, {da & 0xffffffff}, v{r}" for r in (5, 6)] + [f"v_add_u32 v{r}, {dw & 0xffffffff}, v{r}" for r in (7, 8, 9, 10)]
    A("s_cmp_ge_u32 s28, 4"); A("s_cbranch_scc1 F1_Q1")
    for g in range(2):
        if g: A("F1_Q1:")
        prev = kv_tail
        for j in range(9):
            loader = (j < 4) == (g == 0)
            st0 = 4*(j % 4)
            ex = []
            if loader: ex = dma_q(j+2) if j <= 6 else []
            elif j < 8: ex = [kv_store(st0 + k) for k in range(4)]
            if g == 0 and j == 7 and not gtrace:
                ex.append(["v_mov_b32 v14, 0", "s_cmp_lg_u32 s28, 0", "s_cbranch_scc1 F1_NOEL",
                           "buffer_load_dwordx2 v[2:3], v14, s[8:11], 0 offen sc0 sc1", "F1_NOEL:"])
            if g == 0 and j == 8 and s1:
                blk = ["s_cmp_ge_u32 s96, 576", "s_cbranch_scc1 F1_NOS1L",
                       "s_mul_i32 s34, s96, 3641", "s_lshr_b32 s34, s34, 16", "s_mul_i32 s35, s34, 18", "s_sub_u32 s35, s96, s35",
                       "v_and_b32 v76, 3, v1", "s_lshl_b32 s35, s35, 2", "v_add_u32 v76, s35, v76",
                       "v_lshrrev_b32 v77, 2, v1", "s_lshl_b32 s34, s34, 4", "v_add_u32 v77, s34, v77",
                       f"v_mul_u32_u24 v78, {4*1152}, v77", "v_lshl_add_u32 v78, v76, 4, v78", f"v_subrev_u32 v79, {3*1152}, v78",
                       "v_lshlrev_b32 v4, 6, v76"]
                blk += [f"buffer_load_dwordx4 {ar(32+4*i,4)}, v4, s[92:95], 0 offen offset:{16*i}" for i in range(4)]
                blk += [f"buffer_load_dwordx4 {vr(16+4*r,4)}, v79, s[44:47], 0 offen offset:{r*1152}" for r in range(3)]
                for base, sd in ((28, 44), (44, 48), (60, 52)):
                    blk += [f"buffer_load_dwordx4 {vr(base+4*r,4)}, v78, s[{sd}:{sd+3}], 0 offen offset:{r*1152} {'nt' if (s1nt and sd != 44) else ''}" for r in range(4)]
                ex.append(blk + ["F1_NOS1L:"])
            if g == 0: w = "vmcnt(12) " if j <= 4 else ("vmcnt(4) " if j == 5 else "")
            else: w = "" if j <= 5 else ("vmcnt(12) " if j <= 7 else "vmcnt(0) ")
            if gtrace: w = "vmcnt(0) " if w == "vmcnt(0) " else (w.replace("12", "13").replace("t(4", "t(5") if w else "")
            prev = step(8, 4, wreads_q, x_read, x_mf, prev, ex, [], togq(j) if j < 8 else [], f"s_waitcnt {w}lgkmcnt(0)")
        A("s_waitcnt lgkmcnt(0)")
        A.ext(prev)
        if g == 0: A("s_branch F1_QDONE")
    A("F1_QDONE:")
    ST("q_done")
    if outpf:
        A("s_load_dwordx2 s[24:25], s[90:91], 96"); A(f"s_mov_b32 s26, {2048*1152*2}")
    A(f"s_mov_b32 s36, {QSCALE}")
    A("s_lshr_b32 s34, s28, 1")
    A("s_and_b32 s35, s34, 1"); A("s_lshl_b32 s35, s35, 14")
    A("s_lshr_b32 s34, s34, 1"); A("s_lshl_b32 s34, s34, 17"); A("s_add_u32 s34, s34, s35")
    A("s_lshl_b32 s35, s39, 11"); A("s_add_u32 s34, s34, s35")
    A("v_add_u32 v12, s34, v11")
    if cpf: code_touch(A, "F1_ATTN", "F1_END-F1_ATTN", 15, 8)
    for qb in range(4):
        for j in range(2):
            src = accQ(2*j, qb)
            for r in range(8): A(f"v_mul_f32 v{src+r}, s36, v{src+r}")
            for r in range(4): A(f"v_cvt_pk_bf16_f32 v{src+r}, v{src+2*r}, v{src+2*r+1}")
            A(f"ds_write_b128 v12, {vr(src,4)} offset:{(qb>>1)*8192 + ((qb&1)*4 + j)*1024}")
    A("s_lshl_b32 s60, s30, 10"); A(f"s_add_u32 s60, s60, {WS_FLAG}")
    A("s_lshl_b32 s61, s29, 7"); A("s_add_u32 s61, s61, s60")
    k2c.attn_setup(A)
    A("s_waitcnt vmcnt(0) lgkmcnt(0)")
    A("s_barrier")
    ST("stores_done")
    if gtrace:
        A("s_mov_b32 s98, 0")
    else:
        A("v_readfirstlane_b32 s98, v2"); A("v_readfirstlane_b32 s99, v3")
    A("v_mov_b32 v2, v11")
    A("s_cmp_lg_u32 s28, 0")
    A("s_cbranch_scc1 F1_NOSIG")
    A("s_mov_b32 s63, 0x40000")
    A("v_mov_b32 v14, 0")
    A("F1_EPL:")
    A("s_cmp_lg_u32 s98, 0"); A("s_cbranch_scc1 F1_EPOK")
    A("buffer_load_dwordx2 v[12:13], v14, s[8:11], 0 offen sc0 sc1")
    A("s_waitcnt vmcnt(0)")
    A("v_readfirstlane_b32 s98, v12"); A("v_readfirstlane_b32 s99, v13")
    A("s_sub_u32 s63, s63, 1"); A("s_cmp_lg_u32 s63, 0"); A("s_cbranch_scc1 F1_EPL")
    A("F1_EPOK:")
    A("v_mov_b32 v12, s98"); A("v_mov_b32 v13, s99")
    A("s_mov_b64 exec, 1")
    A("buffer_store_dwordx2 v[12:13], v14, s[4:7], s61 offen sc0 sc1")
    A("s_mov_b64 exec, -1")
    A("F1_NOSIG:")
    A("s_lshr_b32 s34, s28, 2"); A("s_lshl_b32 s34, s34, 17"); A("s_and_b32 s47, s28, 3"); A("s_lshl_b32 s47, s47, 13")
    A("s_add_u32 s34, s34, s47"); A("v_add_u32 v14, s34, v2")
    for i in range(8): A(f"ds_read_b128 {ar(4*i,4)}, v14 offset:{i*1024}")
    if s1:
        A("s_cmp_ge_u32 s96, 576"); A("s_cbranch_scc1 F1_NOS1")
        K_, V_, Q_, W_, KF, O_ = 16, 44, 60, 80, 84, 92
        if fuse:
            A("s_lshl_b32 s15, s28, 13"); A("s_add_u32 s15, s15, 0x8000")
            A("v_and_b32 v78, 3, v1"); A("v_lshlrev_b32 v78, 10, v78"); A("v_add_u32 v78, s15, v78")
            A("v_lshrrev_b32 v77, 2, v1"); A("v_lshlrev_b32 v77, 3, v77"); A("v_add_u32 v79, v78, v77"); A("v_sub_u32 v78, v78, v77"); A("v_add_u32 v78, 120, v78")
        else:
            A("v_lshlrev_b32 v78, 15, v76"); A("v_lshl_add_u32 v79, v77, 3, v78")
            A("v_lshlrev_b32 v77, 3, v77"); A("v_sub_u32 v78, v78, v77"); A("v_add_u32 v78, 4088, v78")
        A("s_mov_b32 s12, 0xffff0000"); A("s_mov_b32 s13, 0x05040100"); A("s_mov_b32 s14, 0x07060302")
        def unp(dst, src, hi): return f"v_and_b32 v{dst}, s12, v{src}" if hi else f"v_lshlrev_b32 v{dst}, 16, v{src}"
        for c in range(8):
            d, hi = c // 2, c % 2
            A(f"v_accvgpr_read_b32 v{W_+1}, a{32+2*c}"); A(f"v_accvgpr_read_b32 v{W_+3}, a{33+2*c}")
            for r in range(7): A(unp(KF+r, K_+4*r+d, hi))
            A(unp(W_, W_+1, 0)); A(unp(W_+1, W_+1, 1)); A(unp(W_+2, W_+3, 0)); A(unp(W_+3, W_+3, 1))
            for p_ in range(4):
                A(f"v_mul_f32 v{O_+p_}, v{KF+p_+3}, v{W_}")
                for u in range(1, 4): A(f"v_fmac_f32 v{O_+p_}, v{KF+p_+3-u}, v{W_+u}")
            for p_ in range(4): A(unp(KF+p_, V_+4*p_+d, hi))
            for p_ in range(4): A(f"v_mul_f32 v{O_+p_}, v{O_+p_}, v{KF+p_}")
            t = 96 + 4*c
            A(f"v_cvt_pk_bf16_f32 v{t}, v{O_+3}, v{O_+2}"); A(f"v_cvt_pk_bf16_f32 v{t+1}, v{O_+1}, v{O_}")
            A(f"v_perm_b32 v{t+2}, v{Q_+4+d}, v{Q_+d}, s{13+hi}"); A(f"v_perm_b32 v{t+3}, v{Q_+12+d}, v{Q_+8+d}, s{13+hi}")
            if fuse:
                A(f"ds_write_b64 v78, {vr(t,2)} offset:{c*128}"); A(f"ds_write_b64 v79, {vr(t+2,2)} offset:{4096 + c*128}")
            else:
                A(f"s_mov_b32 s34, {WS_XR + c*4096}"); A(f"s_mov_b32 s47, {WS_QT + c*4096}")
                A(f"buffer_store_dwordx2 {vr(t,2)}, v78, s[4:7], s34 offen"); A(f"buffer_store_dwordx2 {vr(t+2,2)}, v79, s[4:7], s47 offen")
        if fuse:
            A("v_add_u32 v78, s15, v2")
            for i in range(8): A(f"ds_read_b128 {vr(16+4*i,4)}, v78 offset:{i*1024}")
            A("v_lshrrev_b32 v76, 3, v1"); A("v_lshlrev_b32 v76, 12, v76"); A("v_and_b32 v77, 7, v1"); A("v_lshl_add_u32 v76, v77, 4, v76")
            A("s_mul_i32 s34, s96, 3641"); A("s_lshr_b32 s34, s34, 16"); A("s_mul_i32 s47, s34, 18"); A("s_sub_u32 s47, s96, s47")
            A("s_lshl_b32 s47, s47, 17"); A("s_lshl_b32 s34, s34, 7")
            A(f"s_add_u32 s13, s47, {WS_QT}"); A("s_add_u32 s13, s13, s34")
            A(f"s_add_u32 s12, s47, {WS_XR + 4096 - 128}"); A("s_sub_u32 s12, s12, s34")
            for i in range(8):
                A(f"s_waitcnt lgkmcnt({7 - i})")
                A(f"buffer_store_dwordx4 {vr(16+4*i,4)}, v76, s[4:7], s{12 + i//4} offen sc1")
                A(f"s_add_u32 s{12 + i//4}, s{12 + i//4}, 32768")
        A("s_nop 1")
        A("F1_NOS1:")
    k2c.attn_init(A)
    A("s_cmp_lg_u32 s28, 0")
    A("s_cbranch_scc1 F1_OTHER")
    A("v_and_b32 v14, 7, v1"); A("v_lshlrev_b32 v14, 7, v14")
    A("s_mov_b32 s63, 0x40000")
    A("F1_POLL:")
    A("buffer_load_dwordx2 v[12:13], v14, s[4:7], s60 offen sc0 sc1")
    A("s_waitcnt vmcnt(0)")
    A("v_cmp_ne_u32 vcc, s98, v12")
    A("v_cmp_ne_u32 s[100:101], s99, v13")
    A("s_or_b64 vcc, vcc, s[100:101]")
    A("s_cmp_eq_u64 vcc, 0")
    A("s_cbranch_scc1 F1_GOT")
    A(f"s_sleep {sleep}")
    A("s_sub_u32 s63, s63, 1")
    A("s_cmp_lg_u32 s63, 0")
    A("s_cbranch_scc1 F1_POLL")
    A("F1_GOT:")
    if inv:
        A("buffer_inv sc1")
        A("s_waitcnt vmcnt(0)")
    A("s_branch F1_WAITED")
    A("F1_OTHER:")
    A("F1_WAITED:")
    if s1t:
        A("s_load_dwordx2 s[8:9], s[90:91], 8"); A("s_load_dwordx2 s[12:13], s[90:91], 16"); A("s_load_dwordx2 s[24:25], s[90:91], 0"); A("s_load_dwordx2 s[92:93], s[90:91], 24")
        for b_ in (10, 14, 26): A(f"s_mov_b32 s{b_}, {NB_IN}")
        A("s_mov_b32 s94, 4608"); A("s_mov_b32 s95, 0x20000"); A("s_mov_b32 s40, 999")
    if late_pf:
        if hip:
            A("s_cmp_ge_u32 s29, 4"); A("s_cselect_b32 s94, 3072, 0"); A("s_cselect_b32 s95, 1536, 0"); A("s_cselect_b32 s34, 5, 0"); A("s_cselect_b32 s47, 2, 0")
            A("v_min_u32 v22, s34, v1"); A("v_lshlrev_b32 v22, 7, v22"); A("v_min_u32 v0, s47, v1"); A("v_lshlrev_b32 v0, 7, v0")
            A("s_and_b32 s34, s29, 3"); A("s_lshr_b32 s47, s2, 6"); A("s_lshl_b32 s47, s47, 2"); A("s_add_u32 s34, s34, s47"); A("s_lshl_b32 s34, s34, 3")
            A("s_and_b32 s47, s2, 7"); A("s_add_u32 s34, s34, s47")
            A("s_mul_i32 s96, s34, 36864"); A("s_mul_i32 s97, s34, 18432"); A("s_and_b32 s47, s28, 3")
            A("s_mul_i32 s34, s47, 768"); A("s_add_u32 s96, s96, s34"); A("s_mul_i32 s34, s47, 384"); A("s_add_u32 s97, s97, s34")
        else:
            A("v_min_u32 v22, 2, v1"); A("v_lshlrev_b32 v22, 7, v22"); A("v_min_u32 v0, 1, v1"); A("v_lshlrev_b32 v0, 7, v0")
            A("s_and_b32 s47, s28, 3"); A("s_mul_i32 s96, s2, 18432"); A("s_mul_i32 s34, s47, 384"); A("s_add_u32 s96, s96, s34")
            A("s_mul_i32 s97, s2, 9216"); A("s_mul_i32 s34, s47, 192"); A("s_and_b32 s34, s34, 0xff80"); A("s_add_u32 s97, s97, s34")
    A("s_waitcnt lgkmcnt(0)")
    A("s_barrier")
    ST("synced")
    g1x = []
    if late_pf:
        g1x = ["buffer_load_dword v23, v22, s[16:19], s96 offen sc1", "s_add_u32 s96, s96, s94" if hip else "s_add_u32 s96, s96, 1536",
               "buffer_load_dword v23, v0, s[20:23], s97 offen sc1"]
        if s1t: g1x += [f"buffer_load_dword v23, v0, s[{b_}:{b_+3}], s97 offen sc1" for b_ in (8, 12, 24)]
        g1x += ["s_add_u32 s97, s97, s95" if hip else "s_add_u32 s97, s97, 768"]
    lastx = []
    mx = []; p0x = []
    if fuse:
        p0x = ["s_cmp_lg_u32 s28, 0", "s_cbranch_scc1 F1_NP0", "s_lshl_b32 s34, s2, 7", f"s_add_u32 s34, s34, {k3d.WS_FLAG5}",
               "v_mov_b32 v22, s98", "v_mov_b32 v23, s99", "v_mov_b32 v21, 0", "s_mov_b64 exec, 1",
               "buffer_store_dwordx2 v[22:23], v21, s[4:7], s34 offen sc0 sc1", "s_mov_b64 exec, -1", "F1_NP0:"]
    if fuse:
        mx = ["s_lshl_b32 s34, s30, 10", "s_lshl_b32 s47, s29, 7", "s_add_u32 s34, s34, s47", f"s_add_u32 s34, s34, {WS_FLAG}", "v_mov_b32 v22, 0",
              "buffer_load_dwordx2 v[22:23], v22, s[4:7], s34 offen sc0 sc1",
              "s_cmp_lt_u32 s2, 192", "s_cbranch_scc1 F1_NF5", "s_cmp_lg_u32 s28, 7", "s_cbranch_scc1 F1_NF5", "v_lshlrev_b32 v64, 7, v1"]
        for i in range(4): mx += [f"s_mov_b32 s34, {k3d.WS_FLAG5 + i*8192}", f"buffer_load_dwordx2 v[{56+2*i}:{57+2*i}], v64, s[4:7], s34 offen sc0 sc1"]
        mx += ["F1_NF5:"]
    if s1t:
        lastx = ["s_lshl_b32 s40, s2, 1", "s_add_u32 s40, s40, s28", "s_add_u32 s34, s2, 512", "s_cmp_eq_u32 s28, 2", "s_cselect_b32 s40, s34, s40",
                 "s_cmp_lt_u32 s28, 3", "s_cselect_b32 s40, s40, 999", "s_cmp_ge_u32 s40, 576", "s_cbranch_scc1 F1_NOS1L",
                 "s_mul_i32 s34, s40, 3641", "s_lshr_b32 s34, s34, 16", "s_mul_i32 s41, s34, 18", "s_sub_u32 s41, s40, s41",
                 "v_and_b32 v56, 3, v1", "s_lshl_b32 s41, s41, 2", "v_add_u32 v56, s41, v56",
                 "v_lshrrev_b32 v57, 2, v1", "s_lshl_b32 s34, s34, 4", "v_add_u32 v57, s34, v57",
                 f"v_mul_u32_u24 v58, {4*1152}, v57", "v_lshl_add_u32 v58, v56, 4, v58", f"v_subrev_u32 v59, {3*1152}, v58", "v_lshlrev_b32 v60, 6, v56"]
        lastx += [f"buffer_load_dwordx4 {ar(60+4*i,4)}, v60, s[92:95], 0 offen offset:{16*i}" for i in range(4)]
        lastx += [f"buffer_load_dwordx4 {ar(4*r,4)}, v59, s[8:11], 0 offen offset:{r*1152}" for r in range(3)]
        for base, sd in ((12, 8), (28, 12), (44, 24)):
            lastx += [f"buffer_load_dwordx4 {ar(base+4*r,4)}, v58, s[{sd}:{sd+3}], 0 offen offset:{r*1152}" for r in range(4)]
        lastx += ["F1_NOS1L:"]
    A("F1_ATTN:")
    k2c.attn(A, ST, qsrc="lds", pfx="F1A", st_flags=ctx_flags, ld_flags="" if inv else "sc1", g1_extra=([] if g0t else g1x), g0_extra=(g1x if g0t else []), qb_extra=lastx, merge_extra=mx, post0=p0x, **attn_kw)
    ST("st_issued")
    if fuse: k3d.tail(A, ST, stamps=stamps, **tail_kw)
    if s1t:
        A("s_cmp_ge_u32 s40, 576"); A("s_cbranch_scc1 F1_NOS1T")
        K_, V_, Q_, SK, W_, KF, O_ = 64, 92, 108, 124, 24, 28, 36
        A("v_lshlrev_b32 v58, 15, v56"); A("v_lshl_add_u32 v59, v57, 3, v58")
        A("v_lshlrev_b32 v57, 3, v57"); A("v_sub_u32 v58, v58, v57"); A("v_add_u32 v58, 4088, v58")
        A("s_mov_b32 s12, 0xffff0000"); A("s_mov_b32 s13, 0x05040100"); A("s_mov_b32 s14, 0x07060302")
        A("s_waitcnt vmcnt(4)")
        for r in range(76): A(f"v_accvgpr_read_b32 v{64+r}, a{r}")
        def unp(dst, src, hi): return f"v_and_b32 v{dst}, s12, v{src}" if hi else f"v_lshlrev_b32 v{dst}, 16, v{src}"
        for c in range(8):
            d, hi = c // 2, c % 2
            for r in range(7): A(unp(KF+r, K_+4*r+d, hi))
            for u in range(4): A(unp(W_+u, SK+2*c+u//2, u % 2))
            for p_ in range(4):
                A(f"v_mul_f32 v{O_+p_}, v{KF+p_+3}, v{W_}")
                for u in range(1, 4): A(f"v_fmac_f32 v{O_+p_}, v{KF+p_+3-u}, v{W_+u}")
            for p_ in range(4): A(unp(KF+p_, V_+4*p_+d, hi))
            for p_ in range(4): A(f"v_mul_f32 v{O_+p_}, v{O_+p_}, v{KF+p_}")
            t = 40 + 4*(c % 4)
            A(f"v_cvt_pk_bf16_f32 v{t}, v{O_+3}, v{O_+2}"); A(f"v_cvt_pk_bf16_f32 v{t+1}, v{O_+1}, v{O_}")
            A(f"v_perm_b32 v{t+2}, v{Q_+4+d}, v{Q_+d}, s{13+hi}"); A(f"v_perm_b32 v{t+3}, v{Q_+12+d}, v{Q_+8+d}, s{13+hi}")
            A(f"s_mov_b32 s34, {WS_XR + c*4096}"); A(f"s_mov_b32 s47, {WS_QT + c*4096}")
            A(f"buffer_store_dwordx2 {vr(t,2)}, v58, s[4:7], s34 offen"); A(f"buffer_store_dwordx2 {vr(t+2,2)}, v59, s[4:7], s47 offen")
        A("F1_NOS1T:")
    if stamps: A("s_waitcnt vmcnt(0)")
    ST("end"); ST("end_rt", real=True)
    ST.dump(vt=10, st=34, kidx=0)
    A("F1_END:")
    A("s_endpgm")
    A(kd(name, 256, 144))
    return ST.names
```

```python
from asmlib import *
from k1 import srd, WS_CTX, WS_PART
from k1b import m16
from ka import WS_XR, WS_QT, NB_IN, CS, C0, C1
STG = 49152
WS_FLAG2 = 124 << 20
WS_FLAG3 = 122 << 20
WS_FLAG5 = 125 << 20
EP = 12

def flag(A, soff):
    A("v_mov_b32 v12, s62"); A("v_mov_b32 v13, s63")
    A("s_mov_b64 exec, 1"); A(f"buffer_store_dwordx2 v[12:13], v14, s[4:7], {soff} offen sc0 sc1"); A("s_mov_b64 exec, -1")

def poll(A, lab, voff, soff, sleep, n=1, stride=0):
    A("s_mov_b32 s61, 0x40000")
    A(f"{lab}:")
    for i in range(n):
        if i: A(f"s_add_u32 s34, {soff}, {i*stride}")
        A(f"buffer_load_dwordx2 v[{16+2*i}:{17+2*i}], v{voff}, s[4:7], {soff if i == 0 else 's34'} offen sc0 sc1")
    A("s_waitcnt vmcnt(0)")
    A("v_cmp_ne_u32 vcc, s62, v16"); A("v_cmp_ne_u32 s[58:59], s63, v17"); A("s_or_b64 vcc, vcc, s[58:59]")
    for i in range(1, n):
        A(f"v_cmp_ne_u32 s[58:59], s62, v{16+2*i}"); A("s_or_b64 vcc, vcc, s[58:59]")
        A(f"v_cmp_ne_u32 s[58:59], s63, v{17+2*i}"); A("s_or_b64 vcc, vcc, s[58:59]")
    A("s_cmp_eq_u64 vcc, 0"); A(f"s_cbranch_scc1 {lab}_G")
    A(f"s_sleep {sleep}")
    A("s_sub_u32 s61, s61, 1"); A("s_cmp_lg_u32 s61, 0"); A(f"s_cbranch_scc1 {lab}")
    A(f"{lab}_G:")

def tail(A, ST, stamps=False, sleep=1, wpf=True, cfl="sc1", inv=False, delay=0, wfl="", vz=False, alone=False, pre=0, zero=False, gpf=True, p1one=True):
    for _ in range(pre): A("s_sleep 127")
    if zero:
        A("s_waitcnt vmcnt(0)"); A("s_setprio 0")
        for r in list(range(3, 22)) + list(range(24, 144)): A(f"v_mov_b32 v{r}, 0")
        for r in range(112): A(f"v_accvgpr_write_b32 a{r}, 0")
        for r in list(range(8, 28)) + list(range(31, 60)): A(f"s_mov_b32 s{r}, 0")
    A("s_load_dwordx4 s[44:47], s[90:91], 88")
    A("s_load_dwordx4 s[52:55], s[90:91], 32")
    A("s_lshl_b32 s60, s30, 3"); A("s_add_u32 s60, s60, s29"); A("s_lshl_b32 s60, s60, 7"); A(f"s_add_u32 s60, s60, {WS_FLAG2}")
    A("s_waitcnt vmcnt(4)")
    A("v_readfirstlane_b32 s62, v22"); A("v_readfirstlane_b32 s63, v23"); A("v_mov_b32 v14, 0")
    def signal():
        A("s_barrier")
        A("s_cmp_lg_u32 s28, 0"); A(f"s_cbranch_scc1 T_NS{signal.n}")
        flag(A, "s60")
        A(f"T_NS{signal.n}:"); signal.n += 1
    signal.n = 0
    A("s_cmp_ge_u32 s2, 192"); A("s_cbranch_scc1 T_CONV")
    A("s_and_b32 s29, s2, 3")
    A("s_lshr_b32 s34, s2, 3"); A("s_and_b32 s30, s34, 7"); A("s_and_b32 s35, s2, 4"); A("s_lshl_b32 s35, s35, 1"); A("s_add_u32 s30, s30, s35")
    A("s_lshr_b32 s31, s34, 3")
    A("s_lshr_b32 s42, s28, 2"); A("s_and_b32 s37, s28, 3")
    A("s_lshl_b32 s34, s30, 2"); A("s_add_u32 s43, s34, s37")
    A("s_lshl_b32 s33, s43, 18"); A("s_lshl_b32 s34, s29, 16"); A("s_add_u32 s33, s33, s34"); A("s_lshl_b32 s34, s42, 15"); A("s_add_u32 s33, s33, s34")
    A(f"s_add_u32 s56, s33, {WS_CTX}"); A("s_add_u32 s57, s56, 4096")
    A("s_mul_i32 s41, s29, 6"); A("s_mov_b32 s36, 2731"); A("s_lshl_b32 s34, s28, 6")
    VD = 3
    for i in range(6):
        A("v_add_u32 v20, s34, v1")
        A("v_mul_u32_u24 v21, s36, v20"); A("v_lshrrev_b32 v21, 16, v21")
        A("v_mul_u32_u24 v22, 24, v21"); A("v_sub_u32 v22, v20, v22")
        A("v_and_b32 v23, 6, v21"); A("v_xor_b32 v22, v22, v23")
        A("v_add_u32 v22, s41, v22"); A("v_subrev_u32 v23, 24, v22"); A("v_min_u32 v22, v22, v23")
        A("v_lshrrev_b32 v19, 6, v21"); A("v_mad_u32_u24 v22, v19, 12, v22"); A("v_subrev_u32 v23, 24, v22"); A("v_min_u32 v22, v22, v23")
        A("v_mul_u32_u24 v23, 448, v19"); A("v_add_u32 v21, v21, v23")
        A("v_mul_u32_u24 v21, 1152, v21")
        A(f"v_lshl_add_u32 v{VD+i}, v22, 4, v21")
        A("s_add_u32 s34, s34, 512")
    A(f"s_mul_i32 s32, s29, {1024*1152}"); A("s_mul_i32 s34, s31, 384"); A("s_add_u32 s32, s32, s34")
    A("s_lshl_b32 s38, s28, 10")
    A("s_waitcnt lgkmcnt(0)")
    srd(A, 8, 44, 4096*576*2)
    CT = [0, 16, 32]; WR = 48; NW = 16; ACC = 48; VA = 24
    def dma(j):
        return [[f"s_add_u32 m0, s38, {(j%3)*STG + i*8192}", f"s_add_u32 s34, s32, {j*64*1152}" if i == 0 else "s_nop 0",
                 f"buffer_load_dwordx4 v{VD+i}, s[8:11], s34 offen {wfl} lds"] for i in range(6)]
    def cload(j):
        g = []
        for a in range(2):
            for k2 in range(2):
                pre = [f"s_add_u32 s35, s{56+a}, {(j//2)*8192}"] if k2 == 0 else []
                g.append(pre + [f"buffer_load_dwordx4 {ar(CT[j%3]+8*a+4*k2,4)}, v2, s[4:7], s35 offen offset:{(2*(j%2)+k2)*1024} {cfl}"])
        return g
    A("s_waitcnt vmcnt(0)")
    signal()
    ST("sig")
    for g in dma(0) + dma(1): A.ext(g)
    if gpf:
        A("s_mul_i32 s34, s2, 24576"); A("s_mul_i32 s35, s28, 3072"); A("s_add_u32 s34, s34, s35")
        A("v_min_u32 v20, 23, v1"); A("v_lshlrev_b32 v20, 7, v20")
        A("buffer_load_dword v15, v20, s[8:11], s34 offen sc1")
    A("v_lshrrev_b32 v20, 2, v1"); A("v_mul_u32_u24 v21, 384, v20"); A("v_and_b32 v20, 6, v20")
    A("v_bfe_u32 v22, v1, 1, 1"); A("v_or_b32 v20, v20, v22")
    A("v_and_b32 v22, 1, v1"); A("v_lshl_add_u32 v21, v22, 3, v21")
    A(f"s_mul_i32 s34, s42, {64*384}"); A("v_add_u32 v21, s34, v21")
    for u in range(4):
        A(f"v_xor_b32 v22, {2*u}, v20"); A(f"v_lshl_add_u32 v{VA+u}, v22, 4, v21")
    for r in range(ACC, ACC+96): A(f"v_mov_b32 v{r}, 0")
    A("s_sub_u32 s34, 15, s30"); A("s_min_u32 s34, s34, s30"); A("s_lshl_b32 s34, s34, 7"); A("s_lshl_b32 s35, s29, 13"); A("s_add_u32 s39, s34, s35"); A(f"s_add_u32 s39, s39, {WS_FLAG2}")
    A("v_and_b32 v20, 7, v1"); A("v_lshlrev_b32 v20, 10, v20")
    if not alone and p1one:
        A("s_cmp_lg_u32 s28, 0"); A("s_cbranch_scc1 T_P1_G")
        poll(A, "T_P1", 20, "s39", sleep)
        A("s_barrier")
    elif not alone: poll(A, "T_P1", 20, "s39", sleep)
    else: A("s_waitcnt vmcnt(0)")
    if inv: A("buffer_inv sc1"); A("s_waitcnt vmcnt(0)")
    for _ in range(delay): A("s_sleep 127")
    ST("ctx_ok")
    for g in cload(0) + cload(1): A.ext(g)
    A("s_waitcnt vmcnt(4)")
    TAIL = 4
    def wf(i): return WR + 4*(i % NW)
    def wr(i):
        k2, t = divmod(i, 12)
        return [f"ds_read_b64_tr_b16 {ar(wf(i)+2*half,2)}, v{VA+4+t%4} offset:{(32*k2+16*half)*384+(t//4)*128}" for half in range(2)]
    def mf(j, i):
        k2, t = divmod(i, 12)
        return [m16(vr(ACC+48*a+4*t,4), ar(wf(i),4), ar(CT[j%3]+8*a+4*k2,4)) for a in range(2)]
    tl = []
    for j in range(8):
        if j: A(f"s_waitcnt vmcnt({10 if (j < 7 and not vz) else 0}) lgkmcnt(0)")
        for u in range(4): A(f"v_add_u32 v{VA+4+u}, {(j%3)*STG}, v{VA+u}")
        A("s_barrier")
        if j == 0: ST("landed")
        first = [x for i in range(4) for x in wr(i)]
        if tl:
            for m, r in zip(tl, first): A(m); A(r)
        else: A.ext(first)
        issued = 4
        while issued < 7: A.ext(wr(issued)); issued += 1
        fill = (cload(j+2) + dma(j+2)) if j+2 < 8 else []
        for i in range(24 - TAIL):
            A(f"s_waitcnt lgkmcnt({min(15, 2*(issued - i - 1))})")
            mm = mf(j, i)
            rr = wr(issued) if issued < 24 else [None, None]
            if issued < 24: issued += 1
            A(mm[0])
            if rr[0]: A(rr[0])
            A(mm[1])
            if rr[1]: A(rr[1])
            if i % 2 == 0 and fill: A.ext(fill.pop(0))
        tl = [m for i in range(24 - TAIL, 24) for m in mf(j, i)]
    A("s_waitcnt lgkmcnt(0)")
    A.ext(tl)
    ST("gemm_done")
    A("s_mul_i32 s34, s28, 12288"); A("v_add_u32 v9, s34, v2")
    A("s_xor_b32 s35, s28, 4"); A("s_mul_i32 s35, s35, 12288"); A("v_add_u32 v10, s35, v2")
    srd(A, 8, 46, 2048*1152*2)
    A("s_barrier")
    snd = [(a_, t) for a_ in range(2) for t in range(6)]
    for i, (a_, t) in enumerate(snd): A(f"ds_write_b128 v9, {vr(ACC+48*a_+4*(t+6),4)} offset:{i*1024}")
    A("s_mul_i32 s39, s30, 3"); A("s_add_u32 s39, s39, s31")
    A(f"s_mul_i32 s50, s39, {16*4*3072}"); A("s_mul_i32 s34, s37, 3072"); A("s_add_u32 s50, s50, s34"); A(f"s_add_u32 s50, s50, {WS_PART}")
    A("s_lshl_b32 s52, s39, 12"); A(f"s_add_u32 s52, s52, {WS_FLAG3}")
    A("s_lshl_b32 s34, s29, 10"); A("s_add_u32 s53, s52, s34"); A("s_lshl_b32 s34, s28, 7"); A("s_add_u32 s53, s53, s34")
    def dest(dexpr):
        A(dexpr); A("s_and_b32 s34, s34, 3"); A("s_lshl_b32 s34, s34, 2"); A("s_add_u32 s34, s34, s29")
        A(f"s_mul_i32 s34, s34, {4*3072}"); A("s_add_u32 s34, s34, s50")
    A("s_lshl_b32 s40, s42, 1"); A("s_add_u32 s40, s40, s29")
    A("s_waitcnt lgkmcnt(0)"); A("s_barrier")
    order = [(a_, t) for t in (3, 4, 5, 0, 1, 2) for a_ in range(2)]
    for (a_, t) in order: A(f"ds_read_b128 {vr(ACC+48*a_+4*(t+6),4)}, v10 offset:{snd.index((a_, t))*1024}")
    for i, (a_, t) in enumerate(order):
        if i == 6: A("s_cmp_eq_u32 s42, 0"); A("s_cbranch_scc1 T_OWN")
        A(f"s_waitcnt lgkmcnt({11 - i})")
        x = ACC + 48*a_ + 4*t; pk = 24 + 2*i
        for r in range(4): A(f"v_add_f32 v{x+r}, v{x+r}, v{x+24+r}")
        A(f"v_cvt_pk_bf16_f32 v{pk}, v{x}, v{x+1}"); A(f"v_cvt_pk_bf16_f32 v{pk+1}, v{x+2}, v{x+3}")
        if i == 0: dest("s_add_u32 s34, s40, 1")
        if i == 6: dest("s_add_u32 s34, s40, 0")
        if a_ == 1: A(f"buffer_store_dwordx4 {vr(pk-2,4)}, v2, s[4:7], s34 offen offset:{(t%3)*1024} sc1")
    A("s_waitcnt vmcnt(0)")
    flag(A, "s53")
    A("s_branch T_FIN")
    A("T_OWN:")
    A("s_waitcnt lgkmcnt(0)")
    for (a_, t) in order[6:]:
        x = ACC + 48*a_ + 4*t
        for r in range(4): A(f"v_add_f32 v{x+r}, v{x+r}, v{x+24+r}")
    A("v_and_b32 v20, 3, v1"); A("v_max_u32 v20, 1, v20"); A("v_sub_u32 v21, s29, v20"); A("v_and_b32 v21, 3, v21"); A("v_lshlrev_b32 v21, 10, v21")
    A("v_lshrrev_b32 v20, 1, v20"); A("v_lshl_add_u32 v20, v20, 9, v21"); A("s_lshl_b32 s34, s37, 7"); A("s_add_u32 s52, s52, s34")
    A("v_and_b32 v10, 15, v1"); A("v_mul_u32_u24 v10, 2304, v10"); A("v_lshrrev_b32 v21, 4, v1"); A("v_lshl_add_u32 v3, v21, 3, v10")
    A(f"s_mul_i32 s54, s43, {32*2304}")
    A("s_mul_i32 s34, s31, 384"); A("s_add_u32 s54, s54, s34"); A("s_mul_i32 s34, s29, 96"); A("s_add_u32 s54, s54, s34"); A("s_add_u32 s54, s54, 1152")
    A(f"s_add_u32 s55, s54, {16*2304}")
    A(f"s_mul_i32 s34, s29, {4*4*3072}"); A("s_add_u32 s50, s50, s34")
    A("s_waitcnt vmcnt(0)")
    ST("sent")
    flag(A, "s53")
    poll(A, "T_P2", 20, "s52", sleep)
    ST("polled")
    RV = [ACC + 24, ACC + 36, ACC + 72]
    for d in range(1, 4):
        A(f"s_add_u32 s34, s29, {d}"); A("s_and_b32 s34, s34, 3"); A(f"s_mul_i32 s34, s34, {4*3072}"); A("s_add_u32 s34, s34, s50")
        for t in range(3): A(f"buffer_load_dwordx4 {vr(RV[d-1]+4*t,4)}, v2, s[4:7], s34 offen offset:{t*1024} sc1")
    A("s_mov_b32 s36, 0xffff0000")
    for d in range(1, 4):
        A(f"s_waitcnt vmcnt({3*(3-d)})")
        for t in range(3):
            for a_ in range(2):
                for h in range(2):
                    y = RV[d-1] + 4*t + 2*a_ + h; x = ACC + 48*a_ + 4*t + 2*h
                    A(f"v_lshlrev_b32 v4, 16, v{y}"); A(f"v_and_b32 v5, s36, v{y}")
                    A(f"v_add_f32 v{x}, v{x}, v4"); A(f"v_add_f32 v{x+1}, v{x+1}, v5")
    for a_ in range(2):
        for t in range(3):
            x = ACC + 48*a_ + 4*t
            A(f"v_cvt_pk_bf16_f32 v{x}, v{x}, v{x+1}"); A(f"v_cvt_pk_bf16_f32 v{x+1}, v{x+2}, v{x+3}")
            A(f"buffer_store_dwordx2 {vr(x,2)}, v3, s[8:11], s{54+a_} offen offset:{t*32}")
    ST("xdone")
    A("s_branch T_FIN")
    A("T_CONV:")
    def xs(nm):
        if stamps and nm in ST.names:
            i = ST.names.index(nm); A(f"s_memtime s[{ST.base+2*i}:{ST.base+2*i+1}]")
    A("s_and_b32 s34, s2, 7"); A("s_mul_i32 s29, s34, 9"); A("s_lshr_b32 s35, s2, 3"); A("s_sub_u32 s35, s35, 24"); A("s_add_u32 s29, s29, s35")
    A("s_mul_i32 s40, s34, 72"); A("s_add_u32 s40, s40, 64"); A("s_add_u32 s40, s40, s35")
    A(f"s_mul_i32 s31, s28, {CS}")
    A("s_lshl_b32 s30, s29, 3"); A("s_add_u32 s30, s30, s28"); A("s_lshl_b32 s32, s30, 12"); A("s_lshl_b32 s41, s40, 12")
    A("v_add_u32 v3, 2, v2")
    A("s_waitcnt lgkmcnt(0)")
    srd(A, 8, 52, NB_IN); srd(A, 12, 54, 1152); srd(A, 16, 46, 2048*1152*2); srd(A, 20, 44, 4096*576*2)
    XB_ = 8*CS
    if not alone:
        A("s_cmp_lg_u32 s28, 7"); A("s_cbranch_scc1 T_P3_G")
        A("v_cmp_ne_u32 vcc, s62, v56")
        for i in range(1, 8): A(f"v_cmp_ne_u32 s[58:59], s{62 + i%2}, v{56+i}"); A("s_or_b64 vcc, vcc, s[58:59]")
        A("s_cmp_eq_u64 vcc, 0"); A("s_cbranch_scc1 T_P3_G")
        A("v_lshlrev_b32 v4, 7, v1"); A(f"s_mov_b32 s39, {WS_FLAG5}")
        poll(A, "T_P3", 4, "s39", sleep, n=4, stride=8192)
    A("s_waitcnt vmcnt(0)")
    signal()
    xs("sig")
    QR = 40; CA = 56; XA = 88; AD = 120; X0 = 128
    A(f"s_add_u32 s33, s32, {WS_XR}")
    A("s_mov_b32 m0, s31"); A("s_nop 0")
    for i in range(4): A(f"buffer_load_dwordx4 v2, s[4:7], s33 offen offset:{i*1024} sc1 lds")
    A(f"s_add_u32 m0, s31, {C0+32}"); A("s_nop 0")
    for i in range(4): A(f"buffer_load_dwordx4 v2, s[8:11], s32 offen offset:{i*1024} lds")
    A(f"s_add_u32 m0, s31, {C1+32}"); A("s_nop 0")
    for i in range(4): A(f"buffer_load_dwordx4 v3, s[8:11], s32 offen offset:{i*1024} lds")
    A("s_lshl_b32 s34, s30, 1")
    A("buffer_load_ushort v5, v14, s[12:15], s34 offen"); A("buffer_load_ushort v6, v14, s[8:11], s32 offen"); A("buffer_load_ushort v7, v14, s[8:11], s32 offen offset:4094")
    A("v_and_b32 v8, 15, v1"); A("v_lshrrev_b32 v9, 4, v1")
    A("v_lshlrev_b32 v10, 5, v8"); A("v_lshl_add_u32 v10, v9, 3, v10")
    A("v_and_b32 v24, 1, v8")
    A("v_add_u32 v25, v8, v24"); A("v_lshl_add_u32 v25, v9, 3, v25"); A("v_lshlrev_b32 v25, 1, v25")
    A(f"v_mul_u32_u24 v24, {C1-C0}, v24"); A("v_sub_u32 v25, v25, v24")
    A(f"s_add_u32 s34, s31, {C1}"); A("v_add_u32 v28, s34, v25")
    for i in range(1, 4): A(f"v_add_u32 v{28+i}, {1024*i}, v28")
    A("v_lshlrev_b32 v24, 5, v8"); A("v_lshlrev_b32 v25, 4, v9"); A("v_sub_u32 v25, v25, v24")
    A(f"s_add_u32 s34, s31, {4064-3584}"); A("v_add_u32 v32, s34, v25")
    A("v_lshl_add_u32 v33, v9, 3, v8"); A("v_sub_u32 v33, 15, v33")
    A("v_bfe_u32 v34, v1, 2, 2"); A(f"v_mul_u32_u24 v34, {CS}, v34")
    A("v_lshl_add_u32 v34, v9, 5, v34"); A("v_and_b32 v25, 3, v1"); A("v_lshl_add_u32 v34, v25, 3, v34")
    A("s_lshl_b32 s34, s28, 9"); A(f"s_add_u32 s34, s34, {C0}"); A("v_add_u32 v34, s34, v34")
    A("v_mul_u32_u24 v35, 2304, v1")
    A("v_mov_b32 v24, 0"); A("v_mov_b32 v25, 0")
    A("v_lshlrev_b32 v11, 3, v1"); A("v_add_u32 v11, s31, v11")
    A("ds_write_b64 v11, v[24:25] offset:4096")
    A("s_mov_b64 exec, 15")
    A(f"ds_write_b64 v11, v[24:25] offset:{C0}"); A(f"ds_write_b64 v11, v[24:25] offset:{C1}")
    A("s_mov_b64 exec, -1")
    A("s_cmp_lg_u32 s28, 2"); A("s_cbranch_scc1 T_XZ0")
    A("v_lshlrev_b32 v4, 3, v1"); A(f"v_add_u32 v4, {XB_}, v4")
    A("ds_write_b64 v4, v[24:25] offset:4096")
    A("s_mov_b64 exec, 15")
    A(f"ds_write_b64 v4, v[24:25] offset:{C0}"); A(f"ds_write_b64 v4, v[24:25] offset:{C1}")
    A("s_mov_b64 exec, -1")
    A("T_XZ0:")
    xs("ctx_ok")
    A("s_waitcnt vmcnt(0)")
    A("v_mov_b32 v24, s31")
    A(f"ds_write_b16 v24, v6 offset:{C1+30}"); A(f"ds_write_b16 v24, v7 offset:{C1+4124}")
    def dfrag(dst, src):
        A(f"v_lshlrev_b32 v25, 16, v{src}")
        for k in range(4):
            A(f"v_cmp_eq_u32 s[36:37], {2*k}, v33"); A(f"v_cmp_eq_u32 vcc, {2*k+1}, v33"); A("s_nop 1")
            A(f"v_cndmask_b32 v{dst+k}, 0, v{src}, s[36:37]"); A(f"v_cndmask_b32 v{dst+k}, v{dst+k}, v25, vcc")
    def late_loads():
        A("s_cmp_gt_u32 s28, 2"); A("s_cbranch_scc1 T_XL")
        A("s_cmp_eq_u32 s28, 1"); A("s_cbranch_scc1 T_XL1")
        A("s_cmp_eq_u32 s28, 2"); A("s_cbranch_scc1 T_XL2")
        A(f"s_mov_b32 m0, {XB_}"); A(f"s_add_u32 s34, s41, {WS_XR}")
        for i in range(4): A(f"buffer_load_dwordx4 v2, s[4:7], s34 offen offset:{i*1024} sc1 lds")
        A("s_branch T_XL")
        A("T_XL2:")
        A(f"s_mov_b32 m0, {XB_+C1+32}"); A("s_nop 0")
        for i in range(4): A(f"buffer_load_dwordx4 v3, s[8:11], s41 offen offset:{i*1024} lds")
        A("s_branch T_XL")
        A("T_XL1:")
        A(f"s_mov_b32 m0, {XB_+C0+32}"); A("s_nop 0")
        for i in range(4): A(f"buffer_load_dwordx4 v2, s[8:11], s41 offen offset:{i*1024} lds")
        A("T_XL:")
        A("s_lshl_b32 s34, s40, 1")
        A(f"buffer_load_ushort v{X0}, v14, s[12:15], s34 offen"); A(f"buffer_load_ushort v{X0+1}, v14, s[8:11], s41 offen"); A(f"buffer_load_ushort v{X0+2}, v14, s[8:11], s41 offen offset:4094")
        A(f"s_add_u32 s34, s41, {WS_QT}"); A("s_lshl_b32 s35, s28, 9"); A("s_add_u32 s34, s34, s35")
        A(f"buffer_load_dwordx2 {vr(X0+4,2)}, v10, s[4:7], s34 offen sc1")
        A(f"s_add_u32 s33, s32, {WS_QT}")
        for w in range(8): A(f"buffer_load_dwordx2 {vr(QR+2*w,2)}, v10, s[4:7], s33 offen offset:{w*512} sc1")
    def late_fix():
        A("s_waitcnt vmcnt(0)")
        A("s_cmp_lg_u32 s28, 2"); A("s_cbranch_scc1 T_XZ")
        A(f"v_mov_b32 v4, {XB_}")
        A(f"ds_write_b16 v4, v{X0+1} offset:{C1+30}"); A(f"ds_write_b16 v4, v{X0+2} offset:{C1+4124}")
        A("T_XZ:")
        A("s_cmp_eq_u32 s28, 0"); A("s_cselect_b32 s34, -1, 0"); A(f"v_and_b32 v{X0}, s34, v{X0}")
        dfrag(AD+4, X0)
    xs("landed")
    def fr(s_, i, n=4, o=0):
        idx = 64*s_ + 4*i
        if idx < 112: return ar(idx + o, n)
        return vr([136, 140, 16, 20][(idx - 112)//4] + o, n)
    def rds(r):
        o = []
        for i in range(8):
            o.append(f"ds_read_b128 {fr(r%2, 8+i)}, v32 offset:{(7-i)*512+64*r}")
            for hh in range(2):
                of = 16*r + 128*(i % 2) + 2*hh
                o.append(f"ds_read2_b32 {fr(r%2, i, 2, 2*hh)}, v{28+i//2} offset0:{of} offset1:{of+1}")
        return o
    def mfs(r, C_=CA, D_=AD):
        o = []
        for k in range(8):
            for i in range(8-k):
                o.append(m16(vr(C_+4*(i+k),4), fr(r%2, i), fr(r%2, 8+k), "0" if (r == 0 and k == 0) else None))
            if r == 0: o.append(m16(vr(C_+4*k,4), vr(D_,4), fr(0, 8+k)))
        return o
    A.ext(rds(0))
    dfrag(AD, 5)
    for r in range(8):
        if r == 7: late_fix()
        A("s_waitcnt lgkmcnt(0)")
        if r == 7:
            A("s_barrier")
            A("s_lshl_b32 s34, s28, 6"); A(f"s_add_u32 s34, s34, {XB_}"); A("s_sub_u32 s34, s34, s31")
            for q_ in range(28, 33): A(f"v_add_u32 v{q_}, s34, v{q_}")
        A.ext(weave(mfs(r), rds(r+1) if r < 7 else rds(0)))
        if r == 0: late_loads()
    A("s_waitcnt lgkmcnt(0)")
    A.ext(mfs(0, XA, AD+4))
    xs("gemm_done")
    A("s_mov_b32 s34, 0xffff0000")
    A(f"s_add_u32 s35, s31, {C0}"); A("v_add_u32 v11, s35, v10")
    for w in range(8):
        a = CA+4*w
        A(f"v_lshlrev_b32 v24, 16, v{QR+2*w}"); A(f"v_and_b32 v25, s34, v{QR+2*w}")
        A(f"v_lshlrev_b32 v4, 16, v{QR+2*w+1}"); A(f"v_and_b32 v5, s34, v{QR+2*w+1}")
        A(f"v_mul_f32 v{a}, v{a}, v24"); A(f"v_mul_f32 v{a+1}, v{a+1}, v25"); A(f"v_mul_f32 v{a+2}, v{a+2}, v4"); A(f"v_mul_f32 v{a+3}, v{a+3}, v5")
        A(f"v_cvt_pk_bf16_f32 v{a}, v{a}, v{a+1}"); A(f"v_cvt_pk_bf16_f32 v{a+1}, v{a+2}, v{a+3}")
        A(f"ds_write_b64 v11, {vr(a,2)} offset:{w*512}")
    A("v_add_u32 v11, s31, v2")
    for w in range(8): A(f"ds_write_b128 v11, {vr(XA+4*w,4)} offset:{(w%4)*1024 + (w//4)*C1}")
    A(f"s_mul_i32 s41, s28, {256*2304}"); A("s_lshl_b32 s34, s29, 4"); A("s_add_u32 s35, s41, s34")
    A("s_and_b32 s34, s28, 3"); A("s_lshl_b32 s34, s34, 10"); A("s_lshr_b32 s33, s28, 2"); A(f"s_mul_i32 s33, s33, {C1}"); A("s_add_u32 s34, s34, s33")
    A("v_add_u32 v11, s34, v2"); A(f"v_add_u32 v15, {4*CS}, v11")
    xs("sent")
    A("s_waitcnt lgkmcnt(0)"); A("s_barrier")
    xs("polled")
    for w in range(8): A(f"ds_read_b128 {vr(XA+4*w,4)}, v{11 if w < 4 else 15} offset:{(w%4)*CS}")
    for blk in range(4):
        for hf in range(2): A(f"ds_read_b64_tr_b16 {vr(CA+4*blk+2*hf,2)}, v34 offset:{hf*4*CS+blk*128}")
    for blk in range(4):
        A(f"s_waitcnt lgkmcnt({6-2*blk})")
        A(f"buffer_store_dwordx4 {vr(CA+4*blk,4)}, v35, s[16:19], s35 offen")
        A(f"s_add_u32 s35, s35, {64*2304}")
    for st_ in (16, 8, 4):
        for r in range(st_): A(f"v_add_f32 v{XA+r}, v{XA+r}, v{XA+st_+r}")
    A("s_mov_b32 s34, 0xffff0000")
    A(f"v_lshlrev_b32 v24, 16, v{X0+4}"); A(f"v_and_b32 v25, s34, v{X0+4}"); A(f"v_lshlrev_b32 v4, 16, v{X0+5}"); A(f"v_and_b32 v5, s34, v{X0+5}")
    A(f"v_mul_f32 v{XA}, v{XA}, v24"); A(f"v_mul_f32 v{XA+1}, v{XA+1}, v25"); A(f"v_mul_f32 v{XA+2}, v{XA+2}, v4"); A(f"v_mul_f32 v{XA+3}, v{XA+3}, v5")
    A(f"v_cvt_pk_bf16_f32 v{XA}, v{XA}, v{XA+1}"); A(f"v_cvt_pk_bf16_f32 v{XA+1}, v{XA+2}, v{XA+3}")
    A("v_mul_u32_u24 v24, 1152, v10")
    A("s_lshl_b32 s34, s40, 1"); A("s_add_u32 s41, s41, s34"); A(f"s_add_u32 s34, s41, {2*2304}")
    A(f"buffer_store_short v{XA}, v24, s[16:19], s41 offen"); A(f"buffer_store_short_d16_hi v{XA}, v24, s[16:19], s41 offen offset:2304")
    A(f"buffer_store_short v{XA+1}, v24, s[16:19], s34 offen"); A(f"buffer_store_short_d16_hi v{XA+1}, v24, s[16:19], s34 offen offset:2304")
    xs("xdone")
    A("T_FIN:")

def k3alone(A, name="k3_kernel"):
    A(khead(name))
    ST = Stamps(A, False)
    A("s_cmp_ge_u32 s2, 256"); A("s_cbranch_scc1 K3_END")
    A("s_load_dwordx2 s[48:49], s[0:1], 112"); A("s_mov_b32 s90, s0"); A("s_mov_b32 s91, s1")
    A("v_lshrrev_b32 v10, 6, v0"); A("v_and_b32 v1, 63, v0"); A("v_readfirstlane_b32 s28, v10"); A("v_lshlrev_b32 v2, 4, v1")
    A("s_mov_b32 s29, 0"); A("s_mov_b32 s30, 0")
    A("s_waitcnt lgkmcnt(0)")
    srd(A, 4, 48, 1 << 28)
    A(f"s_mov_b32 s34, {121 << 20}"); A("v_mov_b32 v22, 0")
    A("buffer_load_dwordx2 v[22:23], v22, s[4:7], s34 offen"); A("s_waitcnt vmcnt(0)")
    tail(A, ST, alone=True)
    A("K3_END:"); A("s_endpgm")
    A(kd(name, 256, 144))
```

```python
from asmlib import *
from k1 import srd, WS_KV, WS_Q, WS_CTX, f32bits, QSCALE
from k1b import m16
import k2c
import k3d
from ka import WS_XR, WS_QT, NB_IN
WS_FLAG = 120 << 20
WS_EPOCH = 121 << 20

def code_touch(A, lab, nbytes, dst, t0, sp=60):
    n = (nbytes + 127) // 128 if isinstance(nbytes, int) else None
    u = lab + "_ct%d" % t0
    A(f"s_getpc_b64 s[{sp}:{sp+1}]")
    A(f"{u}:")
    A(f"s_add_u32 s{sp}, s{sp}, {lab}-{u}")
    A(f"s_addc_u32 s{sp+1}, s{sp+1}, 0")
    A(f"v_lshlrev_b32 v{t0}, 7, v0")
    A(f"v_min_u32 v{t0}, {nbytes}, v{t0}")
    A(f"v_mov_b32 v{t0+1}, s{sp+1}")
    A(f"v_add_co_u32 v{t0}, vcc, s{sp}, v{t0}")
    A("s_nop 1")
    A(f"v_addc_co_u32 v{t0+1}, vcc, 0, v{t0+1}, vcc")
    A(f"global_load_dword v{dst}, v[{t0}:{t0+1}], off")

def f1(A, name="f1_kernel", st_flags="sc1", stamps=False, pf=3, cpf=3, sleep=2, attn_kw={}, ctx_flags="sc1", ahead=2, xn=6, kvpf=3, tfl="sc1", inv=False, sched=1, gtrace=False, kvfront=8, late_pf=True, s1=True, s1pf=True, nost=0, outpf=False, s1t=False, g0t=False, fuse=True, tail_kw={"wpf": False, "gpf": False}, sset="late", wnt=True, wdnt=True, s1nt=False, hip=True, cpf3=True, qroles=True, kvroles=True, wsoff=0):
    A(khead(name))
    ST = Stamps(A, stamps, base=64, srd=4, wave="s28")
    if fuse: ST.skip = ({"first_landed", "stores_done", "k0_landed", "st_issued", "kv_done", "q_done"} if sset == "late" else
                        {"sig", "ctx_ok", "landed", "gemm_done", "sent", "polled", "xdone"})
    A("s_cmp_ge_u32 s2, 256")
    A("s_cbranch_scc1 F1_END")
    ST("start_rt", real=True); ST("start")
    A("s_load_dwordx4 s[44:47], s[0:1], 48")
    A("s_load_dwordx4 s[48:51], s[0:1], 64")
    A("s_load_dwordx2 s[52:53], s[0:1], 80")
    A("s_load_dwordx4 s[56:59], s[0:1], 104")
    A("s_mov_b32 s90, s0"); A("s_mov_b32 s91, s1")
    A("v_lshrrev_b32 v12, 6, v0")
    A("v_and_b32 v1, 63, v0")
    A("v_readfirstlane_b32 s28, v12")
    npre = 0
    if cpf:
        code_touch(A, "F1_CODE0", "F1_END-F1_CODE0", 15, 12); npre = 0
    A("s_lshr_b32 s29, s2, 3"); A("s_and_b32 s29, s29, 7")
    A("s_and_b32 s34, s2, 7"); A("s_lshl_b32 s34, s34, 2"); A("s_lshr_b32 s35, s2, 6"); A("s_add_u32 s30, s34, s35")
    A("s_and_b32 s37, s28, 3")
    A("v_lshrrev_b32 v12, 3, v1")
    A("s_lshl_b32 s34, s37, 3")
    A("v_add_u32 v12, s34, v12")
    A("v_lshrrev_b32 v13, 4, v1")
    A("s_and_b32 s34, s28, 1")
    A("s_lshl_b32 s34, s34, 2")
    A("v_add_u32 v14, s34, v13")
    A("v_and_b32 v10, 7, v1")
    A("v_xor_b32 v14, v14, v10")
    A("v_lshlrev_b32 v14, 4, v14")
    A("v_lshl_add_u32 v2, v12, 10, v14")
    A("v_mul_u32_u24 v3, 1152, v12")
    A("v_add_u32 v3, v3, v14")
    A("s_lshl_b32 s34, s37, 2")
    A("v_add_u32 v12, s34, v13")
    A("v_lshlrev_b32 v12, 13, v12")
    A("s_and_b32 s34, s28, 2")
    A("s_lshl_b32 s34, s34, 1")
    A("v_add_u32 v14, s34, v13")
    A("v_lshlrev_b32 v14, 1, v14")
    A("v_and_b32 v10, 15, v1")
    A("v_xor_b32 v14, v14, v10")
    A("v_lshl_add_u32 v4, v14, 4, v12")
    A("s_lshl_b32 s34, s30, 8")
    A("v_add_u32 v4, s34, v4")
    A("s_lshl_b32 s31, s37, 10")
    A("s_lshl_b32 s32, s29, 18")
    A("s_mov_b32 s33, 0")
    A("s_waitcnt lgkmcnt(0)")
    C, X, UK, UV, WQ, WSS = "s[8:11]", "s[12:15]", "s[16:19]", "s[20:23]", "s[24:27]", "s[4:7]"
    srd(A, 8, 46, 2048*512*2); srd(A, 16, 50, 512*4096*2); srd(A, 20, 52, 512*4096*2)
    WD = "nt" if wdnt else ""
    adv = ["s_add_u32 s32, s32, 128", f"s_add_u32 s33, s33, {64*8192}", "s_xor_b32 s31, s31, 0x10000"]
    def dma_kv(part=None):
        g = []
        for i in range(4):
            g.append([f"s_add_u32 m0, s31, {32768+i*4096}", f"s_add_u32 s34, s33, {i*16*8192}", f"buffer_load_dwordx4 v4, {UK}, s34 offen {WD} lds"])
            g.append([f"s_add_u32 m0, s31, {49152+i*4096}", "s_nop 0", f"buffer_load_dwordx4 v4, {UV}, s34 offen {WD} lds"])
        for i in range(8):
            g.append([f"s_add_u32 m0, s31, {i*4096}", f"s_add_u32 s34, s32, {i*32768}", f"buffer_load_dwordx4 v2, {C}, s34 offen lds"])
        if part is not None: return g[8*part:8*part+8]
        g[-1] = g[-1] + adv
        return g
    SA = [0, 0x20000, 0x10000]; SW = [0x8000, 0xC000, 0x18000]
    def dma_q(j):
        g = []
        for i in range(4):
            g.append([f"s_add_u32 m0, s31, {SW[j%3]+i*4096}", f"s_mov_b32 s34, {(j*64+i*16)*8192}", f"buffer_load_dwordx4 v4, {WQ}, s34 offen lds"])
        for i in range(8):
            g.append([f"s_add_u32 m0, s31, {SA[j%3]+i*4096}", f"s_add_u32 s34, {'s32' if i < 4 else 's36'}, {(i%4)*32*1152 + j*128}", f"buffer_load_dwordx4 v3, {X}, s34 offen lds"])
        return g
    A("s_cmp_ge_u32 s28, 4"); A("s_cbranch_scc1 F1_I1")
    for g in dma_kv(0): A.ext(g)
    A("s_branch F1_I2")
    A("F1_I1:")
    for g in dma_kv(1): A.ext(g)
    A("F1_I2:")
    A.ext(adv)
    srd(A, 12, 44, 2048*576*2); srd(A, 24, 48, 576*4096*2); srd(A, 4, 58, (1 << 28) - wsoff)
    if wsoff: A(f"s_add_u32 s4, s4, {wsoff}"); A("s_addc_u32 s5, s5, 0")
    A("s_or_b32 s34, s2, s28"); A("s_cmp_lg_u32 s34, 0"); A("s_cbranch_scc1 F1_NOEP")
    A("s_memrealtime s[98:99]")
    srd(A, 60, 56, 256)
    A("s_waitcnt lgkmcnt(0)")
    A("s_or_b32 s98, s98, 1")
    A("v_mov_b32 v12, s98"); A("v_mov_b32 v13, s99"); A("v_mov_b32 v14, 0"); A(f"s_mov_b32 s34, {WS_EPOCH}")
    A("s_mov_b64 exec, 1")
    A("buffer_store_dwordx2 v[12:13], v14, s[60:63], 0 offen sc0 sc1")
    A("buffer_store_dwordx2 v[12:13], v14, s[4:7], s34 offen")
    A("s_mov_b64 exec, -1")
    A("v_lshrrev_b32 v13, 4, v1")
    A("F1_NOEP:")
    npf = 0
    touch = []
    if pf == 2:
        A("s_cmp_lt_u32 s28, 4"); A("s_cbranch_scc1 F1_PFD")
        A("v_lshlrev_b32 v9, 7, v1")
        plan = [[(C, 8192, 0), (X, 9216, 0), (X, 9216, 1)], [(UK, 16384, 0), (UK, 16384, 1), (WQ, 18432, 2)],
                [(UV, 16384, 0), (UV, 16384, 1), (UV, 16384, 1)], [(WQ, 18432, 0), (WQ, 18432, 1), (WQ, 18432, 1)]]
        for w in range(4):
            if w < 3: A(f"s_cmp_lg_u32 s37, {w}"); A(f"s_cbranch_scc1 F1_PF{w+1}")
            for (sd, share, k) in plan[w]:
                A(f"s_mul_i32 s34, s2, {share}"); A(f"s_add_u32 s34, s34, {k*8192}")
                A(f"buffer_load_dword v15, v9, {sd}, s34 offen {tfl}")
            A("s_branch F1_PFE")
            if w < 3: A(f"F1_PF{w+1}:")
        A("F1_PFD:")
        A("s_nop 0")
        A("F1_PFE:")
        npf = 3
    elif pf == 3:
        TS = 92
        A(f"s_mov_b32 s{TS+3}, 0x20000")
        A("s_cmp_eq_u32 s37, 3"); A("s_cbranch_scc1 F1_PFQ")
        A("s_cmp_eq_u32 s37, 0"); A("s_cbranch_scc0 F1_PFW")
        A("v_lshlrev_b32 v9, 7, v1"); A("s_lshl_b32 s34, s2, 13")
        A("s_cmp_lt_u32 s28, 4"); A("s_cbranch_scc1 F1_PFC")
        A(f"buffer_load_dword v15, v9, {C}, s34 offen {tfl}")
        A("F1_PFC:")
        A(f"s_mov_b32 s{TS}, s44"); A(f"s_mov_b32 s{TS+1}, s45"); A(f"s_mov_b32 s{TS+2}, {2048*576*2}")
        A(f"v_min_u32 v9, {72//xn - 1}, v1"); A("v_lshlrev_b32 v9, 7, v9"); A("s_mul_i32 s96, s2, 9216"); A(f"s_mov_b32 s97, {9216//xn}")
        A("s_branch F1_PFD")
        if wnt:
            A("F1_PFW:")
            A("s_cmp_eq_u32 s37, 1"); A(f"s_cselect_b32 s{TS}, s50, s52"); A(f"s_cselect_b32 s{TS+1}, s51, s53"); A(f"s_mov_b32 s{TS+2}, {512*4096*2}")
            A("s_lshr_b32 s35, s2, 3"); A("s_and_b32 s36, s2, 7"); A("s_lshl_b32 s36, s36, 10"); A("s_lshl_b32 s96, s35, 14"); A("s_add_u32 s96, s96, s36")
            A("v_bfe_u32 v14, v1, 3, 1"); A("v_and_b32 v12, 7, v1"); A("v_lshlrev_b32 v12, 7, v12"); A("v_lshl_add_u32 v9, v14, 13, v12")
            A("v_lshrrev_b32 v14, 4, v1"); A(f"v_min_u32 v14, {ahead-2}, v14"); A("v_lshl_add_u32 v12, v14, 19, v9"); A(f"s_add_u32 s34, s96, {64*8192}")
            A("s_cmp_lt_u32 s28, 4"); A("s_cbranch_scc1 F1_PFW2")
            A(f"buffer_load_dword v15, v12, s[{TS}:{TS+3}], s34 offen nt")
            A("F1_PFW2:")
            A(f"s_add_u32 s96, s96, {64*8192*ahead}"); A(f"s_mov_b32 s97, {64*8192}")
            A("s_branch F1_PFD")
            A("F1_PFQ:")
            A(f"s_mov_b32 s{TS}, s48"); A(f"s_mov_b32 s{TS+1}, s49"); A(f"s_mov_b32 s{TS+2}, {576*4096*2}")
            A(f"v_min_u32 v9, {144//xn - 1}, v1"); A("v_lshlrev_b32 v9, 7, v9"); A(f"s_mul_i32 s96, s2, {18432//xn}"); A(f"s_mov_b32 s97, {576*8192//xn}")
            A("s_cmp_lt_u32 s28, 4"); A("s_cbranch_scc1 F1_PFD")
            A(f"buffer_load_dword v15, v9, s[{TS}:{TS+3}], s96 offen {tfl}")
        else:
            A("F1_PFW:")
            A("s_cmp_eq_u32 s37, 1"); A(f"s_cselect_b32 s{TS}, s50, s52"); A(f"s_cselect_b32 s{TS+1}, s51, s53"); A(f"s_mov_b32 s{TS+2}, {512*4096*2}")
            A(f"v_min_u32 v9, {16*(ahead-1)-1}, v1"); A("v_lshlrev_b32 v9, 7, v9"); A(f"s_mul_i32 s34, s2, {2048*(ahead-1)}"); A(f"s_add_u32 s34, s34, {64*8192}")
            A("s_cmp_lt_u32 s28, 4"); A("s_cbranch_scc1 F1_PFW2")
            A(f"buffer_load_dword v15, v9, s[{TS}:{TS+3}], s34 offen {tfl}")
            A("F1_PFW2:")
            A("v_min_u32 v9, 15, v1"); A("v_lshlrev_b32 v9, 7, v9"); A("s_lshl_b32 s96, s2, 11"); A(f"s_add_u32 s96, s96, {64*8192*ahead}"); A(f"s_mov_b32 s97, {64*8192}")
            A("s_branch F1_PFD")
            A("F1_PFQ:")
            A(f"s_mov_b32 s{TS}, s48"); A(f"s_mov_b32 s{TS+1}, s49"); A(f"s_mov_b32 s{TS+2}, {576*4096*2}")
            A(f"v_min_u32 v9, {144//xn//16*16//16*16//16 if False else 0}, v1") if False else None
            A(f"v_min_u32 v9, {144//xn - 1}, v1"); A("v_lshlrev_b32 v9, 7, v9"); A(f"s_mul_i32 s96, s2, {18432//xn}"); A(f"s_mov_b32 s97, {576*8192//xn}")
            A("s_cmp_lt_u32 s28, 4"); A("s_cbranch_scc1 F1_PFD")
            A(f"buffer_load_dword v15, v9, s[{TS}:{TS+3}], s96 offen {tfl}")
        A("F1_PFD:")
        touch = [[f"buffer_load_dword v15, v9, s[{TS}:{TS+3}], s96 offen {tfl}", "s_add_u32 s96, s96, s97"]]
        if wnt:
            touch = [["s_sub_u32 s34, s37, 1", "s_cmp_gt_u32 s34, 1", "s_cbranch_scc1 F1_TX", f"buffer_load_dword v15, v9, s[{TS}:{TS+3}], s96 offen nt", "s_branch F1_TY", "F1_TX:",
                      f"buffer_load_dword v15, v9, s[{TS}:{TS+3}], s96 offen {tfl}", "F1_TY:", "s_add_u32 s96, s96, s97"]]
        npf = 1
    A("v_and_b32 v12, 15, v1"); A("v_lshlrev_b32 v12, 7, v12")
    A("s_lshr_b32 s34, s28, 2"); A("s_lshl_b32 s34, s34, 14"); A("v_add_u32 v12, s34, v12")
    A("v_bfe_u32 v14, v1, 1, 3"); A("v_xor_b32 v14, v14, v13")
    for ks in range(2):
        A(f"v_xor_b32 v11, {4*ks}, v14"); A(f"v_lshl_add_u32 v{5+ks}, v11, 4, v12")
    def addrW(dst, nb_sgpr2):
        A("v_bfe_u32 v12, v1, 2, 2"); A("v_lshl_add_u32 v14, v13, 3, v12"); A("v_lshlrev_b32 v14, 8, v14")
        A("v_and_b32 v8, 1, v13"); A("v_lshl_add_u32 v12, v8, 2, v12"); A("v_lshlrev_b32 v12, 1, v12")
        A(f"v_xor_b32 v12, {nb_sgpr2}, v12"); A("v_lshl_add_u32 v14, v12, 4, v14")
        A("v_and_b32 v12, 3, v1"); A(f"v_lshl_add_u32 v{dst}, v12, 3, v14")
    A("s_lshl_b32 s38, s37, 2")
    addrW(7, "s38")
    A("v_xor_b32 v8, 32, v7")
    A("v_lshlrev_b32 v11, 4, v1")
    for r in range(16, 144): A(f"v_mov_b32 v{r}, 0")
    for r in range(0, 112): A(f"v_accvgpr_write_b32 a{r}, 0")
    WS_ = [64, 80]; RING = 96; R = 4
    def accK(T, kb): return 32*T + 4*kb
    def accV(T, kb): return 16 + 4*(2*kb + T)
    def accQ(nb, qb): return 80 + 16*qb + 4*nb
    def wreads_kv(ks):
        b = WS_[ks]
        return [f"ds_read_b64_tr_b16 {ar(b+8*mat+4*nb+2*half,2)}, v{7+nb} offset:{32768+16384*mat+(32*ks+4*half)*256}"
                for mat in range(2) for nb in range(2) for half in range(2)]
    def c_read(i):
        ks, kb = divmod(i, 8)
        return f"ds_read_b128 {ar(RING+4*(i%R),4)}, v{5+ks} offset:{kb*2048}"
    def c_mf(i):
        ks, kb = divmod(i, 8); b = WS_[ks]; f = ar(RING+4*(i%R),4)
        return [m16(ar(accK(0,kb),4), ar(b,4), f), m16(ar(accK(1,kb),4), ar(b+4,4), f),
                m16(vr(accV(0,kb),4), f, ar(b+8,4)), m16(vr(accV(1,kb),4), f, ar(b+12,4))]
    TAIL = 2
    def step(nitems, per_ks, wreads, rdf, mff, prev_tail, dma, extra, toggle, first_wait, entry=None, front=99):
        A(first_wait)
        if entry: A(entry)
        if gtrace:
            A("s_memtime s[100:101]")
        A("s_barrier")
        if gtrace:
            A("s_memtime s[88:89]"); A("s_waitcnt lgkmcnt(0)"); A("v_mov_b32 v14, 0"); A("v_mov_b32 v12, s100"); A("v_mov_b32 v13, s88")
            A("buffer_store_dwordx2 v[12:13], v14, s[4:7], s87 offen"); A("s_add_u32 s87, s87, 8")
        q = []
        def issue(instrs, tag):
            for x in instrs: A(x); q.append(tag)
        def wait_for(tags):
            last = max(i for i, t in enumerate(q) if t in tags)
            A(f"s_waitcnt lgkmcnt({min(len(q) - 1 - last, 15)})")
        if sched == 0:
            issue(wreads(0), "w0")
            nxt = 0
            while nxt < R - TAIL:
                issue([rdf(nxt)], nxt); nxt += 1
            half = len(prev_tail) // TAIL
            dq = list(dma)
            for t in range(TAIL):
                take = dq[:(len(dma)+TAIL-1)//TAIL]; dq = dq[len(take):]
                A.ext(weave(prev_tail[t*half:(t+1)*half], take))
                issue([rdf(nxt)], nxt); nxt += 1
            fill = []
        else:
            rl = [(x, "w0") for x in wreads(0)]
            rl = rl[:4] + [(rdf(0), 0)] + rl[4:] + [(rdf(1), 1)]
            nxt = 2
            n = len(prev_tail)
            for t, m in enumerate(prev_tail):
                A(m)
                k = 2 if t < 2 else 1
                for _ in range(k):
                    if rl: x, tag = rl.pop(0); issue([x], tag)
                if t == n//2 - 1 or t == n - 1:
                    while t == n - 1 and rl: x, tag = rl.pop(0); issue([x], tag)
                    issue([rdf(nxt)], nxt); nxt += 1
            fill = list(dma)
        ex = fill + list(extra)
        w1 = wreads(1)
        nslots = nitems - TAIL
        for i in range(nitems - TAIL):
            wait_for({i, f"w{i // per_ks}"})
            mm = mff(i)
            if sched == 0:
                A.ext(mm)
                if nxt < nitems:
                    issue([rdf(nxt)], nxt); nxt += 1
                if i == 1: issue(w1, "w1")
                if ex and i >= 2: A.ext(ex.pop(0))
            else:
                nw = min(len(w1), -(-8 // max(per_ks - 2, 1))) if i < per_ks - 1 else len(w1)
                ne = -(-len(ex) // max(min(nslots, front) - i, 1))
                A(mm[0])
                issue(w1[:(nw+1)//2], "w1")
                A(mm[1])
                issue(w1[(nw+1)//2:nw], "w1"); w1 = w1[nw:]
                A(mm[2])
                if ne: A.ext(ex.pop(0))
                A(mm[3])
                if nxt < nitems:
                    issue([rdf(nxt)], nxt); nxt += 1
                for _ in range(ne - 1): A.ext(ex.pop(0))
        for e in ex: A.ext(e)
        A.ext(toggle)
        return [m for i in range(nitems-TAIL, nitems) for m in mff(i)]
    tog = [f"v_xor_b32 v{r}, 0x10000, v{r}" for r in (5,6,7,8)]
    kv_tail = [m for i in range(16-TAIL, 16) for m in c_mf(i)]
    if gtrace:
        A("s_lshl_b32 s87, s2, 3"); A("s_add_u32 s87, s87, s28"); A("s_lshl_b32 s87, s87, 8"); A(f"s_add_u32 s87, s87, {WS_STAMP + (10 << 20)}")
    if s1:
        A("s_load_dwordx2 s[44:45], s[90:91], 8"); A("s_load_dwordx2 s[48:49], s[90:91], 16"); A("s_load_dwordx2 s[52:53], s[90:91], 0")
        for b_ in (46, 50, 54): A(f"s_mov_b32 s{b_}, {NB_IN}"); A(f"s_mov_b32 s{b_+1}, 0x20000")
    A("s_mov_b32 s41, 0")
    A(f"s_waitcnt vmcnt({npf}) lgkmcnt(0)")
    ST("first_landed")
    A("s_cmp_ge_u32 s28, 4"); A("s_cbranch_scc1 F1_KVENTRY1")
    A("s_waitcnt vmcnt(0)")
    A("s_branch F1_KVENTRY0")
    A("F1_CODE0:")
    def qbases():
        A(f"s_mul_i32 s32, s29, {128*1152}"); A(f"s_sub_u32 s36, {15*128*1152}, s32"); A("s_lshl_b32 s31, s37, 10")
    for g in range(2):
        A(f"F1_KVLOOP{g}:")
        step(16, 8, wreads_kv, c_read, c_mf, kv_tail, dma_kv() if g == 0 else touch, [], tog,
             "s_waitcnt vmcnt(0) lgkmcnt(0)" if g == 0 else "s_waitcnt lgkmcnt(0)", entry=f"F1_KVENTRY{g}:", front=kvfront)
        A("s_add_u32 s41, s41, 1"); A("s_cmp_lt_u32 s41, 7"); A(f"s_cbranch_scc1 F1_KVLOOP{g}")
        qbases()
        t2 = []
        if s1 and s1pf:
            t2 = [["v_lshlrev_b32 v9, 7, v1", "s_mul_i32 s34, s2, 9216", "s_cmp_eq_u32 s37, 3", "s_cbranch_scc1 F1_T3",
                   "s_cmp_eq_u32 s37, 1", "s_cbranch_scc1 F1_T1", "s_cmp_eq_u32 s37, 2", "s_cbranch_scc1 F1_T2",
                   "buffer_load_dword v15, v9, s[44:47], s34 offen sc1", "s_branch F1_T4",
                   "F1_T1:", "buffer_load_dword v15, v9, s[48:51], s34 offen sc1", "s_branch F1_T4",
                   "F1_T2:", "buffer_load_dword v15, v9, s[52:55], s34 offen sc1", "s_branch F1_T4",
                   "F1_T3:", "v_min_u32 v9, 896, v9", "s_add_u32 s34, s34, 8192",
                   "buffer_load_dword v15, v9, s[44:47], s34 offen sc1", "buffer_load_dword v15, v9, s[48:51], s34 offen sc1",
                   "buffer_load_dword v15, v9, s[52:55], s34 offen sc1", "F1_T4:"]]
        step(16, 8, wreads_kv, c_read, c_mf, kv_tail, dma_q(0) + dma_q(1) if g == 0 else t2, [], tog,
             "s_waitcnt vmcnt(0) lgkmcnt(0)" if g == 0 else "s_waitcnt lgkmcnt(0)")
        if g == 0: A("s_branch F1_KVDONE")
    A("F1_KVDONE:")
    ST("kv_done")
    A("s_load_dwordx2 s[16:17], s[90:91], 88"); A("s_load_dwordx2 s[20:21], s[90:91], 32")
    A(f"s_mov_b32 s18, {4096*576*2}"); A(f"s_mov_b32 s22, {2048*576*2}")
    if s1:
        A("s_load_dwordx2 s[92:93], s[90:91], 24")
        A("s_mov_b32 s94, 4608"); A("s_mov_b32 s95, 0x20000")
        A("s_lshl_b32 s96, s2, 1"); A("s_add_u32 s96, s96, s28"); A("s_sub_u32 s96, s96, 1")
        A("s_add_u32 s34, s2, 512"); A("s_cmp_eq_u32 s28, 3"); A("s_cselect_b32 s96, s34, s96")
        A("s_sub_u32 s34, s28, 1"); A("s_cmp_lt_u32 s34, 3"); A("s_cselect_b32 s96, s96, 999")
    A("s_mov_b32 s8, s56"); A("s_mov_b32 s9, s57"); A("s_mov_b32 s10, 256")
    A("s_lshr_b32 s34, s28, 1"); A("s_lshl_b32 s34, s34, 13"); A("s_lshr_b32 s35, s28, 2"); A("s_lshl_b32 s35, s35, 14"); A("s_sub_u32 s34, s34, s35")
    for r in (5, 6): A(f"v_add_u32 v{r}, s34, v{r}")
    A("s_and_b32 s39, s28, 1"); A("s_lshl_b32 s38, s39, 3")
    A("v_lshrrev_b32 v13, 4, v1")
    addrW(7, "s38")
    A("v_xor_b32 v8, 32, v7"); A("v_xor_b32 v9, 64, v7"); A("v_xor_b32 v10, 96, v7")
    A("s_lshl_b32 s40, s30, 20"); A("s_lshl_b32 s34, s29, 16"); A("s_add_u32 s40, s40, s34")
    A("s_lshr_b32 s34, s28, 2"); A("s_lshl_b32 s34, s34, 15"); A("s_add_u32 s40, s40, s34")
    A("s_lshl_b32 s34, s37, 10"); A("s_add_u32 s42, s40, s34")
    A("s_lshl_b32 s34, s37, 11"); A("s_add_u32 s43, s40, s34"); A("s_add_u32 s43, s43, 0x80000")
    def wreads_q(ks):
        b = WS_[ks]
        return [f"ds_read_b64_tr_b16 {ar(b+4*nb+2*half,2)}, v{7+nb} offset:{32768+(32*ks+4*half)*256}" for nb in range(4) for half in range(2)]
    def x_read(i):
        ks, qb = divmod(i, 4)
        return f"ds_read_b128 {ar(RING+4*(i%R),4)}, v{5+ks} offset:{qb*2048}"
    def x_mf(i):
        ks, qb = divmod(i, 4); b = WS_[ks]; f = ar(RING+4*(i%R),4)
        return [m16(vr(accQ(nb,qb),4), ar(b+4*nb,4), f) for nb in range(4)]
    def kv_store(idx):
        o = []
        if idx < 8:
            kp, T = idx >> 1, idx & 1
            src = [accV(T,2*kp)+r for r in range(4)] + [accV(T,2*kp+1)+r for r in range(4)]
            off = kp*8192 + T*1024; base = "s43"
        else:
            kb = idx - 8
            src = [16 + 8*(kb % 4) + r for r in range(8)]
            for r in range(4): o.append(f"v_accvgpr_read_b32 v{src[r]}, a{accK(0,kb)+r}")
            for r in range(4): o.append(f"v_accvgpr_read_b32 v{src[4+r]}, a{accK(1,kb)+r}")
            off = kb*4096; base = "s42"
        d = src[0]
        o += [f"v_cvt_pk_bf16_f32 v{d+j}, v{src[2*j]}, v{src[2*j+1]}" for j in range(4)]
        o.append(f"s_add_u32 s34, {base}, {off}")
        if nost == 2 or (nost == 1 and idx % 2): o.append("buffer_load_dword v15, v11, s[4:7], 0 offen")
        else: o.append(f"buffer_store_dwordx4 {vr(d,4)}, v11, {WSS}, s34 offen {st_flags}")
        return o
    def togq(j):
        da = SA[(j+1) % 3] - SA[j % 3]; dw = SW[(j+1) % 3] - SW[j % 3]
        return [f"v_add_u32 v{r}, {da & 0xffffffff}, v{r}" for r in (5, 6)] + [f"v_add_u32 v{r}, {dw & 0xffffffff}, v{r}" for r in (7, 8, 9, 10)]
    A("s_cmp_ge_u32 s28, 4"); A("s_cbranch_scc1 F1_Q1")
    for g in range(2):
        if g: A("F1_Q1:")
        prev = kv_tail
        for j in range(9):
            loader = (j < 4) == (g == 0)
            st0 = 4*(j % 4)
            ex = []
            if not qroles:
                ex = (dma_q(j+2)[6*g:6*g+6] if j <= 6 else []) + ([kv_store(2*j), kv_store(2*j+1)] if j < 8 else [])
            elif loader: ex = dma_q(j+2) if j <= 6 else []
            elif j < 8: ex = [kv_store(st0 + k) for k in range(4)]
            if g == 0 and j == 7 and not gtrace:
                ex.append(["v_mov_b32 v14, 0", "s_cmp_lg_u32 s28, 0", "s_cbranch_scc1 F1_NOEL",
                           "buffer_load_dwordx2 v[2:3], v14, s[8:11], 0 offen sc0 sc1", "F1_NOEL:"])
            if g == 0 and j == 8 and s1:
                blk = ["s_cmp_ge_u32 s96, 576", "s_cbranch_scc1 F1_NOS1L",
                       "s_mul_i32 s34, s96, 3641", "s_lshr_b32 s34, s34, 16", "s_mul_i32 s35, s34, 18", "s_sub_u32 s35, s96, s35",
                       "v_and_b32 v76, 3, v1", "s_lshl_b32 s35, s35, 2", "v_add_u32 v76, s35, v76",
                       "v_lshrrev_b32 v77, 2, v1", "s_lshl_b32 s34, s34, 4", "v_add_u32 v77, s34, v77",
                       f"v_mul_u32_u24 v78, {4*1152}, v77", "v_lshl_add_u32 v78, v76, 4, v78", f"v_subrev_u32 v79, {3*1152}, v78",
                       "v_lshlrev_b32 v4, 6, v76"]
                blk += [f"buffer_load_dwordx4 {ar(32+4*i,4)}, v4, s[92:95], 0 offen offset:{16*i}" for i in range(4)]
                blk += [f"buffer_load_dwordx4 {vr(16+4*r,4)}, v79, s[44:47], 0 offen offset:{r*1152}" for r in range(3)]
                for base, sd in ((28, 44), (44, 48), (60, 52)):
                    blk += [f"buffer_load_dwordx4 {vr(base+4*r,4)}, v78, s[{sd}:{sd+3}], 0 offen offset:{r*1152} {'nt' if (s1nt and sd != 44) else ''}" for r in range(4)]
                ex.append(blk + ["F1_NOS1L:"])
            if g == 0: w = "vmcnt(12) " if j <= 4 else ("vmcnt(4) " if j == 5 else "")
            else: w = "" if j <= 5 else ("vmcnt(12) " if j <= 7 else "vmcnt(0) ")
            if not qroles:
                if j < 2: w = ("vmcnt(12) " if j == 0 else "vmcnt(8) ") if g == 0 else ""
                elif j <= 7: w = "vmcnt(10) "
                else: w = "vmcnt(4) " if g == 1 else "vmcnt(5) "
                if j == 8: w = "vmcnt(4) "
            if gtrace: w = "vmcnt(0) " if w == "vmcnt(0) " else (w.replace("12", "13").replace("t(4", "t(5") if w else "")
            prev = step(8, 4, wreads_q, x_read, x_mf, prev, ex, [], togq(j) if j < 8 else [], f"s_waitcnt {w}lgkmcnt(0)")
        A("s_waitcnt lgkmcnt(0)")
        A.ext(prev)
        if g == 0: A("s_branch F1_QDONE")
    A("F1_QDONE:")
    ST("q_done")
    if outpf:
        A("s_load_dwordx2 s[24:25], s[90:91], 96"); A(f"s_mov_b32 s26, {2048*1152*2}")
    A(f"s_mov_b32 s36, {QSCALE}")
    A("s_lshr_b32 s34, s28, 1")
    A("s_and_b32 s35, s34, 1"); A("s_lshl_b32 s35, s35, 14")
    A("s_lshr_b32 s34, s34, 1"); A("s_lshl_b32 s34, s34, 17"); A("s_add_u32 s34, s34, s35")
    A("s_lshl_b32 s35, s39, 11"); A("s_add_u32 s34, s34, s35")
    A("v_add_u32 v12, s34, v11")
    if cpf: code_touch(A, "F1_ATTN", "F1_END-F1_ATTN", 15, 8)
    for qb in range(4):
        for j in range(2):
            src = accQ(2*j, qb)
            for r in range(8): A(f"v_mul_f32 v{src+r}, s36, v{src+r}")
            for r in range(4): A(f"v_cvt_pk_bf16_f32 v{src+r}, v{src+2*r}, v{src+2*r+1}")
            A(f"ds_write_b128 v12, {vr(src,4)} offset:{(qb>>1)*8192 + ((qb&1)*4 + j)*1024}")
    A("s_lshl_b32 s60, s30, 10"); A(f"s_add_u32 s60, s60, {WS_FLAG}")
    A("s_lshl_b32 s61, s29, 7"); A("s_add_u32 s61, s61, s60")
    k2c.attn_setup(A)
    A("s_waitcnt vmcnt(0) lgkmcnt(0)")
    A("s_barrier")
    ST("stores_done")
    if gtrace:
        A("s_mov_b32 s98, 0")
    else:
        A("v_readfirstlane_b32 s98, v2"); A("v_readfirstlane_b32 s99, v3")
    A("v_mov_b32 v2, v11")
    A("s_cmp_lg_u32 s28, 0")
    A("s_cbranch_scc1 F1_NOSIG")
    A("s_mov_b32 s63, 0x40000")
    A("v_mov_b32 v14, 0")
    A("F1_EPL:")
    A("s_cmp_lg_u32 s98, 0"); A("s_cbranch_scc1 F1_EPOK")
    A("buffer_load_dwordx2 v[12:13], v14, s[8:11], 0 offen sc0 sc1")
    A("s_waitcnt vmcnt(0)")
    A("v_readfirstlane_b32 s98, v12"); A("v_readfirstlane_b32 s99, v13")
    A("s_sub_u32 s63, s63, 1"); A("s_cmp_lg_u32 s63, 0"); A("s_cbranch_scc1 F1_EPL")
    A("F1_EPOK:")
    A("v_mov_b32 v12, s98"); A("v_mov_b32 v13, s99")
    A("s_mov_b64 exec, 1")
    A("buffer_store_dwordx2 v[12:13], v14, s[4:7], s61 offen sc0 sc1")
    A("s_mov_b64 exec, -1")
    A("F1_NOSIG:")
    A("s_lshr_b32 s34, s28, 2"); A("s_lshl_b32 s34, s34, 17"); A("s_and_b32 s47, s28, 3"); A("s_lshl_b32 s47, s47, 13")
    A("s_add_u32 s34, s34, s47"); A("v_add_u32 v14, s34, v2")
    for i in range(8): A(f"ds_read_b128 {ar(4*i,4)}, v14 offset:{i*1024}")
    if s1:
        A("s_cmp_ge_u32 s96, 576"); A("s_cbranch_scc1 F1_NOS1")
        K_, V_, Q_, W_, KF, O_ = 16, 44, 60, 80, 84, 92
        if fuse:
            A("s_lshl_b32 s15, s28, 13"); A("s_add_u32 s15, s15, 0x8000")
            A("v_and_b32 v78, 3, v1"); A("v_lshlrev_b32 v78, 10, v78"); A("v_add_u32 v78, s15, v78")
            A("v_lshrrev_b32 v77, 2, v1"); A("v_lshlrev_b32 v77, 3, v77"); A("v_add_u32 v79, v78, v77"); A("v_sub_u32 v78, v78, v77"); A("v_add_u32 v78, 120, v78")
        else:
            A("v_lshlrev_b32 v78, 15, v76"); A("v_lshl_add_u32 v79, v77, 3, v78")
            A("v_lshlrev_b32 v77, 3, v77"); A("v_sub_u32 v78, v78, v77"); A("v_add_u32 v78, 4088, v78")
        A("s_mov_b32 s12, 0xffff0000"); A("s_mov_b32 s13, 0x05040100"); A("s_mov_b32 s14, 0x07060302")
        def unp(dst, src, hi): return f"v_and_b32 v{dst}, s12, v{src}" if hi else f"v_lshlrev_b32 v{dst}, 16, v{src}"
        for c in range(8):
            d, hi = c // 2, c % 2
            A(f"v_accvgpr_read_b32 v{W_+1}, a{32+2*c}"); A(f"v_accvgpr_read_b32 v{W_+3}, a{33+2*c}")
            for r in range(7): A(unp(KF+r, K_+4*r+d, hi))
            A(unp(W_, W_+1, 0)); A(unp(W_+1, W_+1, 1)); A(unp(W_+2, W_+3, 0)); A(unp(W_+3, W_+3, 1))
            for p_ in range(4):
                A(f"v_mul_f32 v{O_+p_}, v{KF+p_+3}, v{W_}")
                for u in range(1, 4): A(f"v_fmac_f32 v{O_+p_}, v{KF+p_+3-u}, v{W_+u}")
            for p_ in range(4): A(unp(KF+p_, V_+4*p_+d, hi))
            for p_ in range(4): A(f"v_mul_f32 v{O_+p_}, v{O_+p_}, v{KF+p_}")
            t = 96 + 4*c
            A(f"v_cvt_pk_bf16_f32 v{t}, v{O_+3}, v{O_+2}"); A(f"v_cvt_pk_bf16_f32 v{t+1}, v{O_+1}, v{O_}")
            A(f"v_perm_b32 v{t+2}, v{Q_+4+d}, v{Q_+d}, s{13+hi}"); A(f"v_perm_b32 v{t+3}, v{Q_+12+d}, v{Q_+8+d}, s{13+hi}")
            if fuse:
                A(f"ds_write_b64 v78, {vr(t,2)} offset:{c*128}"); A(f"ds_write_b64 v79, {vr(t+2,2)} offset:{4096 + c*128}")
            else:
                A(f"s_mov_b32 s34, {WS_XR + c*4096}"); A(f"s_mov_b32 s47, {WS_QT + c*4096}")
                A(f"buffer_store_dwordx2 {vr(t,2)}, v78, s[4:7], s34 offen"); A(f"buffer_store_dwordx2 {vr(t+2,2)}, v79, s[4:7], s47 offen")
        if fuse:
            A("v_add_u32 v78, s15, v2")
            for i in range(8): A(f"ds_read_b128 {vr(16+4*i,4)}, v78 offset:{i*1024}")
            A("v_lshrrev_b32 v76, 3, v1"); A("v_lshlrev_b32 v76, 12, v76"); A("v_and_b32 v77, 7, v1"); A("v_lshl_add_u32 v76, v77, 4, v76")
            A("s_mul_i32 s34, s96, 3641"); A("s_lshr_b32 s34, s34, 16"); A("s_mul_i32 s47, s34, 18"); A("s_sub_u32 s47, s96, s47")
            A("s_lshl_b32 s47, s47, 17"); A("s_lshl_b32 s34, s34, 7")
            A(f"s_add_u32 s13, s47, {WS_QT}"); A("s_add_u32 s13, s13, s34")
            A(f"s_add_u32 s12, s47, {WS_XR + 4096 - 128}"); A("s_sub_u32 s12, s12, s34")
            for i in range(8):
                A(f"s_waitcnt lgkmcnt({7 - i})")
                A(f"buffer_store_dwordx4 {vr(16+4*i,4)}, v76, s[4:7], s{12 + i//4} offen sc1")
                A(f"s_add_u32 s{12 + i//4}, s{12 + i//4}, 32768")
        A("s_nop 1")
        A("F1_NOS1:")
    k2c.attn_init(A)
    A("s_cmp_lg_u32 s28, 0")
    A("s_cbranch_scc1 F1_OTHER")
    A("v_and_b32 v14, 7, v1"); A("v_lshlrev_b32 v14, 7, v14")
    A("s_mov_b32 s63, 0x40000")
    A("F1_POLL:")
    A("buffer_load_dwordx2 v[12:13], v14, s[4:7], s60 offen sc0 sc1")
    A("s_waitcnt vmcnt(0)")
    A("v_cmp_ne_u32 vcc, s98, v12")
    A("v_cmp_ne_u32 s[100:101], s99, v13")
    A("s_or_b64 vcc, vcc, s[100:101]")
    A("s_cmp_eq_u64 vcc, 0")
    A("s_cbranch_scc1 F1_GOT")
    A(f"s_sleep {sleep}")
    A("s_sub_u32 s63, s63, 1")
    A("s_cmp_lg_u32 s63, 0")
    A("s_cbranch_scc1 F1_POLL")
    A("F1_GOT:")
    if inv:
        A("buffer_inv sc1")
        A("s_waitcnt vmcnt(0)")
    A("s_branch F1_WAITED")
    A("F1_OTHER:")
    A("F1_WAITED:")
    if s1t:
        A("s_load_dwordx2 s[8:9], s[90:91], 8"); A("s_load_dwordx2 s[12:13], s[90:91], 16"); A("s_load_dwordx2 s[24:25], s[90:91], 0"); A("s_load_dwordx2 s[92:93], s[90:91], 24")
        for b_ in (10, 14, 26): A(f"s_mov_b32 s{b_}, {NB_IN}")
        A("s_mov_b32 s94, 4608"); A("s_mov_b32 s95, 0x20000"); A("s_mov_b32 s40, 999")
    if late_pf:
        if hip:
            A("s_cmp_ge_u32 s29, 4"); A("s_cselect_b32 s94, 3072, 0"); A("s_cselect_b32 s95, 1536, 0"); A("s_cselect_b32 s34, 5, 0"); A("s_cselect_b32 s47, 2, 0")
            A("v_min_u32 v22, s34, v1"); A("v_lshlrev_b32 v22, 7, v22"); A("v_min_u32 v0, s47, v1"); A("v_lshlrev_b32 v0, 7, v0")
            A("s_and_b32 s34, s29, 3"); A("s_lshr_b32 s47, s2, 6"); A("s_lshl_b32 s47, s47, 2"); A("s_add_u32 s34, s34, s47"); A("s_lshl_b32 s34, s34, 3")
            A("s_and_b32 s47, s2, 7"); A("s_add_u32 s34, s34, s47")
            A("s_mul_i32 s96, s34, 36864"); A("s_mul_i32 s97, s34, 18432"); A("s_and_b32 s47, s28, 3")
            A("s_mul_i32 s34, s47, 768"); A("s_add_u32 s96, s96, s34"); A("s_mul_i32 s34, s47, 384"); A("s_add_u32 s97, s97, s34")
        else:
            A("v_min_u32 v22, 2, v1"); A("v_lshlrev_b32 v22, 7, v22"); A("v_min_u32 v0, 1, v1"); A("v_lshlrev_b32 v0, 7, v0")
            A("s_and_b32 s47, s28, 3"); A("s_mul_i32 s96, s2, 18432"); A("s_mul_i32 s34, s47, 384"); A("s_add_u32 s96, s96, s34")
            A("s_mul_i32 s97, s2, 9216"); A("s_mul_i32 s34, s47, 192"); A("s_and_b32 s34, s34, 0xff80"); A("s_add_u32 s97, s97, s34")
    A("s_waitcnt lgkmcnt(0)")
    A("s_barrier")
    ST("synced")
    g1x = []
    if late_pf:
        g1x = ["buffer_load_dword v23, v22, s[16:19], s96 offen sc1", "s_add_u32 s96, s96, s94" if hip else "s_add_u32 s96, s96, 1536",
               "buffer_load_dword v23, v0, s[20:23], s97 offen sc1"]
        if s1t: g1x += [f"buffer_load_dword v23, v0, s[{b_}:{b_+3}], s97 offen sc1" for b_ in (8, 12, 24)]
        g1x += ["s_add_u32 s97, s97, s95" if hip else "s_add_u32 s97, s97, 768"]
    lastx = []
    mx = []; p0x = []
    if fuse:
        p0x = ["s_cmp_lg_u32 s28, 0", "s_cbranch_scc1 F1_NP0", "s_lshl_b32 s34, s2, 7", f"s_add_u32 s34, s34, {k3d.WS_FLAG5}",
               "v_mov_b32 v22, s98", "v_mov_b32 v23, s99", "v_mov_b32 v21, 0", "s_mov_b64 exec, 1",
               "buffer_store_dwordx2 v[22:23], v21, s[4:7], s34 offen sc0 sc1", "s_mov_b64 exec, -1", "F1_NP0:"]
    if fuse:
        mx = ["s_lshl_b32 s34, s30, 10", "s_lshl_b32 s47, s29, 7", "s_add_u32 s34, s34, s47", f"s_add_u32 s34, s34, {WS_FLAG}", "v_mov_b32 v22, 0",
              "buffer_load_dwordx2 v[22:23], v22, s[4:7], s34 offen sc0 sc1",
              "s_cmp_lt_u32 s2, 192", "s_cbranch_scc1 F1_NF5", "s_cmp_lg_u32 s28, 7", "s_cbranch_scc1 F1_NF5", "v_lshlrev_b32 v64, 7, v1"]
        for i in range(4): mx += [f"s_mov_b32 s34, {k3d.WS_FLAG5 + i*8192}", f"buffer_load_dwordx2 v[{56+2*i}:{57+2*i}], v64, s[4:7], s34 offen sc0 sc1"]
        mx += ["F1_NF5:"]
        if cpf3:
            T = Asm(); T("s_lshl_b32 s34, s28, 6"); T("v_add_u32 v0, s34, v1"); code_touch(T, "F1A_FIN", "F1_END-F1A_FIN", 66, 68); mx += [x.strip() for x in T.L]
    if s1t:
        lastx = ["s_lshl_b32 s40, s2, 1", "s_add_u32 s40, s40, s28", "s_add_u32 s34, s2, 512", "s_cmp_eq_u32 s28, 2", "s_cselect_b32 s40, s34, s40",
                 "s_cmp_lt_u32 s28, 3", "s_cselect_b32 s40, s40, 999", "s_cmp_ge_u32 s40, 576", "s_cbranch_scc1 F1_NOS1L",
                 "s_mul_i32 s34, s40, 3641", "s_lshr_b32 s34, s34, 16", "s_mul_i32 s41, s34, 18", "s_sub_u32 s41, s40, s41",
                 "v_and_b32 v56, 3, v1", "s_lshl_b32 s41, s41, 2", "v_add_u32 v56, s41, v56",
                 "v_lshrrev_b32 v57, 2, v1", "s_lshl_b32 s34, s34, 4", "v_add_u32 v57, s34, v57",
                 f"v_mul_u32_u24 v58, {4*1152}, v57", "v_lshl_add_u32 v58, v56, 4, v58", f"v_subrev_u32 v59, {3*1152}, v58", "v_lshlrev_b32 v60, 6, v56"]
        lastx += [f"buffer_load_dwordx4 {ar(60+4*i,4)}, v60, s[92:95], 0 offen offset:{16*i}" for i in range(4)]
        lastx += [f"buffer_load_dwordx4 {ar(4*r,4)}, v59, s[8:11], 0 offen offset:{r*1152}" for r in range(3)]
        for base, sd in ((12, 8), (28, 12), (44, 24)):
            lastx += [f"buffer_load_dwordx4 {ar(base+4*r,4)}, v58, s[{sd}:{sd+3}], 0 offen offset:{r*1152}" for r in range(4)]
        lastx += ["F1_NOS1L:"]
    A("F1_ATTN:")
    k2c.attn(A, ST, qsrc="lds", pfx="F1A", st_flags=ctx_flags, ld_flags="" if inv else "sc1", g1_extra=([] if g0t else g1x), g0_extra=(g1x if g0t else []), qb_extra=lastx, merge_extra=mx, post0=p0x, **attn_kw)
    ST("st_issued")
    if fuse: k3d.tail(A, ST, stamps=stamps, **tail_kw)
    if s1t:
        A("s_cmp_ge_u32 s40, 576"); A("s_cbranch_scc1 F1_NOS1T")
        K_, V_, Q_, SK, W_, KF, O_ = 64, 92, 108, 124, 24, 28, 36
        A("v_lshlrev_b32 v58, 15, v56"); A("v_lshl_add_u32 v59, v57, 3, v58")
        A("v_lshlrev_b32 v57, 3, v57"); A("v_sub_u32 v58, v58, v57"); A("v_add_u32 v58, 4088, v58")
        A("s_mov_b32 s12, 0xffff0000"); A("s_mov_b32 s13, 0x05040100"); A("s_mov_b32 s14, 0x07060302")
        A("s_waitcnt vmcnt(4)")
        for r in range(76): A(f"v_accvgpr_read_b32 v{64+r}, a{r}")
        def unp(dst, src, hi): return f"v_and_b32 v{dst}, s12, v{src}" if hi else f"v_lshlrev_b32 v{dst}, 16, v{src}"
        for c in range(8):
            d, hi = c // 2, c % 2
            for r in range(7): A(unp(KF+r, K_+4*r+d, hi))
            for u in range(4): A(unp(W_+u, SK+2*c+u//2, u % 2))
            for p_ in range(4):
                A(f"v_mul_f32 v{O_+p_}, v{KF+p_+3}, v{W_}")
                for u in range(1, 4): A(f"v_fmac_f32 v{O_+p_}, v{KF+p_+3-u}, v{W_+u}")
            for p_ in range(4): A(unp(KF+p_, V_+4*p_+d, hi))
            for p_ in range(4): A(f"v_mul_f32 v{O_+p_}, v{O_+p_}, v{KF+p_}")
            t = 40 + 4*(c % 4)
            A(f"v_cvt_pk_bf16_f32 v{t}, v{O_+3}, v{O_+2}"); A(f"v_cvt_pk_bf16_f32 v{t+1}, v{O_+1}, v{O_}")
            A(f"v_perm_b32 v{t+2}, v{Q_+4+d}, v{Q_+d}, s{13+hi}"); A(f"v_perm_b32 v{t+3}, v{Q_+12+d}, v{Q_+8+d}, s{13+hi}")
            A(f"s_mov_b32 s34, {WS_XR + c*4096}"); A(f"s_mov_b32 s47, {WS_QT + c*4096}")
            A(f"buffer_store_dwordx2 {vr(t,2)}, v58, s[4:7], s34 offen"); A(f"buffer_store_dwordx2 {vr(t+2,2)}, v59, s[4:7], s47 offen")
        A("F1_NOS1T:")
    if stamps: A("s_waitcnt vmcnt(0)")
    ST("end"); ST("end_rt", real=True)
    ST.dump(vt=10, st=34, kidx=0)
    A("F1_END:")
    A("s_endpgm")
    A(kd(name, 256, 144))
    return ST.names
```

```python
from asmlib import *
from k1 import srd, WS_KV, WS_Q, WS_CTX, f32bits
from k1b import m16

V_X, V_Z = 3, 4
V_L, V_THR, V_LT, V_T = 5, 7, 8, 12
S0, P0, NM0, O0, ACC = 24, 56, 72, 80, 144
AQ, AF, NB = 0, 32, 16
def Sreg(qs, kT): return S0 + 16*qs + 4*kT
def Preg(qs, ks): return P0 + 8*qs + 4*ks
def Oreg(qs, d16): return O0 + (d16//4)*32 + qs*16 + (d16 % 4)*4
QB_LDS = 0x20000

def attn_setup(A):
    B = A
    B("s_lshl_b32 s32, s29, 1")
    B("s_sub_u32 s39, 31, s32")
    B("s_add_u32 s32, s32, 2")
    B("s_lshl_b32 s41, s28, 11")
    B("s_lshl_b32 s40, s30, 20")
    B("s_add_u32 s37, s40, s41")
    B("s_add_u32 s38, s37, 0x80000")
    B("s_lshl_b32 s34, s39, 14")
    B("s_add_u32 s56, s37, s34")
    B("s_add_u32 s57, s38, s34")
    B("s_mov_b32 s58, s41")
    B("s_add_u32 s59, s41, 16384")
    B("s_and_b32 s47, s28, 3")
    B("s_lshl_b32 s48, s29, 2")
    B("s_add_u32 s49, s48, s47")
    B("s_sub_u32 s50, 60, s48")
    B("s_add_u32 s50, s50, s47")
    B("s_lshl_b32 s51, s30, 19")
    B(f"s_add_u32 s51, s51, {WS_Q}")
    B("s_lshl_b32 s46, s50, 13")
    B("s_add_u32 s46, s46, s51")
    B("s_cmp_lt_u32 s28, 4")
    B("s_cselect_b32 s52, s49, s50")
    B("s_lshl_b32 s33, s52, 5")
    B("s_lshl_b32 s53, s52, 13")
    B("s_add_u32 s53, s53, s51")
    B("s_lshl_b32 s54, s30, 13")
    B(f"s_add_u32 s54, s54, {WS_CTX}")
    B("s_lshl_b32 s45, s49, 18")
    B("s_add_u32 s45, s45, s54")
    B("s_lshl_b32 s55, s50, 18")
    B("s_add_u32 s55, s55, s54")
    B(f"s_mov_b32 s44, {f32bits(2.0**24)}")
    B("s_sub_u32 s34, s32, 2")
    B("s_cmp_lt_u32 s28, 4")
    B("s_cselect_b32 s36, 7, 2")
    B("s_lshl_b32 s36, s36, s34")
    B("s_or_b32 s36, s36, 0x18001")

def attn_init(B):
    for r in range(NM0, O0+64): B(f"v_mov_b32 v{r}, 0")
    B(f"v_mov_b32 v{V_L}, 0"); B(f"v_mov_b32 v{V_L+1}, 0")
    B(f"v_mov_b32 v{V_Z}, v2"); B(f"v_mov_b32 v{V_X}, v2")
    B("s_mov_b32 s42, 1"); B("s_mov_b32 s31, 0"); B("s_mov_b32 s35, 0"); B("s_mov_b32 s43, 0x8000")

def attn(A, ST, D=8, prio=1, tail=4, st_flags="", pk=False, fine=-1, qsrc="global", wpair=True, pfx="K2", ld_flags="", dma_at=(0, 2, 4, 6), trace=False, g1m=False, g1_at=(2, 6, 10, 14), p0=1, p1=2, pt=3, align=0, smord=1, wgran=2, pre_at=8, qb_extra=(), g1_extra=(), g0_extra=(), merge_extra=(), post0=(), c0=True):
    L = lambda s: s.replace("@", pfx + "_")
    def B(s): A(L(s))
    uid = [0]
    def dma(kind):
        off, m = ("s37", "s58") if kind == 0 else ("s38", "s59")
        return [f"s_mov_b32 m0, {m}", f"s_add_u32 {m}, {m}, 0x8000",
                f"buffer_load_dwordx4 v2, s[4:7], {off} offen {ld_flags} lds", f"buffer_load_dwordx4 v2, s[4:7], {off} offen offset:1024 {ld_flags} lds",
                f"s_and_b32 {m}, {m}, 0x1ffff", f"s_add_u32 {off}, {off}, 16384"]
    def guarded(conds, body):
        uid[0] += 1; lab = L(f"@D{uid[0]}")
        o = []
        for c in conds: o += c + [f"s_cbranch_scc1 {lab}"]
        return o + body + [f"{lab}:"]
    def dma_blocks(slow):
        if not slow:
            ph = [["s_cmp_eq_u32 s43, 0x8000"]]
            return [dma(0), dma(1), guarded(ph, dma(0)), guarded(ph, dma(1))]
        lk = ["s_cmp_gt_u32 s37, s56"]; lv = ["s_cmp_gt_u32 s38, s57"]
        return [guarded([lk], dma(0)), guarded([lv], dma(1)),
                guarded([lk, ["s_add_u32 s47, s31, 1", "s_cmp_lt_u32 s47, s32"]], dma(0)),
                guarded([lv, ["s_cmp_lt_u32 s31, s32"]], dma(1))]
    def qload_g(base):
        o = []
        for i in range(8):
            if i == 4: o.append(f"s_add_u32 s34, {base}, 4096")
            o.append(f"buffer_load_dwordx4 {ar(AQ+4*i,4)}, v2, s[4:7], {base if i < 4 else 's34'} offen offset:{(i%4)*1024}")
        return o
    def qload_l(ldsbase):
        o = ["s_and_b32 s34, s28, 3", "s_lshl_b32 s34, s34, 13", f"s_add_u32 s34, s34, {ldsbase}", f"v_add_u32 v{V_T+11}, s34, v2"]
        o += [f"ds_read_b128 {ar(AQ+4*i,4)}, v{V_T+11} offset:{i*1024}" for i in range(8)]
        return o
    def qk_items():
        it = []
        for kT in range(4):
            for ds in range(4):
                def fn(f, kT=kT, ds=ds):
                    return [m16(vr(Sreg(qs,kT),4), f, ar(AQ+16*qs+4*ds,4), vr(NM0+4*qs,4) if ds == 0 else vr(Sreg(qs,kT),4)) for qs in range(2)]
                it.append((V_Z, (kT*4+ds)*1024, fn))
        return it
    def pv_items(fresh=False):
        it = []
        for ks in range(2):
            for d16 in range(8):
                def fn(f, ks=ks, d16=d16):
                    return [m16(vr(Oreg(qs,d16),4), f, vr(Preg(qs,ks),4), "0" if (fresh and ks == 0) else None) for qs in range(2)]
                it.append((V_X, 16384 + (ks*8+d16)*1024, fn))
        return it
    class Stream:
        def __init__(s, items): s.it = items; s.issued = 0
        def f(s, i): return ar(AF + 4*(i % NB), 4)
        def rds(s, n):
            o = []
            while s.issued < min(n, len(s.it)):
                a, off, _ = s.it[s.issued]
                o.append(f"ds_read_b128 {s.f(s.issued)}, v{a} offset:{off}"); s.issued += 1
            return o
        def run(s, i0, i1, extra=None, fin=True):
            step = wgran
            while (i1 - i0) % step: step //= 2
            for i in range(i0, i1, step):
                A(f"s_waitcnt lgkmcnt({min(s.issued - (i+step), 15)})")
                if align: A(".p2align 3")
                for k in range(step):
                    A.ext(s.it[i+k][2](s.f(i+k)))
                    A.ext(s.rds(i + k + 1 + D))
                    if extra and (i+k) in extra: A.ext(extra[i+k])
            if fin: A.ext(s.rds(len(s.it)))
        def mf(s, i0, i1): return [m for i in range(i0, i1) for m in s.it[i][2](s.f(i))]
    def pairs():
        o = []
        for kT in range(4):
            for qs in range(2):
                for k in range(2):
                    o.append((Sreg(qs, kT) + 2*k, Preg(qs, kT//2) + 2*(kT % 2) + k, qs))
        return o
    def sm_list():
        pr = pairs(); seen = set(); NT = 4
        def fin(k):
            s, p, qs = pr[k]; t = V_T + 2*(k % NT); la = V_LT + 2*qs; r = []
            if pk:
                if qs not in seen: seen.add(qs); r.append(f"v_pk_add_f32 {vr(la,2)}, {vr(t,2)}, 0")
                else: r.append(f"v_pk_add_f32 {vr(la,2)}, {vr(la,2)}, {vr(t,2)}")
            elif qs not in seen:
                seen.add(qs); r.append(f"v_add_f32 v{la}, v{t}, v{t+1}")
            else:
                r.append(f"v_add_f32 v{la}, v{la}, v{t}"); r.append(f"v_add_f32 v{la}, v{la}, v{t+1}")
            r.append(f"v_cvt_pk_bf16_f32 v{p}, v{t}, v{t+1}")
            return r
        g = []
        for k in range(16):
            s, p, qs = pr[k]; t = V_T + 2*(k % NT)
            g.append([f"v_exp_f32 v{t}, v{s}", f"v_exp_f32 v{t+1}, v{s+1}"] + (fin(k-1) if k else []))
        if smord == 1:
            seen.clear(); g = []
            def ex(k):
                s, p, qs = pr[k]; t = V_T + 2*(k % NT)
                return [f"v_exp_f32 v{t}, v{s}", f"v_exp_f32 v{t+1}, v{s+1}"]
            for k in range(0, 16, 2):
                if k:
                    a = fin(k-2); b = fin(k-1)
                    g.append(ex(k) + a[:-1]); g.append(ex(k+1) + b[:-1] + [a[-1], b[-1]])
                else:
                    g.append(ex(0)); g.append(ex(1))
            a = fin(14); b = fin(15)
            g.append(a + b)
            return g
        last = fin(15)
        if pk: last = [last[1], last[0], f"v_add_f32 v{V_LT}, v{V_LT}, v{V_LT+1}", f"v_add_f32 v{V_LT+2}, v{V_LT+2}, v{V_LT+3}"]
        g.append(["s_nop 0"] + last)
        return g
    def softmax(tag, slow, blocks, pre=(), xtra=()):
        if slow:
            B("s_lshl_b32 s34, s35, 6"); B("s_add_u32 s34, s34, 63"); B("s_cmp_gt_u32 s34, s33")
            B(f"s_cbranch_scc1 @MASK_{tag}")
            B(f"@MASKRET_{tag}:")
            B("s_cmp_lg_u32 s42, 0"); B(f"s_cbranch_scc1 @INIT_{tag}")
            B(f"@INITRET_{tag}:")
        g = sm_list()
        at = dict(zip(dma_at, blocks))
        for k, grp in enumerate(g):
            if align >= 2 and (k == 2 or (k-1) in at): A(".p2align 3")
            A.ext(grp)
            if k in at: A.ext(at[k])
            if k == max(dma_at) + 1: A.ext(list(xtra))
            if pre and 0 <= k - pre_at < len(pre): A(pre[k - pre_at])
        B(f"v_add_f32 v{V_T+8}, v{V_LT}, v{V_LT+2}")
        B(f"v_cmp_nge_f32 vcc, s44, v{V_T+8}")
        B(f"s_cbranch_vccnz @FIX_{tag}")
        B(f"@FIXRET_{tag}:")
        for qs in range(2): B(f"v_add_f32 v{V_L+qs}, v{V_L+qs}, v{V_LT+2*qs}")
    def xlane(op, v, t1, t2):
        o = []
        for sw in ("32", "16"):
            o += [f"v_mov_b32 v{t1}, v{v}", f"v_mov_b32 v{t2}, v{v}", "s_nop 1", f"v_permlane{sw}_swap_b32 v{t1}, v{t2}", "s_nop 1", f"{op} v{v}, v{t1}, v{t2}"]
        return o
    def sregs(qs): return list(range(S0+16*qs, S0+16*qs+16))
    def oregs(qs): return [Oreg(qs, d)+r for d in range(8) for r in range(4)]
    def rowmax(qs, m):
        s = sregs(qs)
        B(f"v_max3_f32 v{m}, v{s[0]}, v{s[1]}, v{s[2]}")
        for i in range(3, 15, 2): B(f"v_max3_f32 v{m}, v{m}, v{s[i]}, v{s[i+1]}")
        B(f"v_max_f32 v{m}, v{m}, v{s[15]}")
        A.ext(xlane("v_max_f32", m, V_T+2, V_T+3))
    def init_blk(tag):
        B(f"@INIT_{tag}:")
        B("s_nop 7")
        for qs in range(2):
            m = V_T + qs
            rowmax(qs, m)
            for r in sregs(qs) + list(range(NM0+4*qs, NM0+4*qs+4)): B(f"v_sub_f32 v{r}, v{r}, v{m}")
        B("s_mov_b32 s42, 0")
        B(f"s_branch @INITRET_{tag}")
    def fix_blk(tags):
        for t in tags:
            B(f"@FIX_{t}:")
            B(f"s_getpc_b64 s[62:63]")
            B(f"@FIXPC_{t}:")
            B(f"s_add_u32 s62, s62, @FIXRET_{t}-@FIXPC_{t}")
            B(f"s_addc_u32 s63, s63, -1" if True else "")
            B(f"s_branch @FIXBODY_{tags[0]}")
        B(f"@FIXBODY_{tags[0]}:")
        for qs in range(2):
            m = V_T + 8 + qs
            rowmax(qs, m)
            B(f"v_max_f32 v{m}, 0, v{m}")
            for r in sregs(qs) + list(range(NM0+4*qs, NM0+4*qs+4)): B(f"v_sub_f32 v{r}, v{r}, v{m}")
            B(f"v_sub_f32 v{V_T+4}, 0, v{m}")
            B(f"v_exp_f32 v{V_T+4}, v{V_T+4}")
            B("s_nop 0")
            B(f"v_mul_f32 v{V_L+qs}, v{V_L+qs}, v{V_T+4}")
            for r in oregs(qs): B(f"v_mul_f32 v{r}, v{r}, v{V_T+4}")
        for grp in sm_list(): A.ext(grp)
        B("s_setpc_b64 s[62:63]")
    def mask_blk(tag):
        B(f"@MASK_{tag}:")
        B("s_lshl_b32 s34, s35, 6"); B("s_sub_u32 s34, s33, s34")
        B(f"v_and_b32 v{V_THR}, 15, v1"); B(f"v_lshrrev_b32 v{V_T}, 4, v1"); B(f"v_lshlrev_b32 v{V_T}, 2, v{V_T}")
        B(f"v_sub_u32 v{V_THR}, v{V_THR}, v{V_T}")
        B(f"v_mov_b32 v{V_T}, 0xff800000")
        mk = ["s[60:61]", "s[62:63]", "s[52:53]", "vcc"]
        for r in range(4): B(f"v_cmp_gt_i32 {mk[r]}, {r}, v{V_THR}")
        B("s_cmp_eq_u32 s34, 32"); B(f"s_cbranch_scc1 @MASK32_{tag}")
        for kT in (2, 3):
            for qs in range(2):
                for r in range(4): B(f"v_mov_b32 v{Sreg(qs,kT)+r}, v{V_T}")
        for r in range(4): B(f"v_mov_b32 v{Sreg(0,1)+r}, v{V_T}")
        B("s_cmp_eq_u32 s34, 0"); B(f"s_cbranch_scc1 @MASK0_{tag}")
        for (qs, kT) in ((0, 0), (1, 0), (1, 1)):
            for r in range(4): B(f"v_mov_b32 v{Sreg(qs,kT)+r}, v{V_T}")
        B(f"s_branch @MASKRET_{tag}")
        B(f"@MASK0_{tag}:")
        for (qs, kT) in ((0, 0), (1, 1)):
            for r in range(4): B(f"v_cndmask_b32 v{Sreg(qs,kT)+r}, v{Sreg(qs,kT)+r}, v{V_T}, {mk[r]}")
        B(f"s_branch @MASKRET_{tag}")
        B(f"@MASK32_{tag}:")
        for (qs, kT) in ((0, 2), (1, 3)):
            for r in range(4): B(f"v_cndmask_b32 v{Sreg(qs,kT)+r}, v{Sreg(qs,kT)+r}, v{V_T}, {mk[r]}")
        for r in range(4): B(f"v_mov_b32 v{Sreg(0,3)+r}, v{V_T}")
        B(f"s_branch @MASKRET_{tag}")
    def pack_src(i):
        qs, j = i // 4, i % 4
        return [Oreg(qs, 2*j)+k for k in range(4)] + [Oreg(qs, 2*j+1)+k for k in range(4)], qs, j // 2
    def sp(n):
        if prio: B(f"s_setprio {n}")
    adv = [f"v_mov_b32 v{V_X}, v{V_Z}", f"v_add_u32 v{V_Z}, s43, v{V_Z}", f"v_and_b32 v{V_Z}, 0x1ffff, v{V_Z}"]
    A.ext(dma(0))
    if qsrc == "global": A.ext(qload_g("s53"))
    A.ext(dma(0)); A.ext(dma(1))
    if qsrc == "global": attn_init(A)
    B("s_waitcnt vmcnt(4)")
    B("s_barrier")
    ST("k0_landed")
    F = [ST.reserve(f"f{i}") for i in range(6)] if fine >= 0 else None
    if trace:
        B("s_lshl_b32 s98, s2, 3"); B("s_add_u32 s98, s98, s28"); B("s_lshl_b32 s98, s98, 7"); B(f"s_add_u32 s98, s98, {WS_STAMP + (8 << 20)}")
    def fs(i, d=0):
        if fine >= 0: ST.at(F[i], "s31", fine + d)
        if trace and i == 0:
            B("s_memtime s[100:101]"); B("s_lshl_b32 s99, s31, 2"); B("s_add_u32 s99, s99, s98"); B("v_mov_b32 v22, 0"); B("s_waitcnt lgkmcnt(0)")
            B("v_mov_b32 v23, s100"); B("buffer_store_dword v23, v22, s[4:7], s99 offen")
    B("s_cmp_ge_u32 s28, 4")
    B("s_cbranch_scc1 @G1")
    s = Stream(qk_items()); A.ext(s.rds(D)); s.run(0, 16 - tail)
    tl = s.mf(16 - tail, 16)
    B("s_waitcnt vmcnt(0) lgkmcnt(0)")
    B("s_barrier")
    A.ext(list(post0))
    B("s_branch @G0_S")
    for slow in (False, True):
        tag = "g0s" if slow else "g0f"
        B("@G0_S:" if slow else "@G0_F:")
        fs(0)
        if align: A(".p2align 3")
        A.ext(tl)
        sp(0)
        if slow:
            B("s_add_u32 s47, s31, 1"); B("s_cmp_gt_u32 s47, s32"); B("s_cselect_b32 s43, 2, 1"); B("s_lshl_b32 s43, s43, 15")
            B("s_cmp_eq_u32 s47, s32"); B("s_cbranch_scc1 @QB")
            B("@QB_RET:")
        A.ext(adv)
        s = Stream(pv_items() + qk_items())
        pre = s.rds(D)
        if pre_at < 0: A.ext(pre); pre = []
        assert pre_at + len(pre) <= 17
        fs(1); fs(2)
        softmax(tag, slow, dma_blocks(slow), pre, xtra=() if slow else g0_extra)
        fs(3)
        sp(p0)
        if slow:
            B("s_cmp_eq_u32 s31, 16"); B("s_cbranch_scc1 @G0_LAST")
            B("s_add_u32 s47, s31, 1"); B("s_cmp_eq_u32 s47, s32"); B("s_cbranch_scc1 @SWITCH")
            B("@SWITCH_RET:")
        B("s_lshr_b32 s34, s43, 15"); B("s_add_u32 s35, s35, s34")
        B("s_add_u32 s31, s31, 1")
        if slow and c0:
            B("s_sub_u32 s47, s31, 1"); B("s_cmp_eq_u32 s47, s32"); B("s_cbranch_scc1 @FRESH")
            s.run(0, 8, fin=False)
            B("@FRESH_RET:")
            s.run(8, 32 - tail)
        else:
            s.run(0, 32 - tail)
        sp(pt)
        fs(4, 1)
        if slow:
            B("s_cmp_ge_u32 s31, s32"); B("s_cselect_b32 s43, 2, 1"); B("s_lshl_b32 s43, s43, 15")
        if slow:
            B("s_cmp_eq_u32 s31, s32"); B("s_cbranch_scc1 @EPI_A")
        B("s_bitcmp1_b32 s36, s31")
        B(f"s_waitcnt vmcnt({sum('buffer_load' in x for x in g0_extra) if not slow else 0}) lgkmcnt(0)")
        if fine >= 0:
            fs(5, 1); B("s_bitcmp1_b32 s36, s31")
        B("s_barrier")
        if slow:
            B("s_cbranch_scc0 @G0_F"); B("s_branch @G0_S")
        else:
            B("s_cbranch_scc0 @G0_F")
    if c0:
        B("@FRESH:")
        s = Stream(pv_items(True) + qk_items()); s.issued = D; s.run(0, 8, fin=False)
        B("s_branch @FRESH_RET")
    B("@QB:")
    if qsrc == "global": A.ext(qload_g("s46"))
    else:
        A.ext(qload_l(QB_LDS)); B("s_waitcnt lgkmcnt(0)")
    B("s_branch @QB_RET")
    B("@SWITCH:")
    if qsrc == "global": B("s_waitcnt vmcnt(0)")
    for r in range(NM0, NM0+8): B(f"v_mov_b32 v{r}, 0")
    B("s_branch @SWITCH_RET")
    B("@EPI_A:")
    for qs in range(2):
        A.ext(xlane("v_add_f32", V_L+qs, V_T, V_T+1))
        B(f"v_rcp_f32 v{V_L+qs}, v{V_L+qs}")
    B("s_nop 0")
    for i in range(8):
        src, qs, _ = pack_src(i); t = V_T + 4*(i % 2)
        for r in src: B(f"v_mul_f32 v{r}, v{r}, v{V_L+qs}")
        for k in range(4): B(f"v_cvt_pk_bf16_f32 v{t+k}, v{src[2*k]}, v{src[2*k+1]}")
        if i == 4: B("s_add_u32 s45, s45, 4096")
        B(f"buffer_store_dwordx4 {vr(t,4)}, v2, s[4:7], s45 offen offset:{(i%4)*1024} {st_flags}")
        if not c0:
            for r in src: B(f"v_mov_b32 v{r}, 0")
    B(f"v_mov_b32 v{V_L}, 0"); B(f"v_mov_b32 v{V_L+1}, 0")
    B("s_mov_b32 s42, 1")
    B("s_lshl_b32 s33, s50, 5")
    B("s_waitcnt vmcnt(8) lgkmcnt(0)")
    B("s_barrier")
    B("s_branch @G0_S")
    init_blk("g0s"); mask_blk("g0s")
    B("@G0_LAST:")
    if c0:
        B("s_cmp_lg_u32 s32, 16"); B("s_cbranch_scc1 @LASTN")
        s = Stream(pv_items(True)); s.issued = D; s.run(0, 8, fin=False)
        B("s_branch @LASTM")
        B("@LASTN:")
        s = Stream(pv_items()); s.issued = D; s.run(0, 8, fin=False)
        B("@LASTM:")
        s.run(8, 16)
    else:
        s = Stream(pv_items()); s.issued = D; s.run(0, 16)
    sp(0)
    B("s_waitcnt vmcnt(0) lgkmcnt(0)")
    A.ext(list(qb_extra))
    B("s_barrier")
    B("s_branch @MERGE")
    B("@G1:")
    B("s_waitcnt vmcnt(0)")
    B("s_barrier")
    sp(p1)
    s = Stream(qk_items()); A.ext(s.rds(D)); s.run(0, 16, extra=dict(zip(g1_at, dma_blocks(True))) if g1m else None)
    B("s_branch @G1_V")
    for slow in (False, True):
        tag = "g1s" if slow else "g1f"
        B("@G1_S:" if slow else "@G1_F:")
        fs(0)
        sp(p1)
        s = Stream(pv_items() + qk_items()); A.ext(s.rds(D))
        s.run(0, 32, extra=dict(zip(g1_at, dma_blocks(slow))) if g1m else None)
        if slow: B("@G1_V:")
        fs(1); fs(2)
        sp(0)
        softmax(tag, slow, [] if g1m else dma_blocks(slow))
        if not slow: A.ext(list(g1_extra))
        fs(3)
        B("s_add_u32 s31, s31, 1")
        if slow:
            B("s_cmp_ge_u32 s31, s32"); B("s_cselect_b32 s43, 2, 1"); B("s_lshl_b32 s43, s43, 15")
        A.ext(adv)
        B("s_lshr_b32 s34, s43, 15"); B("s_add_u32 s35, s35, s34")
        fs(4, 1)
        B("s_bitcmp1_b32 s36, s31")
        B(f"s_waitcnt vmcnt({sum('buffer_load' in x for x in g1_extra) if not slow else 0})")
        if fine >= 0:
            fs(5, 1); B("s_bitcmp1_b32 s36, s31")
        B("s_barrier")
        if slow:
            B("s_cbranch_scc1 @G1_S")
            B("s_cmp_lt_u32 s31, 17"); B("s_cbranch_scc1 @G1_F")
        else:
            B("s_cbranch_scc0 @G1_F")
    s = Stream(pv_items()); A.ext(s.rds(D)); s.run(0, 16)
    B("s_branch @MERGE")
    init_blk("g1s"); mask_blk("g1s")
    fix_blk(["g0f", "g0s", "g1f", "g1s"])
    B("@MERGE:")
    ST("loop_done")
    A.ext(list(merge_extra))
    for qs in range(2): A.ext(xlane("v_add_f32", V_L+qs, V_T, V_T+1))
    B("s_lshr_b32 s34, s28, 1"); B("s_lshl_b32 s34, s34, 15"); B("s_and_b32 s47, s28, 1"); B("s_lshl_b32 s47, s47, 13"); B("s_add_u32 s34, s34, s47")
    B(f"v_add_u32 v{V_Z}, s34, v2")
    B(f"v_xor_b32 v{V_X}, 0x10000, v{V_Z}")
    B("s_lshl_b32 s34, s28, 10")
    B("s_add_u32 s34, s34, 0x20000")
    B(f"v_add_u32 v{V_T+8}, s34, v2")
    B(f"v_xor_b32 v{V_T+9}, 0x1000, v{V_T+8}")
    B(f"v_mov_b32 v{V_T+4}, v{NM0}"); B(f"v_mov_b32 v{V_T+5}, v{NM0+4}"); B(f"v_mov_b32 v{V_T+6}, v{V_L}"); B(f"v_mov_b32 v{V_T+7}, v{V_L+1}")
    B(f"ds_write_b128 v{V_T+8}, {vr(V_T+4,4)}")
    B("s_cmp_ge_u32 s28, 4")
    B("s_cbranch_scc1 @MG1")
    for half in range(2):
        if half == 1: B("@MG1:")
        send = O0 + 32*(1-half); keep = O0 + 32*half
        for i in range(8): B(f"ds_write_b128 v{V_Z}, {vr(send+4*i,4)} offset:{i*1024}")
        B("s_waitcnt lgkmcnt(0)")
        B("s_barrier")
        B(f"ds_read_b128 {vr(S0,4)}, v{V_T+9}")
        for i in range(8): B(f"ds_read_b128 {vr(send+4*i,4)}, v{V_X} offset:{i*1024}")
        B("s_waitcnt lgkmcnt(8)")
        for qs in range(2):
            own_nm = V_T+4+qs; oth_nm = S0+qs; fo = S0+4+2*qs; fp = S0+5+2*qs; mn = S0+8
            B(f"v_min_f32 v{mn}, v{own_nm}, v{oth_nm}")
            B(f"v_sub_f32 v{fo}, v{mn}, v{own_nm}"); B(f"v_sub_f32 v{fp}, v{mn}, v{oth_nm}")
            B(f"v_exp_f32 v{fo}, v{fo}"); B(f"v_exp_f32 v{fp}, v{fp}"); B("s_nop 0")
            B(f"v_mul_f32 v{mn}, v{fo}, v{V_L+qs}"); B(f"v_fma_f32 v{mn}, v{fp}, v{S0+2+qs}, v{mn}")
            B(f"v_rcp_f32 v{mn}, v{mn}"); B("s_nop 0")
            B(f"v_mul_f32 v{fo}, v{fo}, v{mn}"); B(f"v_mul_f32 v{fp}, v{fp}, v{mn}")
        B("s_waitcnt lgkmcnt(0)")
        n = 0
        for i in range(8):
            src, qs, dh = pack_src(i)
            if dh != half: continue
            t = V_T + 4*(n % 2); n += 1
            for r in src:
                B(f"v_mul_f32 v{r}, v{r}, v{S0+4+2*qs}")
                B(f"v_fma_f32 v{r}, v{r - keep + send}, v{S0+5+2*qs}, v{r}")
            for k in range(4): B(f"v_cvt_pk_bf16_f32 v{t+k}, v{src[2*k]}, v{src[2*k+1]}")
            B(f"s_add_u32 s34, s55, {(i//4)*4096}")
            B(f"buffer_store_dwordx4 {vr(t,4)}, v2, s[4:7], s34 offen offset:{(i%4)*1024} {st_flags}")
        if half == 0: B("s_branch @FIN")
    B("@FIN:")

def k2(A, name="k2_kernel", stamps=False, SH=16, **kw):
    A(khead(name))
    ST = Stamps(A, stamps, base=64, srd=4, wave="s28")
    A("s_cmp_ge_u32 s2, 256"); A("s_cbranch_scc1 K2_END")
    ST("start_rt", real=True); ST("start")
    A("s_load_dwordx2 s[8:9], s[0:1], 112")
    A("v_lshrrev_b32 v10, 6, v0"); A("v_and_b32 v1, 63, v0"); A("v_readfirstlane_b32 s28, v10"); A("v_lshlrev_b32 v2, 4, v1")
    A("s_and_b32 s34, s2, 7"); A("s_lshl_b32 s34, s34, 2"); A("s_lshr_b32 s47, s2, 3"); A("s_and_b32 s47, s47, 3")
    A("s_add_u32 s30, s34, s47"); A("s_lshr_b32 s29, s2, 5")
    attn_setup(A)
    A("s_waitcnt lgkmcnt(0)")
    srd(A, 4, 8, 1 << 28)
    attn(A, ST, **kw)
    ST("st_issued")
    if stamps: A("s_waitcnt vmcnt(0)")
    ST("end"); ST("end_rt", real=True)
    ST.dump(vt=10, st=34, kidx=1)
    A("K2_END:"); A("s_endpgm")
    A(kd(name, ACC+96, ACC))
    return ST.names
```

```python
from asmlib import *
from k1 import srd, WS_CTX, WS_PART
from k1b import m16
from ka import WS_XR, WS_QT, NB_IN, CS, C0, C1
STG = 49152
WS_FLAG2 = 124 << 20
WS_FLAG3 = 122 << 20
WS_FLAG5 = 125 << 20
EP = 12

def flag(A, soff):
    A("v_mov_b32 v12, s62"); A("v_mov_b32 v13, s63")
    A("s_mov_b64 exec, 1"); A(f"buffer_store_dwordx2 v[12:13], v14, s[4:7], {soff} offen sc0 sc1"); A("s_mov_b64 exec, -1")

def poll(A, lab, voff, soff, sleep, n=1, stride=0):
    A("s_mov_b32 s61, 0x40000")
    A(f"{lab}:")
    for i in range(n):
        if i: A(f"s_add_u32 s34, {soff}, {i*stride}")
        A(f"buffer_load_dwordx2 v[{16+2*i}:{17+2*i}], v{voff}, s[4:7], {soff if i == 0 else 's34'} offen sc0 sc1")
    A("s_waitcnt vmcnt(0)")
    A("v_cmp_ne_u32 vcc, s62, v16"); A("v_cmp_ne_u32 s[58:59], s63, v17"); A("s_or_b64 vcc, vcc, s[58:59]")
    for i in range(1, n):
        A(f"v_cmp_ne_u32 s[58:59], s62, v{16+2*i}"); A("s_or_b64 vcc, vcc, s[58:59]")
        A(f"v_cmp_ne_u32 s[58:59], s63, v{17+2*i}"); A("s_or_b64 vcc, vcc, s[58:59]")
    A("s_cmp_eq_u64 vcc, 0"); A(f"s_cbranch_scc1 {lab}_G")
    A(f"s_sleep {sleep}")
    A("s_sub_u32 s61, s61, 1"); A("s_cmp_lg_u32 s61, 0"); A(f"s_cbranch_scc1 {lab}")
    A(f"{lab}_G:")

def tail(A, ST, stamps=False, sleep=1, wpf=True, cfl="sc1", inv=False, delay=0, wfl="", vz=False, alone=False, pre=0, zero=False, gpf=True, p1one=True):
    for _ in range(pre): A("s_sleep 127")
    if zero:
        A("s_waitcnt vmcnt(0)"); A("s_setprio 0")
        for r in list(range(3, 22)) + list(range(24, 144)): A(f"v_mov_b32 v{r}, 0")
        for r in range(112): A(f"v_accvgpr_write_b32 a{r}, 0")
        for r in list(range(8, 28)) + list(range(31, 60)): A(f"s_mov_b32 s{r}, 0")
    A("s_load_dwordx4 s[44:47], s[90:91], 88")
    A("s_load_dwordx4 s[52:55], s[90:91], 32")
    A("s_lshl_b32 s60, s30, 3"); A("s_add_u32 s60, s60, s29"); A("s_lshl_b32 s60, s60, 7"); A(f"s_add_u32 s60, s60, {WS_FLAG2}")
    A("s_waitcnt vmcnt(4)")
    A("v_readfirstlane_b32 s62, v22"); A("v_readfirstlane_b32 s63, v23"); A("v_mov_b32 v14, 0")
    def signal():
        A("s_barrier")
        A("s_cmp_lg_u32 s28, 0"); A(f"s_cbranch_scc1 T_NS{signal.n}")
        flag(A, "s60")
        A(f"T_NS{signal.n}:"); signal.n += 1
    signal.n = 0
    A("s_cmp_ge_u32 s2, 192"); A("s_cbranch_scc1 T_CONV")
    A("s_and_b32 s29, s2, 3")
    A("s_lshr_b32 s34, s2, 3"); A("s_and_b32 s30, s34, 7"); A("s_and_b32 s35, s2, 4"); A("s_lshl_b32 s35, s35, 1"); A("s_add_u32 s30, s30, s35")
    A("s_lshr_b32 s31, s34, 3")
    A("s_lshr_b32 s42, s28, 2"); A("s_and_b32 s37, s28, 3")
    A("s_lshl_b32 s34, s30, 2"); A("s_add_u32 s43, s34, s37")
    A("s_lshl_b32 s33, s43, 18"); A("s_lshl_b32 s34, s29, 16"); A("s_add_u32 s33, s33, s34"); A("s_lshl_b32 s34, s42, 15"); A("s_add_u32 s33, s33, s34")
    A(f"s_add_u32 s56, s33, {WS_CTX}"); A("s_add_u32 s57, s56, 4096")
    A("s_mul_i32 s41, s29, 6"); A("s_mul_i32 s34, s42, 12"); A("s_add_u32 s41, s41, s34"); A("s_sub_u32 s34, s41, 24"); A("s_min_u32 s41, s41, s34")
    A("s_mov_b32 s36, 2731")
    VD = 3
    for i in range(3):
        A(f"v_add_u32 v20, {64*i}, v1")
        A("v_mul_u32_u24 v21, s36, v20"); A("v_lshrrev_b32 v21, 16, v21")
        A("v_mul_u32_u24 v22, 24, v21"); A("v_sub_u32 v22, v20, v22")
        A("v_and_b32 v23, 6, v21"); A("v_xor_b32 v22, v22, v23")
        A("v_add_u32 v22, s41, v22"); A("v_subrev_u32 v23, 24, v22"); A("v_min_u32 v22, v22, v23")
        A("v_mul_u32_u24 v21, 1152, v21")
        A(f"v_lshl_add_u32 v{VD+i}, v22, 4, v21")
    A("s_lshl_b32 s32, s29, 10"); A("s_lshl_b32 s34, s42, 9"); A("s_add_u32 s32, s32, s34"); A("s_lshl_b32 s34, s37, 4"); A("s_add_u32 s32, s32, s34")
    A("s_mul_i32 s32, s32, 1152"); A("s_mul_i32 s34, s31, 384"); A("s_add_u32 s32, s32, s34")
    A("s_mul_i32 s38, s28, 6144")
    A("s_waitcnt lgkmcnt(0)")
    srd(A, 8, 44, 4096*576*2)
    CT = [0, 16, 32]; WR = 48; NW = 16; ACC = 48; VA = 24
    def dma(j):
        return [[f"s_add_u32 m0, s38, {(j%3)*STG + i*1024}", f"s_add_u32 s34, s32, {(j*64 + 8*(i//3))*1152}" if i % 3 == 0 else "s_nop 0",
                 f"buffer_load_dwordx4 v{VD+i%3}, s[8:11], s34 offen {wfl} lds"] for i in range(6)]
    def cload(j):
        g = []
        for a in range(2):
            for k2 in range(2):
                pre = [f"s_add_u32 s35, s{56+a}, {(j//2)*8192}"] if k2 == 0 else []
                g.append(pre + [f"buffer_load_dwordx4 {ar(CT[j%3]+8*a+4*k2,4)}, v2, s[4:7], s35 offen offset:{(2*(j%2)+k2)*1024} {cfl}"])
        return g
    A("s_waitcnt vmcnt(0)")
    signal()
    ST("sig")
    for g in dma(0) + dma(1): A.ext(g)
    if gpf:
        A("s_mul_i32 s34, s2, 24576"); A("s_mul_i32 s35, s28, 3072"); A("s_add_u32 s34, s34, s35")
        A("v_min_u32 v20, 23, v1"); A("v_lshlrev_b32 v20, 7, v20")
        A("buffer_load_dword v15, v20, s[8:11], s34 offen sc1")
    A("v_lshrrev_b32 v20, 2, v1"); A("v_mul_u32_u24 v21, 384, v20"); A("v_and_b32 v20, 6, v20")
    A("v_bfe_u32 v22, v1, 1, 1"); A("v_or_b32 v20, v20, v22")
    A("v_and_b32 v22, 1, v1"); A("v_lshl_add_u32 v21, v22, 3, v21")
    A(f"s_mul_i32 s34, s42, {64*384}"); A("v_add_u32 v21, s34, v21")
    for u in range(4):
        A(f"v_xor_b32 v22, {2*u}, v20"); A(f"v_lshl_add_u32 v{VA+u}, v22, 4, v21")
    for r in range(ACC, ACC+96): A(f"v_mov_b32 v{r}, 0")
    A("s_sub_u32 s34, 15, s30"); A("s_min_u32 s34, s34, s30"); A("s_lshl_b32 s34, s34, 7"); A("s_lshl_b32 s35, s29, 13"); A("s_add_u32 s39, s34, s35"); A(f"s_add_u32 s39, s39, {WS_FLAG2}")
    A("v_and_b32 v20, 7, v1"); A("v_lshlrev_b32 v20, 10, v20")
    if not alone and p1one:
        A("s_cmp_lg_u32 s28, 0"); A("s_cbranch_scc1 T_P1_G")
        poll(A, "T_P1", 20, "s39", sleep)
        A("s_barrier")
    elif not alone: poll(A, "T_P1", 20, "s39", sleep)
    else: A("s_waitcnt vmcnt(0)")
    if inv: A("buffer_inv sc1"); A("s_waitcnt vmcnt(0)")
    for _ in range(delay): A("s_sleep 127")
    ST("ctx_ok")
    for g in cload(0) + cload(1): A.ext(g)
    A("s_waitcnt vmcnt(4)")
    TAIL = 4
    def wf(i): return WR + 4*(i % NW)
    def wr(i):
        k2, t = divmod(i, 12)
        return [f"ds_read_b64_tr_b16 {ar(wf(i)+2*half,2)}, v{VA+4+t%4} offset:{(32*k2+16*half)*384+(t//4)*128}" for half in range(2)]
    def mf(j, i):
        k2, t = divmod(i, 12)
        return [m16(vr(ACC+48*a+4*t,4), ar(wf(i),4), ar(CT[j%3]+8*a+4*k2,4)) for a in range(2)]
    tl = []
    for j in range(8):
        if j: A(f"s_waitcnt vmcnt({10 if (j < 7 and not vz) else 0}) lgkmcnt(0)")
        for u in range(4): A(f"v_add_u32 v{VA+4+u}, {(j%3)*STG}, v{VA+u}")
        A("s_barrier")
        if j == 0: ST("landed")
        first = [x for i in range(4) for x in wr(i)]
        if tl:
            for m, r in zip(tl, first): A(m); A(r)
        else: A.ext(first)
        issued = 4
        while issued < 7: A.ext(wr(issued)); issued += 1
        fill = (cload(j+2) + dma(j+2)) if j+2 < 8 else []
        for i in range(24 - TAIL):
            A(f"s_waitcnt lgkmcnt({min(15, 2*(issued - i - 1))})")
            mm = mf(j, i)
            rr = wr(issued) if issued < 24 else [None, None]
            if issued < 24: issued += 1
            A(mm[0])
            if rr[0]: A(rr[0])
            A(mm[1])
            if rr[1]: A(rr[1])
            if i % 2 == 0 and fill: A.ext(fill.pop(0))
        tl = [m for i in range(24 - TAIL, 24) for m in mf(j, i)]
    A("s_waitcnt lgkmcnt(0)")
    A.ext(tl)
    ST("gemm_done")
    A("s_mul_i32 s34, s28, 12288"); A("v_add_u32 v9, s34, v2")
    A("s_xor_b32 s35, s28, 4"); A("s_mul_i32 s35, s35, 12288"); A("v_add_u32 v10, s35, v2")
    srd(A, 8, 46, 2048*1152*2)
    A("s_barrier")
    snd = [(a_, t) for a_ in range(2) for t in range(6)]
    for i, (a_, t) in enumerate(snd): A(f"ds_write_b128 v9, {vr(ACC+48*a_+4*(t+6),4)} offset:{i*1024}")
    A("s_mul_i32 s39, s30, 3"); A("s_add_u32 s39, s39, s31")
    A(f"s_mul_i32 s50, s39, {16*4*3072}"); A("s_mul_i32 s34, s37, 3072"); A("s_add_u32 s50, s50, s34"); A(f"s_add_u32 s50, s50, {WS_PART}")
    A("s_lshl_b32 s52, s39, 12"); A(f"s_add_u32 s52, s52, {WS_FLAG3}")
    A("s_lshl_b32 s34, s29, 10"); A("s_add_u32 s53, s52, s34"); A("s_lshl_b32 s34, s28, 7"); A("s_add_u32 s53, s53, s34")
    def dest(dexpr):
        A(dexpr); A("s_and_b32 s34, s34, 3"); A("s_lshl_b32 s34, s34, 2"); A("s_add_u32 s34, s34, s29")
        A(f"s_mul_i32 s34, s34, {4*3072}"); A("s_add_u32 s34, s34, s50")
    A("s_lshl_b32 s40, s42, 1"); A("s_add_u32 s40, s40, s29")
    A("s_waitcnt lgkmcnt(0)"); A("s_barrier")
    order = [(a_, t) for t in (3, 4, 5, 0, 1, 2) for a_ in range(2)]
    for (a_, t) in order: A(f"ds_read_b128 {vr(ACC+48*a_+4*(t+6),4)}, v10 offset:{snd.index((a_, t))*1024}")
    for i, (a_, t) in enumerate(order):
        if i == 6: A("s_cmp_eq_u32 s42, 0"); A("s_cbranch_scc1 T_OWN")
        A(f"s_waitcnt lgkmcnt({11 - i})")
        x = ACC + 48*a_ + 4*t; pk = 24 + 2*i
        for r in range(4): A(f"v_add_f32 v{x+r}, v{x+r}, v{x+24+r}")
        A(f"v_cvt_pk_bf16_f32 v{pk}, v{x}, v{x+1}"); A(f"v_cvt_pk_bf16_f32 v{pk+1}, v{x+2}, v{x+3}")
        if i == 0: dest("s_add_u32 s34, s40, 1")
        if i == 6: dest("s_add_u32 s34, s40, 0")
        if a_ == 1: A(f"buffer_store_dwordx4 {vr(pk-2,4)}, v2, s[4:7], s34 offen offset:{(t%3)*1024} sc1")
    A("s_waitcnt vmcnt(0)")
    flag(A, "s53")
    A("s_branch T_FIN")
    A("T_OWN:")
    A("s_waitcnt lgkmcnt(0)")
    for (a_, t) in order[6:]:
        x = ACC + 48*a_ + 4*t
        for r in range(4): A(f"v_add_f32 v{x+r}, v{x+r}, v{x+24+r}")
    A("v_and_b32 v20, 3, v1"); A("v_max_u32 v20, 1, v20"); A("v_sub_u32 v21, s29, v20"); A("v_and_b32 v21, 3, v21"); A("v_lshlrev_b32 v21, 10, v21")
    A("v_lshrrev_b32 v20, 1, v20"); A("v_lshl_add_u32 v20, v20, 9, v21"); A("s_lshl_b32 s34, s37, 7"); A("s_add_u32 s52, s52, s34")
    A("v_and_b32 v10, 15, v1"); A("v_mul_u32_u24 v10, 2304, v10"); A("v_lshrrev_b32 v21, 4, v1"); A("v_lshl_add_u32 v3, v21, 3, v10")
    A(f"s_mul_i32 s54, s43, {32*2304}")
    A("s_mul_i32 s34, s31, 384"); A("s_add_u32 s54, s54, s34"); A("s_mul_i32 s34, s29, 96"); A("s_add_u32 s54, s54, s34"); A("s_add_u32 s54, s54, 1152")
    A(f"s_add_u32 s55, s54, {16*2304}")
    A(f"s_mul_i32 s34, s29, {4*4*3072}"); A("s_add_u32 s50, s50, s34")
    A("s_waitcnt vmcnt(0)")
    ST("sent")
    flag(A, "s53")
    poll(A, "T_P2", 20, "s52", sleep)
    ST("polled")
    RV = [ACC + 24, ACC + 36, ACC + 72]
    for d in range(1, 4):
        A(f"s_add_u32 s34, s29, {d}"); A("s_and_b32 s34, s34, 3"); A(f"s_mul_i32 s34, s34, {4*3072}"); A("s_add_u32 s34, s34, s50")
        for t in range(3): A(f"buffer_load_dwordx4 {vr(RV[d-1]+4*t,4)}, v2, s[4:7], s34 offen offset:{t*1024} sc1")
    A("s_mov_b32 s36, 0xffff0000")
    for d in range(1, 4):
        A(f"s_waitcnt vmcnt({3*(3-d)})")
        for t in range(3):
            for a_ in range(2):
                for h in range(2):
                    y = RV[d-1] + 4*t + 2*a_ + h; x = ACC + 48*a_ + 4*t + 2*h
                    A(f"v_lshlrev_b32 v4, 16, v{y}"); A(f"v_and_b32 v5, s36, v{y}")
                    A(f"v_add_f32 v{x}, v{x}, v4"); A(f"v_add_f32 v{x+1}, v{x+1}, v5")
    for a_ in range(2):
        for t in range(3):
            x = ACC + 48*a_ + 4*t
            A(f"v_cvt_pk_bf16_f32 v{x}, v{x}, v{x+1}"); A(f"v_cvt_pk_bf16_f32 v{x+1}, v{x+2}, v{x+3}")
            A(f"buffer_store_dwordx2 {vr(x,2)}, v3, s[8:11], s{54+a_} offen offset:{t*32}")
    ST("xdone")
    A("s_branch T_FIN")
    A("T_CONV:")
    def xs(nm):
        if stamps and nm in ST.names:
            i = ST.names.index(nm); A(f"s_memtime s[{ST.base+2*i}:{ST.base+2*i+1}]")
    A("s_and_b32 s34, s2, 7"); A("s_mul_i32 s29, s34, 9"); A("s_lshr_b32 s35, s2, 3"); A("s_sub_u32 s35, s35, 24"); A("s_add_u32 s29, s29, s35")
    A("s_mul_i32 s40, s34, 72"); A("s_add_u32 s40, s40, 64"); A("s_add_u32 s40, s40, s35")
    A(f"s_mul_i32 s31, s28, {CS}")
    A("s_lshl_b32 s30, s29, 3"); A("s_add_u32 s30, s30, s28"); A("s_lshl_b32 s32, s30, 12"); A("s_lshl_b32 s41, s40, 12")
    A("v_add_u32 v3, 2, v2")
    A("s_waitcnt lgkmcnt(0)")
    srd(A, 8, 52, NB_IN); srd(A, 12, 54, 1152); srd(A, 16, 46, 2048*1152*2); srd(A, 20, 44, 4096*576*2)
    XB_ = 8*CS
    if not alone:
        A("s_cmp_lg_u32 s28, 7"); A("s_cbranch_scc1 T_P3_G")
        A("v_cmp_ne_u32 vcc, s62, v56")
        for i in range(1, 8): A(f"v_cmp_ne_u32 s[58:59], s{62 + i%2}, v{56+i}"); A("s_or_b64 vcc, vcc, s[58:59]")
        A("s_cmp_eq_u64 vcc, 0"); A("s_cbranch_scc1 T_P3_G")
        A("v_lshlrev_b32 v4, 7, v1"); A(f"s_mov_b32 s39, {WS_FLAG5}")
        poll(A, "T_P3", 4, "s39", sleep, n=4, stride=8192)
    A("s_waitcnt vmcnt(0)")
    signal()
    xs("sig")
    QR = 40; CA = 56; XA = 88; AD = 120; X0 = 128
    A(f"s_add_u32 s33, s32, {WS_XR}")
    A("s_mov_b32 m0, s31"); A("s_nop 0")
    for i in range(4): A(f"buffer_load_dwordx4 v2, s[4:7], s33 offen offset:{i*1024} sc1 lds")
    A(f"s_add_u32 m0, s31, {C0+32}"); A("s_nop 0")
    for i in range(4): A(f"buffer_load_dwordx4 v2, s[8:11], s32 offen offset:{i*1024} lds")
    A(f"s_add_u32 m0, s31, {C1+32}"); A("s_nop 0")
    for i in range(4): A(f"buffer_load_dwordx4 v3, s[8:11], s32 offen offset:{i*1024} lds")
    A("s_lshl_b32 s34, s30, 1")
    A("buffer_load_ushort v5, v14, s[12:15], s34 offen"); A("buffer_load_ushort v6, v14, s[8:11], s32 offen"); A("buffer_load_ushort v7, v14, s[8:11], s32 offen offset:4094")
    A("v_and_b32 v8, 15, v1"); A("v_lshrrev_b32 v9, 4, v1")
    A("v_lshlrev_b32 v10, 5, v8"); A("v_lshl_add_u32 v10, v9, 3, v10")
    A("v_and_b32 v24, 1, v8")
    A("v_add_u32 v25, v8, v24"); A("v_lshl_add_u32 v25, v9, 3, v25"); A("v_lshlrev_b32 v25, 1, v25")
    A(f"v_mul_u32_u24 v24, {C1-C0}, v24"); A("v_sub_u32 v25, v25, v24")
    A(f"s_add_u32 s34, s31, {C1}"); A("v_add_u32 v28, s34, v25")
    for i in range(1, 4): A(f"v_add_u32 v{28+i}, {1024*i}, v28")
    A("v_lshlrev_b32 v24, 5, v8"); A("v_lshlrev_b32 v25, 4, v9"); A("v_sub_u32 v25, v25, v24")
    A(f"s_add_u32 s34, s31, {4064-3584}"); A("v_add_u32 v32, s34, v25")
    A("v_lshl_add_u32 v33, v9, 3, v8"); A("v_sub_u32 v33, 15, v33")
    A("v_bfe_u32 v34, v1, 2, 2"); A(f"v_mul_u32_u24 v34, {CS}, v34")
    A("v_lshl_add_u32 v34, v9, 5, v34"); A("v_and_b32 v25, 3, v1"); A("v_lshl_add_u32 v34, v25, 3, v34")
    A("s_lshl_b32 s34, s28, 9"); A(f"s_add_u32 s34, s34, {C0}"); A("v_add_u32 v34, s34, v34")
    A("v_mul_u32_u24 v35, 2304, v1")
    A("v_mov_b32 v24, 0"); A("v_mov_b32 v25, 0")
    A("v_lshlrev_b32 v11, 3, v1"); A("v_add_u32 v11, s31, v11")
    A("ds_write_b64 v11, v[24:25] offset:4096")
    A("s_mov_b64 exec, 15")
    A(f"ds_write_b64 v11, v[24:25] offset:{C0}"); A(f"ds_write_b64 v11, v[24:25] offset:{C1}")
    A("s_mov_b64 exec, -1")
    A("s_cmp_lg_u32 s28, 2"); A("s_cbranch_scc1 T_XZ0")
    A("v_lshlrev_b32 v4, 3, v1"); A(f"v_add_u32 v4, {XB_}, v4")
    A("ds_write_b64 v4, v[24:25] offset:4096")
    A("s_mov_b64 exec, 15")
    A(f"ds_write_b64 v4, v[24:25] offset:{C0}"); A(f"ds_write_b64 v4, v[24:25] offset:{C1}")
    A("s_mov_b64 exec, -1")
    A("T_XZ0:")
    xs("ctx_ok")
    A("s_waitcnt vmcnt(0)")
    A("v_mov_b32 v24, s31")
    A(f"ds_write_b16 v24, v6 offset:{C1+30}"); A(f"ds_write_b16 v24, v7 offset:{C1+4124}")
    def dfrag(dst, src):
        A(f"v_lshlrev_b32 v25, 16, v{src}")
        for k in range(4):
            A(f"v_cmp_eq_u32 s[36:37], {2*k}, v33"); A(f"v_cmp_eq_u32 vcc, {2*k+1}, v33"); A("s_nop 1")
            A(f"v_cndmask_b32 v{dst+k}, 0, v{src}, s[36:37]"); A(f"v_cndmask_b32 v{dst+k}, v{dst+k}, v25, vcc")
    def late_loads():
        A("s_cmp_gt_u32 s28, 2"); A("s_cbranch_scc1 T_XL")
        A("s_cmp_eq_u32 s28, 1"); A("s_cbranch_scc1 T_XL1")
        A("s_cmp_eq_u32 s28, 2"); A("s_cbranch_scc1 T_XL2")
        A(f"s_mov_b32 m0, {XB_}"); A(f"s_add_u32 s34, s41, {WS_XR}")
        for i in range(4): A(f"buffer_load_dwordx4 v2, s[4:7], s34 offen offset:{i*1024} sc1 lds")
        A("s_branch T_XL")
        A("T_XL2:")
        A(f"s_mov_b32 m0, {XB_+C1+32}"); A("s_nop 0")
        for i in range(4): A(f"buffer_load_dwordx4 v3, s[8:11], s41 offen offset:{i*1024} lds")
        A("s_branch T_XL")
        A("T_XL1:")
        A(f"s_mov_b32 m0, {XB_+C0+32}"); A("s_nop 0")
        for i in range(4): A(f"buffer_load_dwordx4 v2, s[8:11], s41 offen offset:{i*1024} lds")
        A("T_XL:")
        A("s_lshl_b32 s34, s40, 1")
        A(f"buffer_load_ushort v{X0}, v14, s[12:15], s34 offen"); A(f"buffer_load_ushort v{X0+1}, v14, s[8:11], s41 offen"); A(f"buffer_load_ushort v{X0+2}, v14, s[8:11], s41 offen offset:4094")
        A(f"s_add_u32 s34, s41, {WS_QT}"); A("s_lshl_b32 s35, s28, 9"); A("s_add_u32 s34, s34, s35")
        A(f"buffer_load_dwordx2 {vr(X0+4,2)}, v10, s[4:7], s34 offen sc1")
        A(f"s_add_u32 s33, s32, {WS_QT}")
        for w in range(8): A(f"buffer_load_dwordx2 {vr(QR+2*w,2)}, v10, s[4:7], s33 offen offset:{w*512} sc1")
    def late_fix():
        A("s_waitcnt vmcnt(0)")
        A("s_cmp_lg_u32 s28, 2"); A("s_cbranch_scc1 T_XZ")
        A(f"v_mov_b32 v4, {XB_}")
        A(f"ds_write_b16 v4, v{X0+1} offset:{C1+30}"); A(f"ds_write_b16 v4, v{X0+2} offset:{C1+4124}")
        A("T_XZ:")
        A("s_cmp_eq_u32 s28, 0"); A("s_cselect_b32 s34, -1, 0"); A(f"v_and_b32 v{X0}, s34, v{X0}")
        dfrag(AD+4, X0)
    xs("landed")
    def fr(s_, i, n=4, o=0):
        idx = 64*s_ + 4*i
        if idx < 112: return ar(idx + o, n)
        return vr([136, 140, 16, 20][(idx - 112)//4] + o, n)
    def rds(r):
        o = []
        for i in range(8):
            o.append(f"ds_read_b128 {fr(r%2, 8+i)}, v32 offset:{(7-i)*512+64*r}")
            for hh in range(2):
                of = 16*r + 128*(i % 2) + 2*hh
                o.append(f"ds_read2_b32 {fr(r%2, i, 2, 2*hh)}, v{28+i//2} offset0:{of} offset1:{of+1}")
        return o
    def mfs(r, C_=CA, D_=AD):
        o = []
        for k in range(8):
            for i in range(8-k):
                o.append(m16(vr(C_+4*(i+k),4), fr(r%2, i), fr(r%2, 8+k), "0" if (r == 0 and k == 0) else None))
            if r == 0: o.append(m16(vr(C_+4*k,4), vr(D_,4), fr(0, 8+k)))
        return o
    A.ext(rds(0))
    dfrag(AD, 5)
    for r in range(8):
        if r == 7: late_fix()
        A("s_waitcnt lgkmcnt(0)")
        if r == 7:
            A("s_barrier")
            A("s_lshl_b32 s34, s28, 6"); A(f"s_add_u32 s34, s34, {XB_}"); A("s_sub_u32 s34, s34, s31")
            for q_ in range(28, 33): A(f"v_add_u32 v{q_}, s34, v{q_}")
        A.ext(weave(mfs(r), rds(r+1) if r < 7 else rds(0)))
        if r == 0: late_loads()
    A("s_waitcnt lgkmcnt(0)")
    A.ext(mfs(0, XA, AD+4))
    xs("gemm_done")
    A("s_mov_b32 s34, 0xffff0000")
    A(f"s_add_u32 s35, s31, {C0}"); A("v_add_u32 v11, s35, v10")
    for w in range(8):
        a = CA+4*w
        A(f"v_lshlrev_b32 v24, 16, v{QR+2*w}"); A(f"v_and_b32 v25, s34, v{QR+2*w}")
        A(f"v_lshlrev_b32 v4, 16, v{QR+2*w+1}"); A(f"v_and_b32 v5, s34, v{QR+2*w+1}")
        A(f"v_mul_f32 v{a}, v{a}, v24"); A(f"v_mul_f32 v{a+1}, v{a+1}, v25"); A(f"v_mul_f32 v{a+2}, v{a+2}, v4"); A(f"v_mul_f32 v{a+3}, v{a+3}, v5")
        A(f"v_cvt_pk_bf16_f32 v{a}, v{a}, v{a+1}"); A(f"v_cvt_pk_bf16_f32 v{a+1}, v{a+2}, v{a+3}")
        A(f"ds_write_b64 v11, {vr(a,2)} offset:{w*512}")
    A("v_add_u32 v11, s31, v2")
    for w in range(8): A(f"ds_write_b128 v11, {vr(XA+4*w,4)} offset:{(w%4)*1024 + (w//4)*C1}")
    A(f"s_mul_i32 s41, s28, {256*2304}"); A("s_lshl_b32 s34, s29, 4"); A("s_add_u32 s35, s41, s34")
    A("s_and_b32 s34, s28, 3"); A("s_lshl_b32 s34, s34, 10"); A("s_lshr_b32 s33, s28, 2"); A(f"s_mul_i32 s33, s33, {C1}"); A("s_add_u32 s34, s34, s33")
    A("v_add_u32 v11, s34, v2"); A(f"v_add_u32 v15, {4*CS}, v11")
    xs("sent")
    A("s_waitcnt lgkmcnt(0)"); A("s_barrier")
    xs("polled")
    for w in range(8): A(f"ds_read_b128 {vr(XA+4*w,4)}, v{11 if w < 4 else 15} offset:{(w%4)*CS}")
    for blk in range(4):
        for hf in range(2): A(f"ds_read_b64_tr_b16 {vr(CA+4*blk+2*hf,2)}, v34 offset:{hf*4*CS+blk*128}")
    for blk in range(4):
        A(f"s_waitcnt lgkmcnt({6-2*blk})")
        A(f"buffer_store_dwordx4 {vr(CA+4*blk,4)}, v35, s[16:19], s35 offen")
        A(f"s_add_u32 s35, s35, {64*2304}")
    for st_ in (16, 8, 4):
        for r in range(st_): A(f"v_add_f32 v{XA+r}, v{XA+r}, v{XA+st_+r}")
    A("s_mov_b32 s34, 0xffff0000")
    A(f"v_lshlrev_b32 v24, 16, v{X0+4}"); A(f"v_and_b32 v25, s34, v{X0+4}"); A(f"v_lshlrev_b32 v4, 16, v{X0+5}"); A(f"v_and_b32 v5, s34, v{X0+5}")
    A(f"v_mul_f32 v{XA}, v{XA}, v24"); A(f"v_mul_f32 v{XA+1}, v{XA+1}, v25"); A(f"v_mul_f32 v{XA+2}, v{XA+2}, v4"); A(f"v_mul_f32 v{XA+3}, v{XA+3}, v5")
    A(f"v_cvt_pk_bf16_f32 v{XA}, v{XA}, v{XA+1}"); A(f"v_cvt_pk_bf16_f32 v{XA+1}, v{XA+2}, v{XA+3}")
    A("v_mul_u32_u24 v24, 1152, v10")
    A("s_lshl_b32 s34, s40, 1"); A("s_add_u32 s41, s41, s34"); A(f"s_add_u32 s34, s41, {2*2304}")
    A(f"buffer_store_short v{XA}, v24, s[16:19], s41 offen"); A(f"buffer_store_short_d16_hi v{XA}, v24, s[16:19], s41 offen offset:2304")
    A(f"buffer_store_short v{XA+1}, v24, s[16:19], s34 offen"); A(f"buffer_store_short_d16_hi v{XA+1}, v24, s[16:19], s34 offen offset:2304")
    xs("xdone")
    A("T_FIN:")

def k3alone(A, name="k3_kernel"):
    A(khead(name))
    ST = Stamps(A, False)
    A("s_cmp_ge_u32 s2, 256"); A("s_cbranch_scc1 K3_END")
    A("s_load_dwordx2 s[48:49], s[0:1], 112"); A("s_mov_b32 s90, s0"); A("s_mov_b32 s91, s1")
    A("v_lshrrev_b32 v10, 6, v0"); A("v_and_b32 v1, 63, v0"); A("v_readfirstlane_b32 s28, v10"); A("v_lshlrev_b32 v2, 4, v1")
    A("s_mov_b32 s29, 0"); A("s_mov_b32 s30, 0")
    A("s_waitcnt lgkmcnt(0)")
    srd(A, 4, 48, 1 << 28)
    A(f"s_mov_b32 s34, {121 << 20}"); A("v_mov_b32 v22, 0")
    A("buffer_load_dwordx2 v[22:23], v22, s[4:7], s34 offen"); A("s_waitcnt vmcnt(0)")
    tail(A, ST, alone=True)
    A("K3_END:"); A("s_endpgm")
    A(kd(name, 256, 144))
```
